```python
import torch

def _softmax(x, axis=-1):
    return torch.softmax(x, dim=axis)
def _gelu(x):
    return torch.nn.functional.gelu(x, approximate="tanh")
def _silu(x):
    return torch.nn.functional.silu(x)
def _sigmoid(x):
    return torch.sigmoid(x)
def _layernorm(x, axis=-1, eps=1e-5):
    m = x.mean(dim=axis, keepdim=True)
    v = x.var(dim=axis, keepdim=True, unbiased=False)
    return (x - m) / torch.sqrt(v + eps)
def _scatter_add(tgt, idx, src, axis=0):
    return tgt.clone().index_add_(axis, idx, src)
def _segment_sum(src, seg, n):
    out = torch.zeros((n,) + src.shape[1:], dtype=src.dtype)
    return out.index_add_(0, seg, src)
def _pad(x, pw):
    flat = tuple(v for pair in reversed(pw) for v in pair)
    return torch.nn.functional.pad(x, flat)

kernel_name = 'recurrent_scan__sliding_block__dense_activation_squared_relu__prompt'

def setup_inputs():

    _w = (lambda a: (lambda t: t.to(torch.bfloat16) if t.is_floating_point() else t)(torch.as_tensor(a)))
    def _A_setup():
        B, S, D = 1, 2048, 640
        return {
            "x": _w((lambda *s: torch.randn(*s, dtype=torch.bfloat16) * 0.05)(B, S, D)),
            "wqkv": _w((lambda *s: torch.randn(*s, dtype=torch.bfloat16) * 0.05)(D, 3 * D)),
            "wo": _w((lambda *s: torch.randn(*s, dtype=torch.bfloat16) * 0.05)(D, D)),
        }
    _A_in = _A_setup()

    def _B_setup():
        B, S, D, F = 1, 2048, 640, 1536
        return {
            "x": _w((lambda *s: torch.randn(*s, dtype=torch.bfloat16) * 0.05)(B, S, D)),
            "w1": _w((lambda *s: torch.randn(*s, dtype=torch.bfloat16) * 0.05)(D, F)),
            "b1": _w((lambda *s: torch.randn(*s, dtype=torch.bfloat16) * 0.4)(F)),
            "w2": _w((lambda *s: torch.randn(*s, dtype=torch.bfloat16) * 0.05)(F, D)),
            "b2": _w((lambda *s: torch.randn(*s, dtype=torch.bfloat16) * 0.8)(D)),
        }
    _B_in = _B_setup()

    return {
        "A_x": _A_in["x"],
        "A_wqkv": _A_in["wqkv"],
        "A_wo": _A_in["wo"],
        "B_x": _B_in["x"],
        "B_w1": _B_in["w1"],
        "B_b1": _B_in["b1"],
        "B_w2": _B_in["w2"],
        "B_b2": _B_in["b2"],
    }

def reference(A_x, A_wqkv, A_wo, B_x, B_w1, B_b1, B_w2, B_b2):
    def _A_ref(x, wqkv, wo):
        B, S, D = x.shape
        H = 32; Dh = D // H; W = 256
        qkv = (lambda x, *d: x.permute(*d))((x @ wqkv).reshape(B, S, 3, H, Dh), 2, 0, 3, 1, 4)
        q, k, v = qkv[0], qkv[1], qkv[2]
        scores = torch.einsum("bhqd,bhkd->bhqk", q, k) * (Dh ** -0.5)
        idx = torch.arange(S)
        mask = (idx[:, None] - idx[None, :] >= 0) & (idx[:, None] - idx[None, :] < W)
        scores = torch.where(mask[None, None], scores, -1e9)
        p = _softmax(scores, axis=-1)
        o = torch.einsum("bhqk,bhkd->bhqd", p, v)
        return (lambda x, *d: x.permute(*d))(o, 0, 2, 1, 3).reshape(B, S, D) @ wo

    def _B_ref(x, w1, b1, w2, b2):
        h = torch.einsum("bsd,df->bsf", x, w1) + b1
        zero = torch.zeros_like(h)
        r = torch.where(h > zero, h, zero)
        h = r * r
        out = torch.einsum("bsf,fd->bsd", h, w2) + b2
        return out

    x = A_x
    xn = _layernorm(x, axis=-1)
    s = _A_ref(xn, A_wqkv, A_wo)
    g = _silu(_B_ref(xn, B_w1, B_b1, B_w2, B_b2))
    return x + s * g
```

```python
class Asm:
    def __init__(self):
        self.lines = []
        self.vm = []
        self.lg = []
        self.uid = 0
    def e(self, s):
        self.lines.append("    " + s)
    def label(self, s):
        self.lines.append(s + ":")
    def c(self, s):
        self.lines.append("    ; " + s)
    def newlabel(self, p="L"):
        self.uid += 1
        return "%s_%d" % (p, self.uid)
    def vmem(self, s, tag):
        self.e(s); self.vm.append(tag)
    def lds(self, s, tag):
        self.e(s); self.lg.append(tag)
    def wait_vm(self, tags):
        if not isinstance(tags, (list, tuple, set)): tags = [tags]
        idx = -1
        for i, t in enumerate(self.vm):
            if t in tags: idx = i
        if idx < 0: return
        n = len(self.vm) - 1 - idx
        assert n <= 63, n
        self.e("s_waitcnt vmcnt(%d)" % n)
        self.vm = self.vm[idx + 1:]
    def wait_lg(self, tags):
        if not isinstance(tags, (list, tuple, set)): tags = [tags]
        idx = -1
        for i, t in enumerate(self.lg):
            if t in tags: idx = i
        if idx < 0: return
        n = min(len(self.lg) - 1 - idx, 15)
        self.e("s_waitcnt lgkmcnt(%d)" % n)
        self.lg = self.lg[len(self.lg) - n:] if n else []
    def wait_all(self):
        self.e("s_waitcnt vmcnt(0) lgkmcnt(0)")
        self.vm = []; self.lg = []
    def nop(self, n):
        while n > 0:
            k = min(n, 16)
            self.e("s_nop %d" % (k - 1))
            n -= k
    def text(self):
        return "\n".join(self.lines) + "\n"

def vr(b, n=1):
    return "v%d" % b if n == 1 else "v[%d:%d]" % (b, b + n - 1)
def sr(b, n=1):
    return "s%d" % b if n == 1 else "s[%d:%d]" % (b, b + n - 1)

WS_Q = 0x0000000
WS_K = 0x0400000
WS_V = 0x0800000
WS_H = 0x1000000
WS_O = 0x1800000
WS_G = 0x1C00000
SZ_QK = 32 * 64 * 1280
SZ_V = 32 * 64 * 2048
SZ_H = 128 * 48 * 1024
SZ_O = 128 * 20 * 1024
SZ_G = 256 * 4 * 5 * 64 * 8
OOB = 0x7F000000

def load_args(a):
    a.e("s_load_dwordx16 s[4:19], s[0:1], 0")
    a.e("s_load_dwordx4 s[20:23], s[0:1], 64")
    a.e("s_load_dwordx2 s[24:25], s[0:1], 80")

def srd(a, d, base, size, off=0):
    if off:
        a.e("s_add_u32 s%d, s%d, 0x%x" % (d, base, off))
        a.e("s_addc_u32 s%d, s%d, 0" % (d + 1, base + 1))
    else:
        a.e("s_mov_b32 s%d, s%d" % (d, base))
        a.e("s_mov_b32 s%d, s%d" % (d + 1, base + 1))
    a.e("s_mov_b32 s%d, 0x%x" % (d + 2, size))
    a.e("s_mov_b32 s%d, 0x00020000" % (d + 3))

def kernel_header(name):
    return (".globl %s\n.p2align 8\n.type %s,@function\n%s:\n" % (name, name, name))

def kernel_desc(name, vgpr, sgpr=102, accum=None):
    if accum is None: accum = (vgpr + 3) // 4 * 4
    return (".amdhsa_kernel %s\n  .amdhsa_next_free_vgpr %d\n  .amdhsa_next_free_sgpr %d\n"
            "  .amdhsa_accum_offset %d\n  .amdhsa_group_segment_fixed_size 0\n  .amdhsa_kernarg_size 88\n"
            "  .amdhsa_user_sgpr_count 2\n  .amdhsa_user_sgpr_kernarg_segment_ptr 1\n"
            "  .amdhsa_system_sgpr_workgroup_id_x 1\n.end_amdhsa_kernel\n") % (name, vgpr, sgpr, accum)
```

```python
from common import *

QS = 1.4426950408889634 * (20.0 ** -0.5)
import struct
def f2u(x): return struct.unpack("<I", struct.pack("<f", x))[0]

V_DMA = 16
V_X0, V_X1 = 24, 25
V_E, V_O, V_E2 = 26, 27, 12
V_ONE = 28
V_XR = 32
V_WF = 64
V_RS = 88
V_GR = 96
V_CS = 104
V_ACC = 120
V_B1 = 216
LDS_CS = 131072
LDS_ST = 131072 + 1024
K1_LDS = 131072 + 2048

def k1_setup(a, typ):
    if typ == 'Q':
        CPR, NCH, MUL, RB, RS = 30, 30, 2185, 3840, 480
        srd(a, 32, 6, 640 * 3840)
        a.e("s_mul_i32 s38, s37, 480")
        srd(a, 48, 24, 0xC00000, 0)
    else:
        CPR, NCH, MUL, RB, RS = 26, 24, 2521, 3072, 416
        srd(a, 32, 12, 640 * 3072)
        a.e("s_sub_u32 s39, s37, 8")
        a.e("s_mul_i32 s38, s39, 384")
        srd(a, 48, 24, SZ_H, WS_H)
        srd(a, 52, 14, 1536 * 2)
    a.e("s_lshl_b32 s41, s26, 6")
    a.e("s_mov_b32 s46, %d" % RB)
    for i in range(8):
        d = V_DMA + i
        a.e("v_add_u32 v2, s41, v1")
        if i: a.e("v_add_u32 v2, %d, v2" % (256 * i))
        a.e("v_mul_u32_u24 v3, %d, v2" % MUL)
        a.e("v_lshrrev_b32 v3, 16, v3")
        a.e("v_mul_u32_u24 v4, %d, v3" % CPR)
        a.e("v_sub_u32 v4, v2, v4")
        a.e("v_and_b32 v5, 35, v3")
        a.e("v_bfe_u32 v6, v3, 4, 1")
        a.e("v_lshl_or_b32 v5, v6, 2, v5")
        a.e("v_bfe_u32 v6, v3, 2, 2")
        a.e("v_lshl_or_b32 v5, v6, 3, v5")
        a.e("v_mul_lo_u32 v5, v5, s46")
        a.e("v_lshl_add_u32 v5, v4, 4, v5")
        a.e("v_add_u32 v5, s38, v5")
        a.e("v_cmp_gt_u32 vcc, 64, v3")
        a.e("v_cmp_gt_u32 s[56:57], %d, v4" % NCH)
        a.e("s_and_b64 vcc, vcc, s[56:57]")
        a.nop(1)
        a.e("v_cndmask_b32 v%d, 0, v5, vcc" % d)
    a.e("v_bfe_u32 v2, v1, 2, 4")
    a.e("v_mul_u32_u24 v2, %d, v2" % RS)
    a.e("v_and_b32 v3, 3, v1")
    a.e("v_lshl_add_u32 v%d, v3, 3, v2" % V_E)
    a.e("v_add_u32 v%d, 0x8000, v%d" % (V_O, V_E))
    a.e("s_mul_i32 s47, s46, 64")
    return RB, RS

def dma(a, i, tag):
    a.vmem("buffer_load_dwordx4 v%d, s[32:35], s43 offen lds" % (V_DMA + i), tag)

def k1_prologue(a, typ):
    a.e("s_lshl_b32 s41, s26, 10")
    def dchunk(c, lo, hi):
        a.e("s_mul_i32 s43, s47, %d" % c)
        for i in range(lo, hi):
            a.e("s_add_u32 m0, s41, %d" % (c * 32768 + i * 4096))
            a.nop(1)
            dma(a, i, "D%d" % c)
    def xl(s):
        a.vmem("buffer_load_dwordx4 %s, v%d, s[28:31], 0 offen offset:%d" % (vr(V_XR + (s % 4) * 8, 4), V_X0, s * 64), "X%d" % s)
        a.vmem("buffer_load_dwordx4 %s, v%d, s[28:31], 0 offen offset:%d" % (vr(V_XR + (s % 4) * 8 + 4, 4), V_X1, s * 64), "X%d" % s)
    dchunk(0, 0, 8); dchunk(1, 0, 8); xl(0); dchunk(2, 0, 4); xl(1); dchunk(2, 4, 8); xl(2)
    if typ == 'H':
        pass
    for r in range(V_RS, 240 if typ == 'Q' else 216):
        a.e("v_mov_b32 v%d, 0" % r)
    for r in range(4):
        a.e("v_mov_b32 v%d, 0x3f803f80" % (V_ONE + r))
    a.e("s_mov_b32 s40, 0x18000")
    a.e("s_mul_i32 s43, s47, 3")
    a.e("s_movk_i32 s44, 192")
    a.e("s_mov_b32 s45, 0")
    a.wait_vm("D0")
    a.e("s_barrier")

def k1_loop(a, typ, T, isv, w, RS, lbl):
    NR = 5 if T == 15 else 6
    D = NR - 1
    def rd(base, ks, t, slot):
        f = V_WF + slot * 4
        off = (32 * ks) * RS + t * 32
        a.e("ds_read_b64_tr_b16 %s, v%d offset:%d" % (vr(f, 2), base, off))
        a.e("ds_read_b64_tr_b16 %s, v%d offset:%d" % (vr(f + 2, 2), base, off + 16 * RS))
    for p in range(D):
        rd(V_E, 0, p, p % NR)
    a.label(lbl)
    a.e("v_add_u32 v%d, 0x10000, v%d" % (V_E2, V_E))
    a.e("v_and_b32 v%d, 0x1ffff, v%d" % (V_E2, V_E2))
    for half in range(2):
        cur = V_E if half == 0 else V_O
        nxt = V_O if half == 0 else V_E2
        for ks in range(2):
            sidx = half * 2 + ks
            xs = V_XR + sidx * 8
            xn = V_XR + ((sidx + 3) % 4) * 8
            a.e("s_waitcnt vmcnt(12)")
            if ks == 0:
                a.e("s_barrier")
                a.e("s_add_u32 s42, s40, s41")
            for p in range(T):
                f = V_WF + (p % NR) * 4
                a.e("s_waitcnt lgkmcnt(%d)" % ((D - 1) * 2))
                acc0 = V_ACC + p * 8
                acc1 = acc0 + 4
                if 1 <= p <= 4:
                    a.e("s_add_u32 m0, s42, %d" % ((ks * 4 + p - 1) * 4096))
                for rt, acc in ((0, acc0), (1, acc1)):
                    x = xs + rt * 4
                    if isv[p]:
                        a.e("v_mfma_f32_16x16x32_bf16 %s, %s, %s, %s" % (vr(acc, 4), vr(x, 4), vr(f, 4), vr(acc, 4)))
                    else:
                        a.e("v_mfma_f32_16x16x32_bf16 %s, %s, %s, %s" % (vr(acc, 4), vr(f, 4), vr(x, 4), vr(acc, 4)))
                    q = p + D
                    if q < T: base, kk, tt = cur, ks, q
                    elif ks == 0: base, kk, tt = cur, 1, q - T
                    else: base, kk, tt = nxt, 0, q - T
                    ff = V_WF + (q % NR) * 4
                    off = (32 * kk) * RS + tt * 32 + rt * 16 * RS
                    a.e("ds_read_b64_tr_b16 %s, v%d offset:%d" % (vr(ff + 2 * rt, 2), base, off))
                if 1 <= p <= 4:
                    a.e("buffer_load_dwordx4 v%d, s[32:35], s43 offen lds" % (V_DMA + ks * 4 + p - 1))
                if p % 4 == w:
                    cs = V_CS + (p // 4) * 4
                    a.e("v_mfma_f32_16x16x32_bf16 %s, %s, %s, %s" % (vr(cs, 4), vr(f, 4), vr(V_ONE, 4), vr(cs, 4)))
                if p == 6:
                    a.e("buffer_load_dwordx4 %s, v%d, s[28:31], s44 offen" % (vr(xn, 4), V_X0))
                    a.e("buffer_load_dwordx4 %s, v%d, s[28:31], s44 offen" % (vr(xn + 4, 4), V_X1))
                    a.e("s_add_u32 s44, s44, 64")
                if p in (7, 9):
                    rt = (p - 7) // 2
                    x = xs + rt * 4
                    a.e("v_mfma_f32_16x16x32_bf16 %s, %s, %s, %s" % (vr(V_RS + rt * 4, 4), vr(V_ONE, 4), vr(x, 4), vr(V_RS + rt * 4, 4)))
                if p in (8, 10):
                    rt = (p - 8) // 2
                    x = xs + rt * 4
                    a.e("v_mfma_f32_16x16x32_bf16 %s, %s, %s, %s" % (vr(V_GR + rt * 4, 4), vr(x, 4), vr(x, 4), vr(V_GR + rt * 4, 4)))
            if ks == 1:
                a.e("s_add_u32 s40, s40, 0x8000")
                a.e("s_and_b32 s40, s40, 0x1ffff")
                a.e("s_add_u32 s43, s43, s47")
    a.e("v_mov_b32 v%d, v%d" % (V_E, V_E2))
    a.e("v_add_u32 v%d, 0x10000, v%d" % (V_O, V_O))
    a.e("v_and_b32 v%d, 0x1ffff, v%d" % (V_O, V_O))
    a.e("s_add_u32 s45, s45, 1")
    a.e("s_cmp_lt_u32 s45, 5")
    a.e("s_cbranch_scc1 %s" % lbl)

def k1_stats(a, T, w):
    a.e("s_waitcnt vmcnt(0) lgkmcnt(0)")
    a.nop(10)
    a.e("v_and_b32 v2, 15, v1")
    a.e("v_lshrrev_b32 v3, 4, v1")
    a.e("v_lshlrev_b32 v4, 4, v3")
    a.e("v_add_u32 v4, %d, v4" % LDS_CS)
    a.e("v_cmp_eq_u32 vcc, 0, v2")
    a.e("s_and_saveexec_b64 s[56:57], vcc")
    for q in range(4):
        p = 4 * q + w
        if p < T:
            a.e("ds_write_b128 v4, %s offset:%d" % (vr(V_CS + q * 4, 4), p * 64))
    a.e("s_mov_b64 exec, s[56:57]")
    a.e("v_and_b32 v5, 3, v2")
    a.e("v_lshrrev_b32 v6, 2, v2")
    a.e("v_lshlrev_b32 v7, 3, v2")
    a.e("v_add_u32 v7, s58, v7")
    for rt in range(2):
        g = V_GR + rt * 4
        a.e("v_mov_b32 v8, v%d" % g)
        for r in range(1, 4):
            a.e("v_cmp_eq_u32 vcc, %d, v5" % r)
            a.nop(2)
            a.e("v_cndmask_b32 v8, v8, v%d, vcc" % (g + r))
        a.e("v_mul_f32 v9, 0x%x, v%d" % (f2u(1.0 / 640), V_RS + rt * 4))
        a.e("v_mul_f32 v8, 0x%x, v8" % f2u(1.0 / 640))
        a.e("v_fma_f32 v8, -v9, v9, v8")
        a.e("v_max_f32 v8, 0, v8")
        a.e("v_add_f32 v8, 0x%x, v8" % f2u(1e-5))
        a.e("v_rsq_f32 v10, v8")
        a.nop(1)
        a.e("v_mul_f32 v11, v9, v10")
        a.e("v_sub_f32 v11, 0, v11")
        a.e("v_cmp_eq_u32 vcc, v6, v3")
        a.e("s_and_saveexec_b64 s[56:57], vcc")
        a.e("ds_write_b64 v7, v[10:11] offset:%d" % (rt * 128))
        a.e("s_mov_b64 exec, s[56:57]")
    a.e("s_waitcnt lgkmcnt(0)")
    a.e("s_barrier")

def k1_epi_q(a, isv):
    hasq = not all(isv); hasv = any(isv)
    if hasq:
        a.e("v_lshlrev_b32 v7, 3, v2")
        a.e("v_add_u32 v7, s58, v7")
        a.e("ds_read_b64 v[32:33], v7")
        a.e("ds_read_b64 v[34:35], v7 offset:128")
    if hasv:
        a.e("v_lshlrev_b32 v7, 5, v3")
        a.e("v_add_u32 v7, s58, v7")
        a.e("ds_read_b128 v[36:39], v7")
        a.e("ds_read_b128 v[40:43], v7 offset:16")
        a.e("ds_read_b128 v[44:47], v7 offset:128")
        a.e("ds_read_b128 v[48:51], v7 offset:144")
    a.e("v_lshlrev_b32 v4, 4, v3")
    a.e("v_add_u32 v4, %d, v4" % LDS_CS)
    a.e("v_lshlrev_b32 v5, 2, v2")
    a.e("v_add_u32 v5, %d, v5" % LDS_CS)
    a.e("v_mov_b32 v60, 0x3f803f80")
    a.e("v_mov_b32 v61, 0x3f803f80")
    a.e("s_mul_i32 s60, s37, 15")
    for p in range(len(isv)):
        acc0 = V_ACC + p * 8
        tb = 64 + (p % 2) * 12
        if not isv[p]:
            a.e("ds_read_b128 %s, v4 offset:%d" % (vr(tb, 4), p * 64))
            a.e("s_add_u32 s61, s60, %d" % p)
            a.e("s_cmp_ge_u32 s61, 40")
            a.e("s_cselect_b32 s62, 40, 0")
            a.e("s_cselect_b32 s63, 0x%x, 0" % WS_K)
            a.e("s_cselect_b32 s64, 1.0, 0x%x" % f2u(QS))
            a.e("s_sub_u32 s61, s61, s62")
            a.e("s_lshl_b32 s61, s61, 2")
            a.e("s_mul_i32 s65, s59, 1280")
            a.e("s_add_u32 s63, s63, s65")
            a.e("v_add_u32 v8, s61, v3")
            a.e("v_mul_u32_u24 v9, 205, v8")
            a.e("v_lshrrev_b32 v9, 10, v9")
            a.e("v_mul_u32_u24 v10, 5, v9")
            a.e("v_sub_u32 v10, v8, v10")
            a.e("v_lshrrev_b32 v11, 1, v10")
            a.e("v_lshlrev_b32 v11, 9, v11")
            a.e("v_and_b32 v13, 1, v10")
            a.e("v_lshl_or_b32 v11, v13, 3, v11")
            a.e("v_lshrrev_b32 v13, 2, v10")
            a.e("v_sub_u32 v13, 4, v13")
            a.e("v_lshlrev_b32 v14, v13, v2")
            a.e("v_add_u32 v11, v11, v14")
            a.e("v_mov_b32 v14, 16")
            a.e("v_lshlrev_b32 v14, v13, v14")
            a.e("s_mov_b32 s65, 81920")
            a.e("v_mul_lo_u32 v9, v9, s65")
            a.e("v_add3_u32 v%d, v9, v11, s63" % (tb + 8))
            a.e("v_add_u32 v%d, v%d, v14" % (tb + 9, tb + 8))
            a.e("s_waitcnt lgkmcnt(0)")
            for rt in range(2):
                a.e("v_mul_f32 v8, s64, v%d" % (32 + rt * 2))
                a.e("v_mul_f32 v9, s64, v%d" % (33 + rt * 2))
                for r in range(4):
                    a.e("v_mul_f32 v%d, v9, v%d" % (52 + r, tb + r))
                for r in range(4):
                    a.e("v_fma_f32 v%d, v%d, v8, v%d" % (52 + r, acc0 + rt * 4 + r, 52 + r))
                o = tb + 4 + rt * 2
                a.e("v_cvt_pk_bf16_f32 v%d, v52, v53" % o)
                a.e("v_cvt_pk_bf16_f32 v%d, v54, v55" % (o + 1))
                a.e("buffer_store_dwordx2 %s, v%d, s[48:51], 0 offen" % (vr(o, 2), tb + 8 + rt))
        else:
            a.e("ds_read_b32 v%d, v5 offset:%d" % (tb, p * 64))
            a.e("s_add_u32 s61, s60, %d" % p)
            a.e("s_sub_u32 s61, s61, 80")
            a.e("s_lshl_b32 s61, s61, 4")
            a.e("s_lshl_b32 s63, s59, 11")
            a.e("s_add_u32 s63, s63, 0x%x" % WS_V)
            a.e("v_add_u32 v8, s61, v2")
            a.e("v_mul_u32_u24 v9, 3277, v8")
            a.e("v_lshrrev_b32 v9, 16, v9")
            a.e("v_mul_u32_u24 v10, 20, v9")
            a.e("v_sub_u32 v10, v8, v10")
            a.e("v_and_b32 v11, 1, v3")
            a.e("v_lshl_add_u32 v11, v11, 5, v10")
            a.e("v_lshlrev_b32 v11, 4, v11")
            a.e("v_lshrrev_b32 v13, 1, v3")
            a.e("v_lshl_add_u32 v11, v13, 3, v11")
            a.e("v_lshlrev_b32 v9, 17, v9")
            a.e("v_add3_u32 v%d, v9, v11, s63" % (tb + 8))
            a.e("v_cmp_eq_u32 s[56:57], 0, v10")
            a.e("s_waitcnt lgkmcnt(0)")
            for rt in range(2):
                sb = 36 + rt * 8
                for r in range(4):
                    a.e("v_mul_f32 v%d, v%d, v%d" % (52 + r, sb + 2 * r + 1, tb))
                for r in range(4):
                    a.e("v_fma_f32 v%d, v%d, v%d, v%d" % (52 + r, acc0 + rt * 4 + r, sb + 2 * r, 52 + r))
                o = tb + 4 + rt * 2
                a.e("v_cvt_pk_bf16_f32 v%d, v52, v53" % o)
                a.e("v_cvt_pk_bf16_f32 v%d, v54, v55" % (o + 1))
                a.e("buffer_store_dwordx2 %s, v%d, s[48:51], 0 offen offset:%d" % (vr(o, 2), tb + 8, rt * 1024))
            a.e("s_and_saveexec_b64 s[66:67], s[56:57]")
            a.e("buffer_store_dwordx2 v[60:61], v%d, s[48:51], 0 offen offset:320" % (tb + 8))
            a.e("buffer_store_dwordx2 v[60:61], v%d, s[48:51], 0 offen offset:1344" % (tb + 8))
            a.e("s_mov_b64 exec, s[66:67]")

def k1_epi_h(a):
    a.e("v_lshlrev_b32 v7, 3, v2")
    a.e("v_add_u32 v7, s58, v7")
    a.e("ds_read_b64 v[32:33], v7")
    a.e("ds_read_b64 v[34:35], v7 offset:128")
    a.e("v_lshlrev_b32 v4, 4, v3")
    a.e("v_add_u32 v4, %d, v4" % LDS_CS)
    a.e("s_lshl_b32 s60, s59, 1")
    a.e("s_mul_i32 s60, s60, 48")
    a.e("s_mul_i32 s61, s39, 6")
    a.e("s_add_u32 s60, s60, s61")
    a.e("s_lshl_b32 s60, s60, 10")
    a.e("v_lshlrev_b32 v6, 4, v1")
    a.e("v_add_u32 v6, s60, v6")
    a.e("v_add_u32 v7, %d, v6" % (48 * 1024))
    a.e("s_waitcnt vmcnt(0)")
    for i in range(6):
        tb = 64 + (i % 2) * 16
        if i == 4:
            a.e("v_add_u32 v6, 0x1000, v6")
            a.e("v_add_u32 v7, 0x1000, v7")
        a.e("ds_read_b128 %s, v4 offset:%d" % (vr(tb, 4), (2 * i) * 64))
        a.e("ds_read_b128 %s, v4 offset:%d" % (vr(tb + 4, 4), (2 * i + 1) * 64))
        for t in range(2):
            b = V_B1 + (2 * i + t) * 2
            a.e("v_lshlrev_b32 v%d, 16, v%d" % (36 + t * 4, b))
            a.e("v_and_b32 v%d, 0xffff0000, v%d" % (37 + t * 4, b))
            a.e("v_lshlrev_b32 v%d, 16, v%d" % (38 + t * 4, b + 1))
            a.e("v_and_b32 v%d, 0xffff0000, v%d" % (39 + t * 4, b + 1))
        a.e("s_waitcnt lgkmcnt(0)")
        for rt in range(2):
            for t in range(2):
                acc = V_ACC + (2 * i + t) * 8 + rt * 4
                for r in range(4):
                    a.e("v_fma_f32 v%d, v%d, v%d, v%d" % (44 + t * 4 + r, 33 + rt * 2, tb + t * 4 + r, 36 + t * 4 + r))
                for r in range(4):
                    a.e("v_fma_f32 v%d, v%d, v%d, v%d" % (44 + t * 4 + r, acc + r, 32 + rt * 2, 44 + t * 4 + r))
                for r in range(4):
                    a.e("v_max_f32 v%d, 0, v%d" % (44 + t * 4 + r, 44 + t * 4 + r))
                for r in range(4):
                    a.e("v_mul_f32 v%d, v%d, v%d" % (44 + t * 4 + r, 44 + t * 4 + r, 44 + t * 4 + r))
            o = tb + 8 + rt * 4
            for q in range(4):
                a.e("v_cvt_pk_bf16_f32 v%d, v%d, v%d" % (o + q, 44 + 2 * q, 45 + 2 * q))
            a.e("buffer_store_dwordx4 %s, v%d, s[48:51], 0 offen offset:%d" % (vr(o, 4), 6 + rt, (i % 4) * 1024))

def gen_k1():
    a = Asm()
    a.e("s_cmp_ge_u32 s2, 256")
    a.e("s_cbranch_scc1 K1_END")
    load_args(a)
    a.e("v_and_b32 v1, 63, v0")
    a.e("v_lshrrev_b32 v2, 6, v0")
    a.nop(1)
    a.e("v_readfirstlane_b32 s26, v2")
    a.e("s_and_b32 s27, s2, 7")
    a.e("s_lshr_b32 s3, s2, 3")
    a.e("s_and_b32 s36, s27, 1")
    a.e("s_lshl_b32 s36, s36, 3")
    a.e("s_and_b32 s37, s3, 7")
    a.e("s_add_u32 s36, s36, s37")
    a.e("s_lshr_b32 s37, s27, 1")
    a.e("s_lshl_b32 s37, s37, 2")
    a.e("s_lshr_b32 s3, s3, 3")
    a.e("s_add_u32 s37, s37, s3")
    a.e("s_lshl_b32 s59, s36, 2")
    a.e("s_add_u32 s59, s59, s26")
    a.e("s_lshl_b32 s58, s26, 8")
    a.e("s_add_u32 s58, s58, %d" % LDS_ST)
    a.e("v_and_b32 v2, 15, v1")
    a.e("s_lshl_b32 s3, s59, 5")
    a.e("v_add_u32 v2, s3, v2")
    a.e("v_mul_u32_u24 v2, 1280, v2")
    a.e("v_lshrrev_b32 v3, 4, v1")
    a.e("v_lshl_add_u32 v%d, v3, 4, v2" % V_X0)
    a.e("v_add_u32 v%d, 20480, v%d" % (V_X1, V_X0))
    a.e("s_waitcnt lgkmcnt(0)")
    srd(a, 28, 4, 2048 * 1280)
    a.e("s_cmp_ge_u32 s37, 8")
    a.e("s_cbranch_scc1 K1_H")
    RB, RS = k1_setup(a, 'Q')
    k1_prologue(a, 'Q')
    variants = {"A": [False] * 15, "B": [False] * 5 + [True] * 10, "C": [True] * 15}
    a.e("s_cmp_eq_u32 s37, 5")
    a.e("s_cbranch_scc1 K1_VB")
    a.e("s_cmp_gt_u32 s37, 5")
    a.e("s_cbranch_scc1 K1_VC")
    for vn in "ABC":
        a.label("K1_V%s" % vn)
        for w in range(1, 4):
            a.e("s_cmp_eq_u32 s26, %d" % w)
            a.e("s_cbranch_scc1 K1_V%s_W%d" % (vn, w))
        for w in range(4):
            a.label("K1_V%s_W%d" % (vn, w))
            k1_loop(a, 'Q', 15, variants[vn], w, RS, "K1_L%s%d" % (vn, w))
            k1_stats(a, 15, w)
            a.e("s_branch K1_E%s" % vn)
        a.label("K1_E%s" % vn)
        k1_epi_q(a, variants[vn])
        a.e("s_endpgm")
    a.label("K1_H")
    a.vm = []
    RB, RS = k1_setup(a, 'H')
    a.e("v_lshrrev_b32 v2, 4, v1")
    a.e("v_lshlrev_b32 v2, 3, v2")
    a.e("v_add_u32 v2, s38, v2")
    for p in range(12):
        a.e("buffer_load_dwordx2 %s, v2, s[52:55], 0 offen offset:%d" % (vr(V_B1 + 2 * p, 2), p * 32))
    k1_prologue(a, 'H')
    for w in range(1, 4):
        a.e("s_cmp_eq_u32 s26, %d" % w)
        a.e("s_cbranch_scc1 K1_H_W%d" % w)
    for w in range(4):
        a.label("K1_H_W%d" % w)
        k1_loop(a, 'H', 12, [False] * 12, w, RS, "K1_LH%d" % w)
        k1_stats(a, 12, w)
        a.e("s_branch K1_EH")
    a.label("K1_EH")
    k1_epi_h(a)
    a.label("K1_END")
    a.e("s_endpgm")
    return a.text()
```

```python
from common import *
import struct
def f2u(x): return struct.unpack("<I", struct.pack("<f", x))[0]
NEG = f2u(-1e30)
LOG2E = f2u(1.4426950408889634)

def decode_gemm(a):
    a.e("s_and_b32 s27, s2, 7")
    a.e("s_lshr_b32 s3, s2, 3")
    a.e("s_and_b32 s36, s27, 3")
    a.e("s_lshl_b32 s36, s36, 3")
    a.e("s_and_b32 s37, s3, 7")
    a.e("s_add_u32 s36, s36, s37")
    a.e("s_lshr_b32 s37, s27, 2")
    a.e("s_lshl_b32 s37, s37, 2")
    a.e("s_lshr_b32 s3, s3, 3")
    a.e("s_add_u32 s37, s37, s3")

def gemm2(a, kind):
    G = kind == 'G'
    NS = 48 if G else 20
    NST = 12 if G else 5
    V_D, V_XO, V_TR = 2, 7, 8
    ACC, XR, WF = 16, 96, 160
    decode_gemm(a)
    if G:
        srd(a, 28, 24, SZ_H, WS_H)
        srd(a, 32, 16, 1536 * 1280)
        srd(a, 48, 24, SZ_G, WS_G)
        srd(a, 52, 18, 1280)
    else:
        srd(a, 28, 24, SZ_O, WS_O)
        srd(a, 32, 8, 640 * 1280)
        srd(a, 48, 24, SZ_G, WS_G)
        srd(a, 52, 4, 2048 * 1280)
        srd(a, 56, 20, 2048 * 1280)
    a.e("s_mul_i32 s38, s37, 160")
    for i in range(5):
        a.e("v_add_u32 v10, %d, v1" % (64 * i))
        a.e("v_mul_u32_u24 v11, 6554, v10")
        a.e("v_lshrrev_b32 v11, 16, v11")
        a.e("v_mul_u32_u24 v12, 10, v11")
        a.e("v_sub_u32 v12, v10, v12")
        if not G:
            a.e("v_and_b32 v13, 3, v11")
            a.e("v_bfe_u32 v14, v11, 4, 1")
            a.e("v_lshl_or_b32 v13, v14, 2, v13")
            a.e("v_bfe_u32 v14, v11, 2, 2")
            a.e("v_lshl_or_b32 v11, v14, 3, v13")
        a.e("v_mul_u32_u24 v11, 1280, v11")
        a.e("v_lshl_add_u32 v11, v12, 4, v11")
        a.e("v_add_u32 v%d, s38, v11" % (V_D + i))
    a.e("v_lshlrev_b32 v%d, 4, v1" % V_XO)
    a.e("s_mul_i32 s39, s26, 20480")
    a.e("v_bfe_u32 v10, v1, 2, 4")
    a.e("v_mul_u32_u24 v10, 160, v10")
    a.e("v_and_b32 v11, 3, v1")
    a.e("v_lshl_add_u32 v10, v11, 3, v10")
    a.e("v_add_u32 v%d, s39, v10" % V_TR)
    a.e("s_mul_i32 s45, s26, %d" % NST)
    a.e("s_mul_i32 s40, s45, 40960")
    for t in range(4):
        a.e("s_lshl_b32 s%d, s36, 2" % (41 + t))
        a.e("s_add_u32 s%d, s%d, %d" % (41 + t, 41 + t, t))
        a.e("s_mul_i32 s%d, s%d, %d" % (41 + t, 41 + t, NS))
        a.e("s_add_u32 s%d, s%d, s45" % (41 + t, 41 + t))
        a.e("s_lshl_b32 s%d, s%d, 10" % (41 + t, 41 + t))
    def D(st):
        for i in range(5):
            a.e("s_add_u32 m0, s39, %d" % ((st % 4) * 5120 + i * 1024))
            if i == 0 and st > 0: a.e("s_add_u32 s40, s40, 40960")
            else: a.nop(1)
            a.vmem("buffer_load_dwordx4 v%d, s[32:35], s40 offen lds" % (V_D + i), "D%d" % st)
    def X(st):
        for t in range(4):
            if st > 0: a.e("s_add_u32 s%d, s%d, 1024" % (41 + t, 41 + t))
            a.vmem("buffer_load_dwordx4 %s, v%d, s[28:31], s%d offen" % (vr(XR + (st % 4) * 16 + t * 4, 4), V_XO, 41 + t), "X%d" % st)
    def rdW(st, ct, hf):
        f = WF + (st % 2) * 20 + ct * 4 + hf * 2
        a.lds("ds_read_b64_tr_b16 %s, v%d offset:%d" % (vr(f, 2), V_TR, (st % 4) * 5120 + hf * 2560 + ct * 32), "W%d_%d" % (st, ct))
    for st in range(min(4, NST)):
        D(st); X(st)
    EP = 200
    a.e("v_lshrrev_b32 v9, 4, v1")
    a.e("v_and_b32 v15, 15, v1")
    if G:
        a.e("v_lshlrev_b32 v10, 3, v9")
        a.e("v_add_u32 v10, s38, v10")
        for ct in range(5):
            a.vmem("buffer_load_dwordx2 %s, v10, s[52:55], 0 offen offset:%d" % (vr(EP + ct * 2, 2), ct * 32), "EP")
    a.e("s_lshl_b32 s46, s2, 2")
    a.e("s_add_u32 s46, s46, s26")
    a.e("s_mul_i32 s46, s46, 2560")
    a.e("v_lshlrev_b32 v13, 3, v1")
    a.e("v_add_u32 v13, s46, v13")
    if not G:
        for ct in range(5):
            a.vmem("buffer_load_dwordx2 %s, v13, s[48:51], 0 offen offset:%d" % (vr(EP + ct * 2, 2), ct * 512), "EP")
        a.e("s_lshl_b32 s47, s36, 6")
        a.e("s_lshl_b32 s46, s26, 4")
        a.e("s_add_u32 s47, s47, s46")
        a.e("v_add_u32 v14, s47, v15")
        a.e("v_mul_u32_u24 v14, 1280, v14")
        a.e("v_lshl_add_u32 v14, v9, 3, v14")
        a.e("v_add_u32 v14, s38, v14")
        for ct in range(5):
            a.vmem("buffer_load_dwordx2 %s, v14, s[52:55], 0 offen offset:%d" % (vr(EP + 10 + ct * 2, 2), ct * 32), "EP")
    for r in range(ACC, ACC + 80):
        a.e("v_mov_b32 v%d, 0" % r)
    a.wait_vm("D0")
    for ct in range(5):
        rdW(0, ct, 0); rdW(0, ct, 1)
    for st in range(NST):
        tags = ["X%d" % st]
        if st + 1 < NST: tags.append("D%d" % (st + 1))
        a.wait_vm(tags)
        if st + 4 < NST: D(st + 4)
        for ct in range(5):
            a.wait_lg("W%d_%d" % (st, ct))
            f = WF + (st % 2) * 20 + ct * 4
            for rt in range(4):
                acc = ACC + (rt * 5 + ct) * 4
                a.e("v_mfma_f32_16x16x32_bf16 %s, %s, %s, %s" % (vr(acc, 4), vr(f, 4), vr(XR + (st % 4) * 16 + rt * 4, 4), vr(acc, 4)))
                if st + 1 < NST and rt < 2:
                    rdW(st + 1, ct, rt)
        if st + 4 < NST: X(st + 4)
    a.nop(10)
    a.e("v_lshlrev_b32 v10, 4, v1")
    a.e("v_add_u32 v11, s39, v10")
    for t in range(20):
        a.e("ds_write_b128 v11, %s offset:%d" % (vr(ACC + t * 4, 4), t * 1024))
    a.e("s_waitcnt lgkmcnt(0)")
    a.e("s_barrier")
    a.lg = []
    a.e("s_mul_i32 s46, s26, 5120")
    a.e("v_add_u32 v11, s46, v10")
    a.e("v_add_u32 v12, 0xa000, v11")
    for ct in range(5):
        for sw in range(4):
            a.lds("ds_read_b128 %s, v%d offset:%d" % (vr(96 + (ct * 4 + sw) * 4, 4), 11 + sw // 2, (sw % 2) * 20480 + ct * 1024), "R%d" % ct)
    a.wait_vm("EP")
    for ct in range(5):
        a.wait_lg("R%d" % ct)
        b = 96 + ct * 16
        for r in range(4):
            a.e("v_add_f32 v%d, v%d, v%d" % (b + r, b + r, b + 4 + r))
            a.e("v_add_f32 v%d, v%d, v%d" % (b + 8 + r, b + 8 + r, b + 12 + r))
        for r in range(4):
            a.e("v_add_f32 v%d, v%d, v%d" % (b + r, b + r, b + 8 + r))
        e = EP + ct * 2
        a.e("v_lshlrev_b32 v%d, 16, v%d" % (b + 4, e))
        a.e("v_and_b32 v%d, 0xffff0000, v%d" % (b + 5, e))
        a.e("v_lshlrev_b32 v%d, 16, v%d" % (b + 6, e + 1))
        a.e("v_and_b32 v%d, 0xffff0000, v%d" % (b + 7, e + 1))
        if G:
            for r in range(4):
                a.e("v_add_f32 v%d, v%d, v%d" % (b + r, b + r, b + 4 + r))
            for r in range(4):
                a.e("v_mul_f32 v%d, 0x%x, v%d" % (b + 4 + r, LOG2E ^ 0x80000000, b + r))
            for r in range(4):
                a.e("v_exp_f32 v%d, v%d" % (b + 4 + r, b + 4 + r))
            for r in range(4):
                a.e("v_add_f32 v%d, 1.0, v%d" % (b + 4 + r, b + 4 + r))
            for r in range(4):
                a.e("v_rcp_f32 v%d, v%d" % (b + 4 + r, b + 4 + r))
            a.nop(1)
            for r in range(4):
                a.e("v_mul_f32 v%d, v%d, v%d" % (b + r, b + r, b + 4 + r))
            a.e("v_cvt_pk_bf16_f32 v%d, v%d, v%d" % (b + 8, b, b + 1))
            a.e("v_cvt_pk_bf16_f32 v%d, v%d, v%d" % (b + 9, b + 2, b + 3))
            a.e("buffer_store_dwordx2 %s, v13, s[48:51], 0 offen offset:%d" % (vr(b + 8, 2), ct * 512))
        else:
            e2 = EP + 10 + ct * 2
            a.e("v_lshlrev_b32 v%d, 16, v%d" % (b + 8, e2))
            a.e("v_and_b32 v%d, 0xffff0000, v%d" % (b + 9, e2))
            a.e("v_lshlrev_b32 v%d, 16, v%d" % (b + 10, e2 + 1))
            a.e("v_and_b32 v%d, 0xffff0000, v%d" % (b + 11, e2 + 1))
            for r in range(4):
                a.e("v_fma_f32 v%d, v%d, v%d, v%d" % (b + r, b + r, b + 4 + r, b + 8 + r))
            a.e("v_cvt_pk_bf16_f32 v%d, v%d, v%d" % (b + 12, b, b + 1))
            a.e("v_cvt_pk_bf16_f32 v%d, v%d, v%d" % (b + 13, b + 2, b + 3))
            a.e("buffer_store_dwordx2 %s, v14, s[56:59], 0 offen offset:%d" % (vr(b + 12, 2), ct * 32))
    a.e("s_endpgm")

def attention(a):
    O, S, K0, K1, V = 16, 32, 112, 148, 168
    srd(a, 28, 24, SZ_QK, WS_Q)
    srd(a, 32, 24, SZ_QK, WS_K)
    srd(a, 36, 24, SZ_V, WS_V)
    srd(a, 40, 24, SZ_O, WS_O)
    a.e("s_and_b32 s44, s2, 7")
    a.e("s_lshl_b32 s44, s44, 2")
    a.e("s_bfe_u32 s3, s2, 0x20003")
    a.e("s_add_u32 s44, s44, s3")
    a.e("s_lshr_b32 s45, s2, 5")
    a.e("s_lshl_b32 s45, s45, 3")
    a.e("s_sub_u32 s3, s26, 4")
    a.e("s_lshl_b32 s3, s3, 1")
    a.e("s_add_u32 s45, s45, s3")
    a.e("v_lshlrev_b32 v8, 4, v1")
    a.e("v_lshlrev_b32 v9, 3, v1")
    a.e("v_add_u32 v9, 1024, v9")
    a.e("v_mov_b32 v11, 0x%x" % OOB)
    a.e("v_cmp_gt_u32 vcc, 32, v1")
    a.nop(2)
    a.e("v_cndmask_b32 v9, v11, v9, vcc")
    a.e("v_and_b32 v12, 31, v1")
    a.e("v_cmp_ge_u32 vcc, 20, v12")
    a.nop(2)
    a.e("v_cndmask_b32 v10, v11, v8, vcc")
    a.e("v_lshrrev_b32 v13, 5, v1")
    a.e("v_lshlrev_b32 v14, 2, v13")
    a.e("v_sub_u32 v14, v12, v14")
    for r in range(16):
        c = (r & 3) + 8 * (r >> 2)
        a.e("v_cmp_le_i32 s[%d:%d], %d, v14" % (64 + 2 * r, 65 + 2 * r, c))
    a.e("v_mov_b32 v240, 0x%x" % NEG)
    a.e("v_mov_b32 v241, 0")
    a.e("s_mov_b32 s46, 0")
    a.label("AT_UNIT")
    a.e("s_lshl_b32 s47, s44, 6")
    a.e("s_add_u32 s48, s47, s45")
    a.e("s_mul_i32 s48, s48, 1280")
    a.e("buffer_load_dwordx4 v[4:7], v8, s[28:31], s48 offen")
    a.e("buffer_load_dwordx2 v[2:3], v9, s[28:31], s48 offen")
    for b in range(9):
        a.e("s_add_i32 s49, s45, %d" % (b - 8))
        a.e("s_max_i32 s49, s49, 0")
        a.e("s_add_u32 s49, s49, s47")
        a.e("s_mul_i32 s50, s49, 1280")
        a.e("buffer_load_dwordx4 %s, v8, s[32:35], s50 offen" % vr(K0 + 4 * b, 4))
        a.e("buffer_load_dwordx2 %s, v9, s[32:35], s50 offen" % vr(K1 + 2 * b, 2))
    for b in range(9):
        a.e("s_add_i32 s49, s45, %d" % (b - 8))
        a.e("s_max_i32 s49, s49, 0")
        a.e("s_add_u32 s49, s49, s47")
        a.e("s_lshl_b32 s50, s49, 11")
        a.e("buffer_load_dwordx4 %s, v10, s[36:39], s50 offen" % vr(V + 8 * b, 4))
        a.e("buffer_load_dwordx4 %s, v10, s[36:39], s50 offen offset:1024" % vr(V + 8 * b + 4, 4))
    for ch, blocks in enumerate(([0, 1, 2, 3, 4], [5, 6, 7, 8])):
        if ch == 0:
            for r in range(16):
                a.e("v_cndmask_b32 v%d, v241, v240, s[%d:%d]" % (S + r, 64 + 2 * r, 65 + 2 * r))
        else:
            for r in range(16):
                a.e("v_cndmask_b32 v%d, v240, v241, s[%d:%d]" % (S + 48 + r, 64 + 2 * r, 65 + 2 * r))
        for i, b in enumerate(blocks):
            sb = S + 16 * i
            a.e("s_waitcnt vmcnt(%d)" % ((8 - b) * 2 + 18))
            if b < 8:
                L1 = a.newlabel("AT_INV"); L2 = a.newlabel("AT_NXT")
                a.e("s_add_i32 s49, s45, %d" % (b - 8))
                a.e("s_cmp_lt_i32 s49, 0")
                a.e("s_cbranch_scc1 %s" % L1)
            c = vr(sb, 16) if b in (0, 8) else "0"
            a.e("v_mfma_f32_32x32x16_bf16 %s, %s, v[4:7], %s" % (vr(sb, 16), vr(K0 + 4 * b, 4), c))
            a.e("v_mfma_f32_32x32x8_bf16 %s, %s, v[2:3], %s" % (vr(sb, 16), vr(K1 + 2 * b, 2), vr(sb, 16)))
            if b < 8:
                a.e("s_branch %s" % L2)
                a.label(L1)
                for r in range(16):
                    a.e("v_mov_b32 v%d, v240" % (sb + r))
                a.label(L2)
        n = 16 * len(blocks)
        a.nop(12)
        a.e("v_max3_f32 v242, v%d, v%d, v%d" % (S, S + 1, S + 2))
        a.e("v_max3_f32 v244, v%d, v%d, v%d" % (S + 3, S + 4, S + 5))
        rr = list(range(6, n))
        tgl = 0
        while rr:
            d = 242 if tgl == 0 else 244
            if len(rr) >= 2:
                a.e("v_max3_f32 v%d, v%d, v%d, v%d" % (d, d, S + rr[0], S + rr[1])); rr = rr[2:]
            else:
                a.e("v_max_f32 v%d, v%d, v%d" % (d, d, S + rr[0])); rr = rr[1:]
            tgl ^= 1
        a.e("v_max_f32 v242, v242, v244")
        if ch == 1:
            a.e("v_max_f32 v242, v242, v243")
        a.e("v_mov_b32 v244, v242")
        a.nop(2)
        a.e("v_permlane32_swap_b32 v242, v244")
        a.nop(1)
        a.e("v_max_f32 v242, v242, v244")
        if ch == 1:
            a.e("v_sub_f32 v245, v243, v242")
            a.e("v_exp_f32 v245, v245")
            a.nop(1)
            for r in range(12):
                a.e("v_mul_f32 v%d, v245, v%d" % (O + r, O + r))
        a.e("v_mov_b32 v243, v242")
        for i, b in enumerate(blocks):
            sb = S + 16 * i
            for r in range(16):
                a.e("v_sub_f32 v%d, v%d, v242" % (sb + r, sb + r))
            for r in range(16):
                a.e("v_exp_f32 v%d, v%d" % (sb + r, sb + r))
            a.nop(1)
            for r in range(8):
                a.e("v_cvt_pk_bf16_f32 v%d, v%d, v%d" % (sb + r, sb + 2 * r, sb + 2 * r + 1))
            a.e("s_waitcnt vmcnt(%d)" % ((8 - b) * 2))
            a.nop(1)
            c = "0" if b == 0 else vr(O, 16)
            a.e("v_mfma_f32_32x32x16_bf16 %s, %s, %s, %s" % (vr(O, 16), vr(V + 8 * b, 4), vr(sb, 4), c))
            a.e("v_mfma_f32_32x32x16_bf16 %s, %s, %s, %s" % (vr(O, 16), vr(V + 8 * b + 4, 4), vr(sb + 4, 4), vr(O, 16)))
        if ch == 0: a.nop(12)
    a.nop(14)
    a.e("v_mov_b32 v244, v%d" % (O + 8))
    a.e("v_mov_b32 v245, v%d" % (O + 8))
    a.nop(2)
    a.e("v_permlane32_swap_b32 v244, v245")
    a.nop(1)
    a.e("v_rcp_f32 v245, v245")
    a.nop(1)
    for r in range(12):
        a.e("v_mul_f32 v%d, v245, v%d" % (O + r, O + r))
    for i in range(6):
        a.e("v_cvt_pk_bf16_f32 v%d, v%d, v%d" % (246 + i, O + 2 * i, O + 2 * i + 1))
    a.e("s_lshl_b32 s49, s45, 1")
    a.e("v_lshrrev_b32 v242, 4, v12")
    a.e("v_add_u32 v242, s49, v242")
    a.e("v_mul_u32_u24 v242, 20, v242")
    a.e("v_and_b32 v243, 15, v12")
    a.e("s_mul_i32 s49, s44, 5")
    for i in range(3):
        a.e("v_add_u32 v244, s49, v13")
        if i: a.e("v_add_u32 v244, %d, v244" % (2 * i))
        a.e("v_lshrrev_b32 v245, 3, v244")
        a.e("v_add_u32 v245, v242, v245")
        a.e("v_lshlrev_b32 v245, 10, v245")
        a.e("v_bfe_u32 v252, v244, 1, 2")
        a.e("v_lshl_add_u32 v252, v252, 4, v243")
        a.e("v_lshl_add_u32 v245, v252, 4, v245")
        a.e("v_and_b32 v252, 1, v244")
        a.e("v_lshl_add_u32 v245, v252, 3, v245")
        if i == 2:
            a.e("v_cmp_eq_u32 vcc, 0, v13")
            a.nop(2)
            a.e("v_cndmask_b32 v245, v11, v245, vcc")
        a.e("buffer_store_dwordx2 %s, v245, s[40:43], 0 offen" % vr(246 + 2 * i, 2))
    a.e("s_add_u32 s45, s45, 1")
    a.e("s_add_u32 s46, s46, 1")
    a.e("s_cmp_lt_u32 s46, 2")
    a.e("s_cbranch_scc1 AT_UNIT")
    a.e("s_barrier")
    a.e("s_endpgm")

def pre(a, name):
    a.e("s_cmp_ge_u32 s2, 256")
    a.e("s_cbranch_scc1 %s_END" % name)
    load_args(a)
    a.e("v_and_b32 v1, 63, v0")
    a.e("v_lshrrev_b32 v2, 6, v0")
    a.nop(1)
    a.e("v_readfirstlane_b32 s26, v2")
    a.e("s_waitcnt lgkmcnt(0)")

def gen_k2():
    a = Asm()
    pre(a, "K2")
    a.e("s_cmp_ge_u32 s26, 4")
    a.e("s_cbranch_scc1 K2_AT")
    gemm2(a, 'G')
    a.label("K2_AT")
    attention(a)
    a.label("K2_END")
    a.e("s_endpgm")
    return a.text()

def gen_k3():
    a = Asm()
    pre(a, "K3")
    gemm2(a, 'S')
    a.label("K3_END")
    a.e("s_endpgm")
    return a.text()

KERNELS = [("k2_kernel", 256, 512, 81920, gen_k2, 256), ("k3_kernel", 256, 256, 81920, gen_k3, 232)]
```

```python
import sys
sys.path.insert(0, 'gen')
from common import *
import k1
try:
    import k2
except ImportError:
    k2 = None
NAME = "recurrent_scan__sliding_block__dense_activation_squared_relu__prompt"
hdr = open('cdna_kernels/%s.s.ref' % NAME).read().split("; Override launch")[0]
out = hdr
kern = [("k1_kernel", 256, 256, k1.K1_LDS, k1.gen_k1, 256)]
if k2:
    kern += k2.KERNELS
for n, g, b, l, f, v in kern:
    out += "; @launch kernel=%s grid=(%d,1,1) block=(%d,1,1) lds=%d\n" % (n, g, b, l)
out += '.amdgcn_target "amdgcn-amd-amdhsa--gfx950"\n.text\n'
for n, g, b, l, f, v in kern:
    out += kernel_header(n) + f()
out += '.section .rodata,"a"\n'
for n, g, b, l, f, v in kern:
    out += ".p2align 6\n" + kernel_desc(n, v)
open('cdna_kernels/%s.s' % NAME, 'w').write(out)
print("lines", out.count("\n"))
```

```python
import os
class Asm:
    def __init__(self):
        self.lines = []
        self.vm = []
        self.lg = []
        self.uid = 0
    def e(self, s):
        self.lines.append("    " + s)
    def label(self, s):
        self.lines.append(s + ":")
    def c(self, s):
        self.lines.append("    ; " + s)
    def newlabel(self, p="L"):
        self.uid += 1
        return "%s_%d" % (p, self.uid)
    def vmem(self, s, tag):
        self.e(s); self.vm.append(tag)
    def lds(self, s, tag):
        if os.environ.get("NOLDS"): return
        self.e(s); self.lg.append(tag)
    def wait_vm(self, tags):
        if not isinstance(tags, (list, tuple, set)): tags = [tags]
        idx = -1
        for i, t in enumerate(self.vm):
            if t in tags: idx = i
        if idx < 0: return
        n = len(self.vm) - 1 - idx
        assert n <= 63, n
        self.e("s_waitcnt vmcnt(%d)" % n)
        self.vm = self.vm[idx + 1:]
    def wait_lg(self, tags):
        if not isinstance(tags, (list, tuple, set)): tags = [tags]
        idx = -1
        for i, t in enumerate(self.lg):
            if t in tags: idx = i
        if idx < 0: return
        n = min(len(self.lg) - 1 - idx, 15)
        self.e("s_waitcnt lgkmcnt(%d)" % n)
        self.lg = self.lg[len(self.lg) - n:] if n else []
    def wait_all(self):
        self.e("s_waitcnt vmcnt(0) lgkmcnt(0)")
        self.vm = []; self.lg = []
    def nop(self, n):
        while n > 0:
            k = min(n, 16)
            self.e("s_nop %d" % (k - 1))
            n -= k
    def text(self):
        return "\n".join(self.lines) + "\n"

def vr(b, n=1):
    return "v%d" % b if n == 1 else "v[%d:%d]" % (b, b + n - 1)
def sr(b, n=1):
    return "s%d" % b if n == 1 else "s[%d:%d]" % (b, b + n - 1)

WS_Q = 0x0000000
WS_K = 0x0400000
WS_V = 0x0800000
WS_H = 0x1000000
WS_O = 0x1800000
WS_G = 0x1C00000
SZ_QK = 32 * 64 * 1280
SZ_V = 32 * 64 * 2048
SZ_H = 128 * 48 * 1024
SZ_O = 128 * 20 * 1024
SZ_G = 256 * 4 * 5 * 64 * 8
OOB = 0x7F000000

def load_args(a):
    a.e("s_load_dwordx16 s[4:19], s[0:1], 0")
    a.e("s_load_dwordx4 s[20:23], s[0:1], 64")
    a.e("s_load_dwordx2 s[24:25], s[0:1], 80")

def srd(a, d, base, size, off=0):
    if off:
        a.e("s_add_u32 s%d, s%d, 0x%x" % (d, base, off))
        a.e("s_addc_u32 s%d, s%d, 0" % (d + 1, base + 1))
    else:
        a.e("s_mov_b32 s%d, s%d" % (d, base))
        a.e("s_mov_b32 s%d, s%d" % (d + 1, base + 1))
    a.e("s_mov_b32 s%d, 0x%x" % (d + 2, size))
    a.e("s_mov_b32 s%d, 0x00020000" % (d + 3))

def kernel_header(name):
    return (".globl %s\n.p2align 8\n.type %s,@function\n%s:\n" % (name, name, name))

def kernel_desc(name, vgpr, sgpr=102, accum=None):
    if accum is None: accum = (vgpr + 3) // 4 * 4
    return (".amdhsa_kernel %s\n  .amdhsa_next_free_vgpr %d\n  .amdhsa_next_free_sgpr %d\n"
            "  .amdhsa_accum_offset %d\n  .amdhsa_group_segment_fixed_size 0\n  .amdhsa_kernarg_size 88\n"
            "  .amdhsa_user_sgpr_count 2\n  .amdhsa_user_sgpr_kernarg_segment_ptr 1\n"
            "  .amdhsa_system_sgpr_workgroup_id_x 1\n.end_amdhsa_kernel\n") % (name, vgpr, sgpr, accum)

import os
STAMPS = os.environ.get("STAMPS", "0") in ("1", "2")
RT = os.environ.get("STAMPS", "0") == "2"
SB = [80]
def stamp(a, i):
    if not STAMPS: return
    a.e("%s s[%d:%d]" % ("s_memrealtime" if RT else "s_memtime", SB[0] + 2 * i, SB[0] + 1 + 2 * i))
    a.e("s_waitcnt lgkmcnt(0)")
def stamp_flush(a, n, kid, waves):
    if not STAMPS: return
    srd(a, 76, 24, 0x100000, 0x2000000 + kid * 0x40000)
    a.e("s_mul_i32 s3, s2, %d" % waves)
    a.e("s_add_u32 s3, s3, s26")
    a.e("s_lshl_b32 s3, s3, 7")
    a.e("v_mov_b32 v4, s3")
    for i in range(n):
        a.e("v_mov_b32 v2, s%d" % (SB[0] + 2 * i))
        a.e("v_mov_b32 v3, s%d" % (SB[0] + 1 + 2 * i))
        a.e("buffer_store_dwordx2 v[2:3], v4, s[76:79], 0 offen offset:%d" % (i * 8))
        a.nop(2)
WS_W2F = 0x2400000
WS_WOF = 0x2800000
SZ_W2F = 48 * 40 * 1024
SZ_WOF = 20 * 40 * 1024
SZ_QK = 32 * 64 * 1280
```

```python
from common import *
import struct
def f2u(x): return struct.unpack("<I", struct.pack("<f", x))[0]

V_DMA = 16
V_XD = 8
V_XA = 24
V_TR = 26
V_CUR, V_NXT = 27, 12
V_XC0, V_XC1, V_XN0 = 13, 14, 15
V_ONE = 28
V_XR = 32
V_AD = 48
V_WF = 64
V_RS = 88
V_GR = 96
V_CS = 104
V_ACC = 120
V_B1 = 216
SLOT = 47104
XOFF = 30720
LDS_CS = 3 * SLOT
LDS_ST = LDS_CS + 1024
LDS_RP = LDS_CS + 2048
K1_LDS = LDS_RP + 16384
KBLK = 1536

def k1_setup(a, typ):
    if typ == 'Q':
        CPR, NCH, MUL, RB, RS = 30, 30, 2185, 3840, 480
        srd(a, 32, 6, 640 * 3840)
        a.e("s_mul_i32 s38, s37, 480")
        srd(a, 48, 24, 0xC00000, 0)
    else:
        CPR, NCH, MUL, RB, RS = 26, 24, 2521, 3072, 416
        srd(a, 32, 12, 640 * 3072)
        a.e("s_sub_u32 s39, s37, 8")
        a.e("s_mul_i32 s38, s39, 384")
        srd(a, 48, 24, SZ_H, WS_H)
        srd(a, 52, 14, 1536 * 2)
    a.e("s_lshl_b32 s41, s26, 6")
    a.e("s_mov_b32 s46, %d" % RB)
    for i in range(8):
        d = V_DMA + i
        a.e("v_add_u32 v2, s41, v1")
        if i: a.e("v_add_u32 v2, %d, v2" % (256 * i))
        a.e("v_mul_u32_u24 v3, %d, v2" % MUL)
        a.e("v_lshrrev_b32 v3, 16, v3")
        a.e("v_mul_u32_u24 v4, %d, v3" % CPR)
        a.e("v_sub_u32 v4, v2, v4")
        a.e("v_and_b32 v5, 35, v3")
        a.e("v_bfe_u32 v6, v3, 4, 1")
        a.e("v_lshl_or_b32 v5, v6, 2, v5")
        a.e("v_bfe_u32 v6, v3, 2, 2")
        a.e("v_lshl_or_b32 v5, v6, 3, v5")
        a.e("v_mul_lo_u32 v5, v5, s46")
        a.e("v_min_u32 v4, %d, v4" % (NCH - 1))
        a.e("v_lshl_add_u32 v5, v4, 4, v5")
        a.e("v_add_u32 v%d, s38, v5" % d)
    a.e("v_bfe_u32 v2, v1, 2, 4")
    a.e("v_mul_u32_u24 v2, %d, v2" % RS)
    a.e("v_and_b32 v3, 3, v1")
    a.e("v_lshl_add_u32 v%d, v3, 3, v2" % V_TR)
    a.e("s_mul_i32 s47, s46, 64")
    return RB, RS

def nW(typ, w):
    n = 30 if typ == 'Q' else 26
    return [i for i in range(8) if w + 4 * i < n]

def issue_x(a, c_imm=None):
    for j in range(4):
        a.e("s_add_u32 m0, s42, %d" % (j * 1024))
        a.nop(1)
        a.e("buffer_load_dwordx4 v%d, s[28:31], s44 offen lds" % (V_XD + j))

def k1_prologue(a, typ, RB):
    stamp(a, 1)
    n = 30 if typ == 'Q' else 26
    a.e("s_lshl_b32 s41, s26, 10")
    for c in range(3):
        a.e("s_mul_i32 s43, s47, %d" % c)
        for i in range(8):
            lab = None
            if 4 * i >= n: continue
            if 4 * i + 3 >= n:
                lab = a.newlabel("K1_SK")
                a.e("s_cmp_ge_u32 s26, %d" % (n - 4 * i))
                a.e("s_cbranch_scc1 %s" % lab)
            a.e("s_add_u32 m0, s41, %d" % (c * SLOT + i * 4096))
            a.nop(1)
            a.e("buffer_load_dwordx4 v%d, s[32:35], s43 offen lds" % (V_DMA + i))
            if lab: a.label(lab)
    a.e("s_lshr_b32 s60, s2, 3")
    a.e("v_and_b32 v2, 31, v1")
    a.e("v_lshrrev_b32 v3, 5, v1")
    a.e("s_and_b32 s61, s27, 1")
    a.e("s_lshl_b32 s61, s61, 10")
    a.e("s_lshl_b32 s62, s60, 5")
    a.e("s_add_u32 s61, s61, s62")
    a.e("v_add_u32 v4, s61, v2")
    a.e("v_mul_u32_u24 v4, 1280, v4")
    a.e("s_lshl_b32 s62, s26, 1")
    a.e("s_add_u32 s62, s62, 3")
    a.e("v_add_u32 v5, s62, v3")
    a.e("v_lshl_add_u32 v4, v5, 7, v4")
    a.e("buffer_load_dword v240, v4, s[28:31], 0 offen")
    LPR = 15 if typ == 'Q' else 12
    a.e("s_mul_i32 s61, s60, %d" % (2 * LPR))
    a.e("v_min_u32 v2, %d, v2" % (2 * LPR - 1))
    a.e("v_add_u32 v4, s61, v2")
    a.e("v_mul_u32_u24 v6, %d, v4" % (4370 if LPR == 15 else 5462))
    a.e("v_lshrrev_b32 v6, 16, v6")
    a.e("v_mul_u32_u24 v7, %d, v6" % LPR)
    a.e("v_sub_u32 v7, v4, v7")
    a.e("v_lshl_add_u32 v6, v5, 6, v6")
    a.e("v_mul_lo_u32 v6, v6, s46")
    a.e("v_lshl_add_u32 v6, v7, 7, v6")
    a.e("s_lshr_b32 s61, s27, 1")
    a.e("s_and_b32 s61, s61, 1")
    a.e("s_mul_i32 s61, s61, %d" % (LPR * 128))
    a.e("v_add_u32 v6, s61, v6")
    a.e("buffer_load_dword v241, v6, s[32:35], 0 offen")

def k1_common_init(a, typ):
    for r in range(V_RS, 240 if typ == 'Q' else 216):
        a.e("v_mov_b32 v%d, 0" % r)
    for r in range(4):
        a.e("v_mov_b32 v%d, 0x3f803f80" % (V_ONE + r))

def k1_addr(a, isv):
    a.e("v_and_b32 v2, 15, v1")
    a.e("v_lshrrev_b32 v3, 4, v1")
    a.e("s_mul_i32 s60, s37, 15")
    for p in range(15):
        d = V_AD + p
        a.e("s_add_u32 s61, s60, %d" % p)
        if not isv[p]:
            a.e("s_cmp_ge_u32 s61, 40")
            a.e("s_cselect_b32 s62, 40, 0")
            a.e("s_cselect_b32 s63, 0x%x, 0" % WS_K)
            a.e("s_sub_u32 s61, s61, s62")
            a.e("s_lshl_b32 s61, s61, 2")
            a.e("s_mul_i32 s65, s59, %d" % KBLK)
            a.e("s_add_u32 s63, s63, s65")
            a.e("v_add_u32 v4, s61, v3")
            a.e("v_mul_u32_u24 v5, 205, v4")
            a.e("v_lshrrev_b32 v5, 10, v5")
            a.e("v_mul_u32_u24 v6, 5, v5")
            a.e("v_sub_u32 v6, v4, v6")
            a.e("v_lshrrev_b32 v7, 1, v6")
            a.e("v_lshlrev_b32 v7, 9, v7")
            a.e("v_and_b32 v6, 1, v6")
            a.e("v_lshl_or_b32 v7, v6, 3, v7")
            a.e("v_lshl_add_u32 v7, v2, 4, v7")
            a.e("s_mov_b32 s65, %d" % (64 * KBLK))
            a.e("v_mul_lo_u32 v5, v5, s65")
            a.e("v_add3_u32 v%d, v5, v7, s63" % d)
        else:
            a.e("s_sub_u32 s61, s61, 80")
            a.e("s_lshl_b32 s61, s61, 4")
            a.e("s_lshl_b32 s63, s59, 11")
            a.e("s_add_u32 s63, s63, 0x%x" % WS_V)
            a.e("v_add_u32 v4, s61, v2")
            a.e("v_mul_u32_u24 v5, 3277, v4")
            a.e("v_lshrrev_b32 v5, 16, v5")
            a.e("v_mul_u32_u24 v6, 20, v5")
            a.e("v_sub_u32 v6, v4, v6")
            a.e("v_and_b32 v7, 1, v3")
            a.e("v_lshl_add_u32 v7, v7, 5, v6")
            a.e("v_lshlrev_b32 v7, 4, v7")
            a.e("v_lshrrev_b32 v6, 1, v3")
            a.e("v_lshl_add_u32 v7, v6, 3, v7")
            a.e("v_lshlrev_b32 v5, 17, v5")
            a.e("v_add3_u32 v%d, v5, v7, s63" % d)

def repack(a, phase):
    pass

def k1_loop(a, typ, T, isv, w, RS, lbl):
    NR = 5 if T == 15 else 6
    D = NR - 1
    Wi = nW(typ, w)
    def slotregs(cur_s, nxt_s):
        a.e("v_add_u32 v%d, %s, v%d" % (V_CUR, cur_s, V_TR))
        a.e("v_add_u32 v%d, %s, v%d" % (V_NXT, nxt_s, V_TR))
        a.e("v_add_u32 v%d, %s, v%d" % (V_XC0, cur_s, V_XA))
        a.e("v_add_u32 v%d, %s, v%d" % (V_XC1, cur_s, V_XA + 1))
        a.e("v_add_u32 v%d, %s, v%d" % (V_XN0, nxt_s, V_XA))
    a.e("s_mov_b32 s70, 0"); a.e("s_mov_b32 s71, %d" % SLOT); a.e("s_mov_b32 s72, %d" % (2 * SLOT))
    slotregs("s70", "s71")
    a.e("s_waitcnt vmcnt(0)")
    a.e("s_barrier")
    stamp(a, 2)
    a.e("ds_read_b128 %s, v%d" % (vr(V_XR, 4), V_XC0))
    a.e("ds_read_b128 %s, v%d offset:2048" % (vr(V_XR + 4, 4), V_XC0))
    for p in range(D):
        f = V_WF + (p % NR) * 4
        a.e("ds_read_b64_tr_b16 %s, v%d offset:%d" % (vr(f, 2), V_CUR, p * 32))
        a.e("ds_read_b64_tr_b16 %s, v%d offset:%d" % (vr(f + 2, 2), V_CUR, p * 32 + 16 * RS))
    a.e("s_mov_b32 s45, 0")
    a.label(lbl)
    for ks in range(2):
        xs = V_XR + ks * 8
        xn = V_XR + (1 - ks) * 8
        if ks == 0:
            a.e("s_add_u32 s42, s72, s41")
            a.e("s_add_u32 s73, s72, s74")
        for p in range(T):
            f = V_WF + (p % NR) * 4
            a.e("s_waitcnt lgkmcnt(%d)" % ((D - 1) * 2 if p > 0 else min((D - 1) * 2, 0) if False else (D - 1) * 2))
            acc0 = V_ACC + p * 8
            dm = None
            if ks == 0 and p >= 1 and p - 1 < len(Wi):
                i = Wi[p - 1]
                a.e("s_add_u32 m0, s42, %d" % (i * 4096)); dm = "buffer_load_dwordx4 v%d, s[32:35], s43 offen lds" % (V_DMA + i)
            if ks == 0 and p >= 9 and p - 9 < 4:
                j = p - 9
                a.e("s_add_u32 m0, s73, %d" % (j * 1024)); dm = "buffer_load_dwordx4 v%d, s[28:31], s44 offen lds" % (V_XD + j)
            if ks == 1 and T == 12 and p == 1:
                a.e("s_add_u32 m0, s73, %d" % (3 * 1024)); dm = "buffer_load_dwordx4 v%d, s[28:31], s44 offen lds" % (V_XD + 3)
            for rt in range(2):
                acc = acc0 + rt * 4
                x = xs + rt * 4
                if isv[p]:
                    a.e("v_mfma_f32_16x16x32_bf16 %s, %s, %s, %s" % (vr(acc, 4), vr(x, 4), vr(f, 4), vr(acc, 4)))
                else:
                    a.e("v_mfma_f32_16x16x32_bf16 %s, %s, %s, %s" % (vr(acc, 4), vr(f, 4), vr(x, 4), vr(acc, 4)))
                q = p + D
                if q < T: base, kk, tt = V_CUR, ks, q
                elif ks == 0: base, kk, tt = V_CUR, 1, q - T
                else: base, kk, tt = V_NXT, 0, q - T
                ff = V_WF + (q % NR) * 4
                off = (32 * kk) * RS + tt * 32 + rt * 16 * RS
                a.e("ds_read_b64_tr_b16 %s, v%d offset:%d" % (vr(ff + 2 * rt, 2), base, off))
            if dm: a.e(dm)
            if p % 4 == w:
                cs = V_CS + (p // 4) * 4
                a.e("v_mfma_f32_16x16x32_bf16 %s, %s, %s, %s" % (vr(cs, 4), vr(f, 4), vr(V_ONE, 4), vr(cs, 4)))
            if p in (5, 7):
                rt = (p - 5) // 2
                x = xs + rt * 4
                a.e("v_mfma_f32_16x16x32_bf16 %s, %s, %s, %s" % (vr(V_RS + rt * 4, 4), vr(V_ONE, 4), vr(x, 4), vr(V_RS + rt * 4, 4)))
            if p in (6, 8):
                rt = (p - 6) // 2
                x = xs + rt * 4
                a.e("v_mfma_f32_16x16x32_bf16 %s, %s, %s, %s" % (vr(V_GR + rt * 4, 4), vr(x, 4), vr(x, 4), vr(V_GR + rt * 4, 4)))
            if p == T - D - 1:
                xb = V_XC1 if ks == 0 else V_XN0
                a.e("ds_read_b128 %s, v%d" % (vr(xn, 4), xb))
                a.e("ds_read_b128 %s, v%d offset:2048" % (vr(xn + 4, 4), xb))
    a.e("s_add_u32 s43, s43, s47")
    a.e("s_add_u32 s44, s44, 128")
    a.e("s_min_u32 s44, s44, %d" % (9 * 128))
    a.e("s_mov_b32 s75, s70"); a.e("s_mov_b32 s70, s71"); a.e("s_mov_b32 s71, s72"); a.e("s_mov_b32 s72, s75")
    slotregs("s70", "s71")
    a.e("s_waitcnt vmcnt(0)")
    a.e("s_barrier")
    a.e("s_add_u32 s45, s45, 1")
    a.e("s_cmp_lt_u32 s45, 10")
    a.e("s_cbranch_scc1 %s" % lbl)

def k1_stats(a, T, w):
    stamp(a, 3)
    a.e("s_waitcnt vmcnt(0) lgkmcnt(0)")
    a.nop(10)
    a.e("v_and_b32 v2, 15, v1")
    a.e("v_lshrrev_b32 v3, 4, v1")
    a.e("v_lshlrev_b32 v4, 4, v3")
    a.e("v_add_u32 v4, %d, v4" % LDS_CS)
    a.e("v_cmp_eq_u32 vcc, 0, v2")
    a.e("s_and_saveexec_b64 s[56:57], vcc")
    for q in range(4):
        p = 4 * q + w
        if p < T:
            a.e("ds_write_b128 v4, %s offset:%d" % (vr(V_CS + q * 4, 4), p * 64))
    a.e("s_mov_b64 exec, s[56:57]")
    a.e("v_and_b32 v5, 3, v2")
    a.e("v_lshrrev_b32 v6, 2, v2")
    a.e("v_lshlrev_b32 v7, 3, v2")
    a.e("v_add_u32 v7, s58, v7")
    for r in range(1, 4):
        a.e("v_cmp_eq_u32 s[%d:%d], %d, v5" % (60 + 2 * r, 61 + 2 * r, r))
    a.e("v_cmp_eq_u32 vcc, v6, v3")
    a.e("s_and_saveexec_b64 s[56:57], vcc")
    for rt in range(2):
        g = V_GR + rt * 4
        a.e("v_mov_b32 v8, v%d" % g)
        for r in range(1, 4):
            a.e("v_cndmask_b32 v8, v8, v%d, s[%d:%d]" % (g + r, 60 + 2 * r, 61 + 2 * r))
        a.e("v_mul_f32 v9, 0x%x, v%d" % (f2u(1.0 / 640), V_RS + rt * 4))
        a.e("v_mul_f32 v8, 0x%x, v8" % f2u(1.0 / 640))
        a.e("v_fma_f32 v8, -v9, v9, v8")
        a.e("v_max_f32 v8, 0, v8")
        a.e("v_add_f32 v8, 0x%x, v8" % f2u(1e-5))
        a.e("v_rsq_f32 v10, v8")
        a.nop(1)
        a.e("v_mul_f32 v11, v9, v10")
        a.e("v_sub_f32 v11, 0, v11")
        a.e("ds_write_b64 v7, v[10:11] offset:%d" % (rt * 128))
        a.nop(1)
    a.e("s_mov_b64 exec, s[56:57]")
    a.e("s_waitcnt lgkmcnt(0)")
    a.e("s_barrier")
    stamp(a, 4)

def k1_epi_q(a, isv):
    hasq = not all(isv); hasv = any(isv)
    if hasq:
        a.e("v_lshlrev_b32 v7, 3, v2")
        a.e("v_add_u32 v7, s58, v7")
        a.e("ds_read_b64 v[32:33], v7")
        a.e("ds_read_b64 v[34:35], v7 offset:128")
    if hasv:
        a.e("v_lshlrev_b32 v7, 5, v3")
        a.e("v_add_u32 v7, s58, v7")
        a.e("ds_read_b128 v[8:11], v7")
        a.e("ds_read_b128 v[12:15], v7 offset:16")
        a.e("ds_read_b128 v[16:19], v7 offset:128")
        a.e("ds_read_b128 v[20:23], v7 offset:144")
    a.e("v_lshlrev_b32 v4, 4, v3")
    a.e("v_add_u32 v4, %d, v4" % LDS_CS)
    a.e("v_lshlrev_b32 v5, 2, v2")
    a.e("v_add_u32 v5, %d, v5" % LDS_CS)
    a.e("v_mov_b32 v36, 0x3f803f80")
    a.e("v_mov_b32 v37, 0x3f803f80")
    n = len(isv)
    def rd(p):
        tb = 64 + (p % 3) * 8
        if not isv[p]: a.e("ds_read_b128 %s, v4 offset:%d" % (vr(tb, 4), p * 64))
        else: a.e("ds_read_b32 v%d, v5 offset:%d" % (tb, p * 64))
    rd(0); rd(1)
    for p in range(n):
        acc0 = V_ACC + p * 8
        tb = 64 + (p % 3) * 8
        if p + 2 < n: rd(p + 2)
        a.e("s_waitcnt lgkmcnt(%d)" % min(2, n - 1 - p))
        for rt in range(2):
            t = 40 + rt * 4
            if not isv[p]:
                a.e("v_pk_mul_f32 %s, %s, v[32:33] op_sel:[0,1] op_sel_hi:[1,1]" % (vr(t, 2), vr(tb, 2)) if False else "v_mul_f32 v%d, v%d, v%d" % (t, 33 + rt * 2, tb))
                for r in range(1, 4):
                    a.e("v_mul_f32 v%d, v%d, v%d" % (t + r, 33 + rt * 2, tb + r))
                for r in range(4):
                    a.e("v_fma_f32 v%d, v%d, v%d, v%d" % (t + r, acc0 + rt * 4 + r, 32 + rt * 2, t + r))
            else:
                sb = 8 + rt * 8
                for r in range(4):
                    a.e("v_mul_f32 v%d, v%d, v%d" % (t + r, sb + 2 * r + 1, tb))
                for r in range(4):
                    a.e("v_fma_f32 v%d, v%d, v%d, v%d" % (t + r, acc0 + rt * 4 + r, sb + 2 * r, t + r))
            o = tb + 4 + rt * 2
            a.e("v_cvt_pk_bf16_f32 v%d, v%d, v%d" % (o, t, t + 1))
            a.e("v_cvt_pk_bf16_f32 v%d, v%d, v%d" % (o + 1, t + 2, t + 3))
            a.e("buffer_store_dwordx2 %s, v%d, s[48:51], 0 offen offset:%d" % (vr(o, 2), V_AD + p, rt * (1024 if isv[p] else 256)))
        if isv[p]:
            a.e("v_bfe_u32 v38, v%d, 4, 5" % (V_AD + p))
            a.e("v_cmp_eq_u32 vcc, 0, v38")
            a.e("s_and_saveexec_b64 s[66:67], vcc")
            a.e("buffer_store_dwordx2 v[36:37], v%d, s[48:51], 0 offen offset:320" % (V_AD + p))
            a.e("buffer_store_dwordx2 v[36:37], v%d, s[48:51], 0 offen offset:1344" % (V_AD + p))
            a.e("s_mov_b64 exec, s[66:67]")

def k1_epi_h(a):
    a.e("v_lshlrev_b32 v7, 3, v2")
    a.e("v_add_u32 v7, s58, v7")
    a.e("ds_read_b64 v[32:33], v7")
    a.e("ds_read_b64 v[34:35], v7 offset:128")
    a.e("v_lshlrev_b32 v4, 4, v3")
    a.e("v_add_u32 v4, %d, v4" % LDS_CS)
    a.e("s_lshl_b32 s60, s59, 1")
    a.e("s_mul_i32 s60, s60, 48")
    a.e("s_mul_i32 s61, s39, 6")
    a.e("s_add_u32 s60, s60, s61")
    a.e("s_lshl_b32 s60, s60, 10")
    a.e("v_lshlrev_b32 v6, 4, v1")
    a.e("v_add_u32 v6, s60, v6")
    a.e("v_add_u32 v7, %d, v6" % (48 * 1024))
    for i in range(6):
        tb = 64 + (i % 2) * 16
        if i == 4:
            a.e("v_add_u32 v6, 0x1000, v6")
            a.e("v_add_u32 v7, 0x1000, v7")
        a.e("ds_read_b128 %s, v4 offset:%d" % (vr(tb, 4), (2 * i) * 64))
        a.e("ds_read_b128 %s, v4 offset:%d" % (vr(tb + 4, 4), (2 * i + 1) * 64))
        for t in range(2):
            b = V_B1 + (2 * i + t) * 2
            a.e("v_lshlrev_b32 v%d, 16, v%d" % (36 + t * 4, b))
            a.e("v_and_b32 v%d, 0xffff0000, v%d" % (37 + t * 4, b))
            a.e("v_lshlrev_b32 v%d, 16, v%d" % (38 + t * 4, b + 1))
            a.e("v_and_b32 v%d, 0xffff0000, v%d" % (39 + t * 4, b + 1))
        a.e("s_waitcnt lgkmcnt(0)")
        for rt in range(2):
            for t in range(2):
                acc = V_ACC + (2 * i + t) * 8 + rt * 4
                for r in range(4):
                    a.e("v_fma_f32 v%d, v%d, v%d, v%d" % (44 + t * 4 + r, 33 + rt * 2, tb + t * 4 + r, 36 + t * 4 + r))
                for r in range(4):
                    a.e("v_fma_f32 v%d, v%d, v%d, v%d" % (44 + t * 4 + r, acc + r, 32 + rt * 2, 44 + t * 4 + r))
                for r in range(4):
                    a.e("v_max_f32 v%d, 0, v%d" % (44 + t * 4 + r, 44 + t * 4 + r))
                for r in range(4):
                    a.e("v_mul_f32 v%d, v%d, v%d" % (44 + t * 4 + r, 44 + t * 4 + r, 44 + t * 4 + r))
            o = tb + 8 + rt * 4
            for q in range(4):
                a.e("v_cvt_pk_bf16_f32 v%d, v%d, v%d" % (o + q, 44 + 2 * q, 45 + 2 * q))
            a.e("buffer_store_dwordx4 %s, v%d, s[48:51], 0 offen offset:%d" % (vr(o, 4), 6 + rt, (i % 4) * 1024))

def repack_unit(a, second):
    L = a.newlabel("K1_RP")
    a.e("s_cmp_ge_u32 s66, 680")
    a.e("s_cbranch_scc1 %s" % L)
    a.e("s_cmp_ge_u32 s66, 480")
    LW = a.newlabel("K1_RPW"); LJ = a.newlabel("K1_RPJ")
    a.e("s_cbranch_scc1 %s" % LW)
    srd(a, 84, 16, 1536 * 1280)
    srd(a, 88, 24, SZ_W2F, WS_W2F)
    a.e("s_mov_b32 s68, s66")
    a.e("v_lshrrev_b32 v2, 3, v1")
    a.e("s_branch %s" % LJ)
    a.label(LW)
    srd(a, 84, 8, 640 * 1280)
    srd(a, 88, 24, SZ_WOF, WS_WOF)
    a.e("s_sub_u32 s68, s66, 480")
    a.e("v_lshrrev_b32 v2, 3, v1")
    a.label(LJ)
    a.e("s_mul_i32 s69, s68, 6554")
    a.e("s_lshr_b32 s69, s69, 16")
    a.e("s_mul_i32 s76, s69, 10")
    a.e("s_sub_u32 s76, s68, s76")
    a.e("s_mul_i32 s77, s69, 40960")
    a.e("s_lshl_b32 s78, s76, 7")
    a.e("s_add_u32 s77, s77, s78")
    a.e("v_and_b32 v3, 7, v1")
    for j in range(4):
        a.e("v_add_u32 v4, %d, v2" % (8 * j))
        a.e("v_and_b32 v5, 3, v4")
        a.e("v_bfe_u32 v6, v4, 4, 1")
        a.e("v_lshl_or_b32 v5, v6, 2, v5")
        a.e("v_bfe_u32 v6, v4, 2, 2")
        a.e("v_lshl_or_b32 v5, v6, 3, v5")
        a.e("s_cmp_ge_u32 s66, 480")
        a.e("s_cselect_b64 vcc, -1, 0")
        a.nop(1)
        a.e("v_cndmask_b32 v4, v4, v5, vcc")
        a.e("v_mul_u32_u24 v4, 1280, v4")
        a.e("v_lshl_add_u32 v4, v3, 4, v4")
        a.e("s_add_u32 m0, s67, %d" % (j * 1024))
        a.nop(1)
        a.e("buffer_load_dwordx4 v4, s[84:87], s77 offen lds")
    a.e("v_bfe_u32 v2, v1, 2, 4")
    a.e("v_lshlrev_b32 v2, 7, v2")
    a.e("v_and_b32 v3, 3, v1")
    a.e("v_lshl_add_u32 v2, v3, 3, v2")
    a.e("v_add_u32 v2, s67, v2")
    a.e("s_waitcnt vmcnt(0)")
    for ct in range(4):
        a.e("ds_read_b64_tr_b16 %s, v2 offset:%d" % (vr(64 + ct * 4, 2), ct * 32))
        a.e("ds_read_b64_tr_b16 %s, v2 offset:%d" % (vr(66 + ct * 4, 2), ct * 32 + 2048))
    a.e("s_mul_i32 s77, s69, 40")
    a.e("s_lshl_b32 s78, s76, 2")
    a.e("s_add_u32 s77, s77, s78")
    a.e("s_lshl_b32 s77, s77, 10")
    a.e("v_lshlrev_b32 v3, 4, v1")
    a.e("s_waitcnt lgkmcnt(0)")
    for ct in range(4):
        a.e("buffer_store_dwordx4 %s, v3, s[88:91], s77 offen offset:%d" % (vr(64 + ct * 4, 4), ct * 1024))
    a.label(L)

def gen_k1():
    a = Asm()
    a.e("s_cmp_ge_u32 s2, 256")
    a.e("s_cbranch_scc1 K1_END")
    load_args(a)
    a.e("v_and_b32 v1, 63, v0")
    a.e("v_lshrrev_b32 v2, 6, v0")
    a.nop(1)
    a.e("v_readfirstlane_b32 s26, v2")
    a.e("s_and_b32 s27, s2, 7")
    a.e("s_lshr_b32 s3, s2, 3")
    a.e("s_and_b32 s36, s27, 1")
    a.e("s_lshl_b32 s36, s36, 3")
    a.e("s_and_b32 s37, s3, 7")
    a.e("s_add_u32 s36, s36, s37")
    a.e("s_lshr_b32 s37, s27, 1")
    a.e("s_lshl_b32 s37, s37, 2")
    a.e("s_lshr_b32 s3, s3, 3")
    a.e("s_add_u32 s37, s37, s3")
    a.e("s_lshl_b32 s59, s36, 2")
    a.e("s_add_u32 s59, s59, s26")
    a.e("s_lshl_b32 s58, s26, 8")
    a.e("s_add_u32 s58, s58, %d" % LDS_ST)
    a.e("v_lshrrev_b32 v2, 3, v1")
    a.e("v_and_b32 v3, 7, v1")
    a.e("s_lshl_b32 s3, s59, 5")
    for j in range(4):
        a.e("v_add_u32 v4, %d, v2" % (8 * j))
        a.e("v_bfe_u32 v5, v4, 1, 3")
        a.e("v_xor_b32 v5, v3, v5")
        a.e("v_add_u32 v4, s3, v4")
        a.e("v_mul_u32_u24 v4, 1280, v4")
        a.e("v_lshl_add_u32 v%d, v5, 4, v4" % (V_XD + j))
    a.e("v_and_b32 v2, 15, v1")
    a.e("v_lshrrev_b32 v3, 4, v1")
    a.e("v_lshrrev_b32 v4, 1, v2")
    a.e("v_xor_b32 v4, v3, v4")
    a.e("v_xor_b32 v5, 4, v4")
    a.e("s_lshl_b32 s3, s26, 12")
    a.e("s_add_u32 s74, s3, %d" % XOFF)
    a.e("v_lshlrev_b32 v2, 7, v2")
    a.e("v_add_u32 v2, s74, v2")
    a.e("v_lshl_add_u32 v%d, v4, 4, v2" % V_XA)
    a.e("v_lshl_add_u32 v%d, v5, 4, v2" % (V_XA + 1))
    a.e("s_waitcnt lgkmcnt(0)")
    stamp(a, 0)
    srd(a, 28, 4, 2048 * 1280)
    for c in range(3):
        a.e("s_add_u32 s42, s74, %d" % (c * SLOT))
        a.e("s_movk_i32 s44, %d" % (c * 128))
        issue_x(a)
    a.e("s_cmp_ge_u32 s37, 8")
    a.e("s_cbranch_scc1 K1_H")
    RB, RS = k1_setup(a, 'Q')
    k1_prologue(a, 'Q', RB)
    k1_common_init(a, 'Q')
    a.e("s_mul_i32 s43, s47, 2")
    variants = {"A": [False] * 15, "B": [False] * 5 + [True] * 10, "C": [True] * 15}
    a.e("s_cmp_eq_u32 s37, 5")
    a.e("s_cbranch_scc1 K1_VB")
    a.e("s_cmp_gt_u32 s37, 5")
    a.e("s_cbranch_scc1 K1_VC")
    for vn in "ABC":
        a.label("K1_V%s" % vn)
        k1_addr(a, variants[vn])
        for w in range(1, 4):
            a.e("s_cmp_eq_u32 s26, %d" % w)
            a.e("s_cbranch_scc1 K1_V%s_W%d" % (vn, w))
        for w in range(4):
            a.label("K1_V%s_W%d" % (vn, w))
            k1_loop(a, 'Q', 15, variants[vn], w, RS, "K1_L%s%d" % (vn, w))
            k1_stats(a, 15, w)
            a.e("s_branch K1_E%s" % vn)
        a.label("K1_E%s" % vn)
        k1_epi_q(a, variants[vn])
        stamp(a, 5)
        if STAMPS: a.e("s_waitcnt vmcnt(0)")
        stamp(a, 6)
        stamp_flush(a, 7, 0, 4)
        a.e("s_endpgm")
    a.label("K1_H")
    RB, RS = k1_setup(a, 'H')
    a.e("v_lshrrev_b32 v2, 4, v1")
    a.e("v_lshlrev_b32 v2, 3, v2")
    a.e("v_add_u32 v2, s38, v2")
    for p in range(12):
        a.e("buffer_load_dwordx2 %s, v2, s[52:55], 0 offen offset:%d" % (vr(V_B1 + 2 * p, 2), p * 32))
    k1_prologue(a, 'H', RB)
    k1_common_init(a, 'H')
    a.e("s_mul_i32 s43, s47, 2")
    a.e("s_lshl_b32 s66, s36, 3")
    a.e("s_add_u32 s66, s66, s39")
    a.e("s_lshl_b32 s66, s66, 2")
    a.e("s_add_u32 s66, s66, s26")
    a.e("s_lshl_b32 s67, s26, 12")
    a.e("s_add_u32 s67, s67, %d" % LDS_RP)
    repack_unit(a, False)
    a.e("s_add_u32 s66, s66, 512")
    repack_unit(a, True)
    for w in range(1, 4):
        a.e("s_cmp_eq_u32 s26, %d" % w)
        a.e("s_cbranch_scc1 K1_H_W%d" % w)
    for w in range(4):
        a.label("K1_H_W%d" % w)
        k1_loop(a, 'H', 12, [False] * 12, w, RS, "K1_LH%d" % w)
        k1_stats(a, 12, w)
        a.e("s_branch K1_EH")
    a.label("K1_EH")
    k1_epi_h(a)
    stamp(a, 5)
    if STAMPS: a.e("s_waitcnt vmcnt(0)")
    stamp(a, 6)
    stamp_flush(a, 7, 0, 4)
    a.label("K1_END")
    a.e("s_endpgm")
    return a.text()
```

```python
from common import *
import struct
def f2u(x): return struct.unpack("<I", struct.pack("<f", x))[0]
NEG = f2u(-1e30)
LOG2E = f2u(1.4426950408889634)
QS = 1.4426950408889634 * (20.0 ** -0.5)
KBLK = 1536

def decode_gemm(a):
    a.e("s_and_b32 s27, s2, 7")
    a.e("s_lshr_b32 s3, s2, 3")
    a.e("s_and_b32 s36, s27, 3")
    a.e("s_lshl_b32 s36, s36, 3")
    a.e("s_and_b32 s37, s3, 7")
    a.e("s_add_u32 s36, s36, s37")
    a.e("s_lshr_b32 s37, s27, 2")
    a.e("s_lshl_b32 s37, s37, 2")
    a.e("s_lshr_b32 s3, s3, 3")
    a.e("s_add_u32 s37, s37, s3")

def gemm2(a, kind):
    G = kind == 'G'
    NS = 48 if G else 20
    NST = 12 if G else 5
    V_XO = 7
    ACC, RING = 16, 96
    stamp(a, 0)
    decode_gemm(a)
    if G:
        srd(a, 28, 24, SZ_H, WS_H)
        srd(a, 32, 24, SZ_W2F, WS_W2F)
        srd(a, 48, 24, SZ_G, WS_G)
        srd(a, 52, 18, 1280)
    else:
        srd(a, 28, 24, SZ_O, WS_O)
        srd(a, 32, 24, SZ_WOF, WS_WOF)
        srd(a, 48, 24, SZ_G, WS_G)
        srd(a, 52, 4, 2048 * 1280)
        srd(a, 56, 20, 2048 * 1280)
    a.e("s_mul_i32 s38, s37, 160")
    a.e("v_lshlrev_b32 v%d, 4, v1" % V_XO)
    a.e("v_add_u32 v8, 0x1000, v%d" % V_XO)
    a.e("s_mul_i32 s39, s26, 20480")
    a.e("s_mul_i32 s45, s26, %d" % NST)
    a.e("s_mul_i32 s40, s45, 40")
    a.e("s_mul_i32 s41, s37, 5")
    a.e("s_add_u32 s40, s40, s41")
    a.e("s_lshl_b32 s40, s40, 10")
    for t in range(4):
        a.e("s_lshl_b32 s%d, s36, 2" % (41 + t))
        a.e("s_add_u32 s%d, s%d, %d" % (41 + t, 41 + t, t))
        a.e("s_mul_i32 s%d, s%d, %d" % (41 + t, 41 + t, NS))
        a.e("s_add_u32 s%d, s%d, s45" % (41 + t, 41 + t))
        a.e("s_lshl_b32 s%d, s%d, 10" % (41 + t, 41 + t))
    def LD(st):
        base = RING + (st % 4) * 36
        if st > 0: a.e("s_add_u32 s40, s40, 40960")
        for ct in range(5):
            if ct < 4:
                a.vmem("buffer_load_dwordx4 %s, v%d, s[32:35], s40 offen offset:%d" % (vr(base + 16 + ct * 4, 4), V_XO, ct * 1024), "W%d_%d" % (st, ct))
            else:
                a.vmem("buffer_load_dwordx4 %s, v8, s[32:35], s40 offen" % (vr(base + 16 + ct * 4, 4)), "W%d_%d" % (st, ct))
            if ct == 0:
                for t in range(4):
                    if st > 0: a.e("s_add_u32 s%d, s%d, 1024" % (41 + t, 41 + t))
                    a.vmem("buffer_load_dwordx4 %s, v%d, s[28:31], s%d offen" % (vr(base + t * 4, 4), V_XO, 41 + t), "X%d" % st)
    stamp(a, 1)
    for st in range(min(4, NST)):
        LD(st)
    EP = 240
    a.e("v_lshrrev_b32 v9, 4, v1")
    a.e("v_and_b32 v15, 15, v1")
    a.e("s_lshl_b32 s46, s2, 2")
    a.e("s_add_u32 s46, s46, s26")
    a.e("s_mul_i32 s46, s46, 2560")
    a.e("v_lshlrev_b32 v13, 3, v1")
    a.e("v_add_u32 v13, s46, v13")
    if not G:
        a.e("s_lshl_b32 s47, s36, 6")
        a.e("s_lshl_b32 s46, s26, 4")
        a.e("s_add_u32 s47, s47, s46")
        a.e("v_add_u32 v14, s47, v15")
        a.e("v_mul_u32_u24 v14, 1280, v14")
        a.e("v_lshl_add_u32 v14, v9, 3, v14")
        a.e("v_add_u32 v14, s38, v14")
    else:
        a.e("v_lshlrev_b32 v10, 3, v9")
        a.e("v_add_u32 v10, s38, v10")
    for r in range(ACC, ACC + 80):
        a.e("v_mov_b32 v%d, 0" % r)
    stamp(a, 2)
    stamp(a, 3)
    def EPL():
        if G:
            for ct in range(5):
                a.vmem("buffer_load_dwordx2 %s, v10, s[52:55], 0 offen offset:%d" % (vr(EP + ct * 2, 2), ct * 32), "EP")
        else:
            for ct in range(5):
                a.vmem("buffer_load_dwordx2 %s, v13, s[48:51], 0 offen offset:%d" % (vr(EP + ct * 2, 2), ct * 512), "EP")
            for ct in range(3):
                a.vmem("buffer_load_dwordx2 %s, v14, s[52:55], 0 offen offset:%d" % (vr(EP + 10 + ct * 2, 2), ct * 32), "EP")
            for ct in range(3, 5):
                a.vmem("buffer_load_dwordx2 %s, v14, s[52:55], 0 offen offset:%d" % (vr(2 + (ct - 3) * 2, 2), ct * 32), "EP")
    for st in range(NST):
        base = RING + (st % 4) * 36
        for ct in range(5):
            a.wait_vm(["W%d_%d" % (st, ct), "X%d" % st])
            for rt in range(4):
                acc = ACC + (rt * 5 + ct) * 4
                a.e("v_mfma_f32_16x16x32_bf16 %s, %s, %s, %s" % (vr(acc, 4), vr(base + 16 + ct * 4, 4), vr(base + rt * 4, 4), vr(acc, 4)))
        if st + 4 < NST: LD(st + 4)
        if st == NST - 5 or (NST == 5 and st == 0): EPL()
    stamp(a, 4)
    a.nop(10)
    a.e("v_lshlrev_b32 v10, 4, v1")
    a.e("v_add_u32 v11, s39, v10")
    for t in range(20):
        a.e("ds_write_b128 v11, %s offset:%d" % (vr(ACC + t * 4, 4), t * 1024))
    a.e("s_waitcnt lgkmcnt(0)")
    a.e("s_barrier")
    stamp(a, 5)
    a.lg = []
    a.e("s_mul_i32 s46, s26, 5120")
    a.e("v_add_u32 v11, s46, v10")
    a.e("v_add_u32 v12, 0xa000, v11")
    for ct in range(5):
        for sw in range(4):
            a.lds("ds_read_b128 %s, v%d offset:%d" % (vr(96 + (ct * 4 + sw) * 4, 4), 11 + sw // 2, (sw % 2) * 20480 + ct * 1024), "R%d" % ct)
    a.wait_vm("EP")
    for ct in range(5):
        a.wait_lg("R%d" % ct)
        b = 96 + ct * 16
        for r in range(4):
            a.e("v_add_f32 v%d, v%d, v%d" % (b + r, b + r, b + 4 + r))
            a.e("v_add_f32 v%d, v%d, v%d" % (b + 8 + r, b + 8 + r, b + 12 + r))
        for r in range(4):
            a.e("v_add_f32 v%d, v%d, v%d" % (b + r, b + r, b + 8 + r))
        e = EP + ct * 2
        a.e("v_lshlrev_b32 v%d, 16, v%d" % (b + 4, e))
        a.e("v_and_b32 v%d, 0xffff0000, v%d" % (b + 5, e))
        a.e("v_lshlrev_b32 v%d, 16, v%d" % (b + 6, e + 1))
        a.e("v_and_b32 v%d, 0xffff0000, v%d" % (b + 7, e + 1))
        if G:
            for r in range(4):
                a.e("v_add_f32 v%d, v%d, v%d" % (b + r, b + r, b + 4 + r))
            for r in range(4):
                a.e("v_mul_f32 v%d, 0x%x, v%d" % (b + 4 + r, LOG2E ^ 0x80000000, b + r))
            for r in range(4):
                a.e("v_exp_f32 v%d, v%d" % (b + 4 + r, b + 4 + r))
            for r in range(4):
                a.e("v_add_f32 v%d, 1.0, v%d" % (b + 4 + r, b + 4 + r))
            for r in range(4):
                a.e("v_rcp_f32 v%d, v%d" % (b + 4 + r, b + 4 + r))
            a.nop(1)
            for r in range(4):
                a.e("v_mul_f32 v%d, v%d, v%d" % (b + r, b + r, b + 4 + r))
            a.e("v_cvt_pk_bf16_f32 v%d, v%d, v%d" % (b + 8, b, b + 1))
            a.e("v_cvt_pk_bf16_f32 v%d, v%d, v%d" % (b + 9, b + 2, b + 3))
            a.e("buffer_store_dwordx2 %s, v13, s[48:51], 0 offen offset:%d" % (vr(b + 8, 2), ct * 512))
        else:
            e2 = EP + 10 + ct * 2 if ct < 3 else 2 + (ct - 3) * 2
            a.e("v_lshlrev_b32 v%d, 16, v%d" % (b + 8, e2))
            a.e("v_and_b32 v%d, 0xffff0000, v%d" % (b + 9, e2))
            a.e("v_lshlrev_b32 v%d, 16, v%d" % (b + 10, e2 + 1))
            a.e("v_and_b32 v%d, 0xffff0000, v%d" % (b + 11, e2 + 1))
            for r in range(4):
                a.e("v_fma_f32 v%d, v%d, v%d, v%d" % (b + r, b + r, b + 4 + r, b + 8 + r))
            a.e("v_cvt_pk_bf16_f32 v%d, v%d, v%d" % (b + 12, b, b + 1))
            a.e("v_cvt_pk_bf16_f32 v%d, v%d, v%d" % (b + 13, b + 2, b + 3))
            a.e("buffer_store_dwordx2 %s, v14, s[56:59], 0 offen offset:%d" % (vr(b + 12, 2), ct * 32))
    stamp(a, 6)
    if STAMPS: a.e("s_waitcnt vmcnt(0)")
    stamp(a, 7)
    stamp_flush(a, 8, 1 if G else 2, 8 if G else 4)
    a.e("s_endpgm")

def attention(a):
    a.e("s_setprio 3")
    O, S = 16, 32
    K0, K1, V = 80, 120, 132
    Q = 212
    T = 228
    srd(a, 28, 24, SZ_QK, WS_Q)
    srd(a, 32, 24, SZ_QK, WS_K)
    srd(a, 36, 24, SZ_V, WS_V)
    srd(a, 40, 24, SZ_O, WS_O)
    a.e("s_and_b32 s44, s2, 7")
    a.e("s_lshl_b32 s44, s44, 2")
    a.e("s_bfe_u32 s3, s2, 0x20003")
    a.e("s_add_u32 s44, s44, s3")
    a.e("s_lshr_b32 s45, s2, 5")
    a.e("s_lshl_b32 s45, s45, 3")
    a.e("s_sub_u32 s3, s26, 4")
    a.e("s_lshl_b32 s3, s3, 1")
    a.e("s_add_u32 s45, s45, s3")
    stamp(a, 0)
    a.e("v_lshlrev_b32 v8, 4, v1")
    a.e("v_and_b32 v12, 31, v1")
    a.e("v_lshrrev_b32 v13, 5, v1")
    a.e("v_mov_b32 v11, 0x%x" % OOB)
    a.e("v_lshlrev_b32 v9, 4, v12")
    a.e("v_add_u32 v9, 1024, v9")
    a.e("v_cmp_gt_u32 vcc, 32, v1")
    a.e("v_mul_u32_u24 v2, %d, v13" % KBLK)
    a.e("v_add_u32 v2, v9, v2")
    a.e("v_cndmask_b32 v3, v11, v9, vcc")
    a.e("v_cndmask_b32 v4, v9, v11, vcc")
    a.e("v_cmp_ge_u32 vcc, 20, v12")
    a.e("s_lshl_b32 s47, s44, 6")
    a.e("s_add_u32 s48, s47, s45")
    a.e("v_cndmask_b32 v10, v11, v8, vcc")
    for u in range(2):
        a.e("s_add_u32 s49, s48, %d" % u)
        a.e("s_mul_i32 s49, s49, %d" % KBLK)
        a.vmem("buffer_load_dwordx4 %s, v8, s[28:31], s49 offen" % vr(Q + 8 * u, 4), "Q%d" % u)
        a.vmem("buffer_load_dwordx2 %s, v3, s[28:31], s49 offen" % vr(Q + 8 * u + 4, 2), "Q%d" % u)
        a.vmem("buffer_load_dwordx2 %s, v4, s[28:31], s49 offen" % vr(Q + 8 * u + 6, 2), "Q%d" % u)
    for b in range(10):
        a.e("s_add_i32 s49, s45, %d" % (b - 8))
        if b % 2 == 0:
            a.e("s_add_i32 s50, s49, s47")
            a.e("s_mul_i32 s50, s50, %d" % KBLK)
            a.e("v_add_u32 v5, s50, v2")
            a.vmem("buffer_load_dwordx2 %s, v5, s[32:35], 0 offen" % vr(K1 + b, 2), "K%d" % b)
        a.e("s_max_i32 s49, s49, 0")
        a.e("s_add_u32 s49, s49, s47")
        a.e("s_mul_i32 s50, s49, %d" % KBLK)
        a.vmem("buffer_load_dwordx4 %s, v8, s[32:35], s50 offen" % vr(K0 + 4 * b, 4), "K%d" % b)
    for b in range(10):
        a.e("s_add_i32 s49, s45, %d" % (b - 8))
        a.e("s_max_i32 s49, s49, 0")
        a.e("s_add_u32 s49, s49, s47")
        a.e("s_lshl_b32 s50, s49, 11")
        a.vmem("buffer_load_dwordx4 %s, v10, s[36:39], s50 offen" % vr(V + 8 * b, 4), "V%d" % b)
        a.vmem("buffer_load_dwordx4 %s, v10, s[36:39], s50 offen offset:1024" % vr(V + 8 * b + 4, 4), "V%d" % b)
    a.e("v_lshlrev_b32 v14, 2, v13")
    a.e("v_sub_u32 v14, v12, v14")
    for r in range(16):
        c = (r & 3) + 8 * (r >> 2)
        a.e("v_cmp_le_i32 s[%d:%d], %d, v14" % (64 + 2 * r, 65 + 2 * r, c))
    a.e("v_mov_b32 v%d, 0x%x" % (T, NEG))
    a.e("v_mov_b32 v%d, 0" % (T + 1))
    a.e("v_mov_b32 v%d, 0x%x" % (T + 7, f2u(-1e20)))
    a.e("s_mov_b32 s51, 0x%x" % f2u(QS))
    VM, VMO, VT1, VT2, VNM = T + 2, T + 3, T + 4, T + 5, T + 6
    stamp(a, 1)
    for u in range(2):
        q0, qlo, qhi = Q + 8 * u, Q + 8 * u + 4, Q + 8 * u + 6
        for ch in range(3):
            blocks = [u + 3 * ch + i for i in range(3)]
            for i, b in enumerate(blocks):
                sb = S + 16 * i
                rel = b - u
                if rel == 0:
                    for r in range(16):
                        a.e("v_cndmask_b32 v%d, v%d, v%d, s[%d:%d]" % (sb + r, T + 1, T, 64 + 2 * r, 65 + 2 * r))
                if rel == 8:
                    for r in range(16):
                        a.e("v_cndmask_b32 v%d, v%d, v%d, s[%d:%d]" % (sb + r, T, T + 1, 64 + 2 * r, 65 + 2 * r))
            for i, b in enumerate(blocks):
                sb = S + 16 * i
                rel = b - u
                a.wait_vm(["K%d" % b, "K%d" % (b - b % 2), "Q%d" % u])
                if rel < 8:
                    L1 = a.newlabel("AT_INV"); L2 = a.newlabel("AT_NXT")
                    a.e("s_add_i32 s49, s45, %d" % (b - 8))
                    a.e("s_cmp_lt_i32 s49, 0")
                    a.e("s_cbranch_scc1 %s" % L1)
                c = vr(sb, 16) if rel in (0, 8) else "0"
                a.e("v_mfma_f32_32x32x16_bf16 %s, %s, %s, %s" % (vr(sb, 16), vr(K0 + 4 * b, 4), vr(q0, 4), c))
                a.e("v_mfma_f32_32x32x8_bf16 %s, %s, %s, %s" % (vr(sb, 16), vr(K1 + (b - b % 2), 2), vr(qlo if b % 2 == 0 else qhi, 2), vr(sb, 16)))
                if rel < 8:
                    a.e("s_branch %s" % L2)
                    a.label(L1)
                    for r in range(16):
                        a.e("v_mov_b32 v%d, v%d" % (sb + r, T))
                    a.label(L2)
            n = 48
            a.nop(8)
            a.e("v_max3_f32 v%d, v%d, v%d, v%d" % (VM, S, S + 1, S + 2))
            a.e("v_max3_f32 v%d, v%d, v%d, v%d" % (VT1, S + 3, S + 4, S + 5))
            rr = list(range(6, n)); tgl = 0
            while rr:
                d = VM if tgl == 0 else VT1
                a.e("v_max3_f32 v%d, v%d, v%d, v%d" % (d, d, S + rr[0], S + rr[1])); rr = rr[2:]
                tgl ^= 1
            if ch > 0:
                a.e("v_max3_f32 v%d, v%d, v%d, v%d" % (VM, VM, VT1, VMO))
            else:
                a.e("v_max3_f32 v%d, v%d, v%d, v%d" % (VM, VM, VT1, T + 7))
            a.e("v_mov_b32 v%d, v%d" % (VT1, VM))
            a.nop(2)
            a.e("v_permlane32_swap_b32 v%d, v%d" % (VM, VT1))
            a.nop(1)
            a.e("v_max_f32 v%d, v%d, v%d" % (VM, VM, VT1))
            a.e("v_mul_f32 v%d, s51, v%d" % (VNM, VM))
            a.e("v_sub_f32 v%d, 0, v%d" % (VNM, VNM))
            if ch > 0:
                a.e("v_sub_f32 v%d, v%d, v%d" % (VT2, VNM, T + 14))
                a.e("v_exp_f32 v%d, v%d" % (VT2, VT2))
                a.nop(1)
                for r in range(12):
                    a.e("v_mul_f32 v%d, v%d, v%d" % (O + r, VT2, O + r))
            a.e("v_mov_b32 v%d, v%d" % (VMO, VM))
            a.e("v_mov_b32 v%d, v%d" % (T + 14, VNM))
            for i, b in enumerate(blocks):
                sb = S + 16 * i
                for r in range(16):
                    a.e("v_fma_f32 v%d, v%d, s51, v%d" % (sb + r, sb + r, VNM))
                for r in range(16):
                    a.e("v_exp_f32 v%d, v%d" % (sb + r, sb + r))
                a.nop(1)
                for r in range(8):
                    a.e("v_cvt_pk_bf16_f32 v%d, v%d, v%d" % (sb + r, sb + 2 * r, sb + 2 * r + 1))
                a.wait_vm("V%d" % b)
                a.nop(1)
                c = "0" if (ch == 0 and i == 0) else vr(O, 16)
                a.e("v_mfma_f32_32x32x16_bf16 %s, %s, %s, %s" % (vr(O, 16), vr(V + 8 * b, 4), vr(sb, 4), c))
                a.e("v_mfma_f32_32x32x16_bf16 %s, %s, %s, %s" % (vr(O, 16), vr(V + 8 * b + 4, 4), vr(sb + 4, 4), vr(O, 16)))
            if ch < 2: a.nop(4)
        a.nop(14)
        a.e("v_mov_b32 v%d, v%d" % (VT1, O + 8))
        a.e("v_mov_b32 v%d, v%d" % (VT2, O + 8))
        a.nop(2)
        a.e("v_permlane32_swap_b32 v%d, v%d" % (VT1, VT2))
        a.nop(1)
        a.e("v_rcp_f32 v%d, v%d" % (VT2, VT2))
        a.nop(1)
        for r in range(12):
            a.e("v_mul_f32 v%d, v%d, v%d" % (O + r, VT2, O + r))
        PK = T + 8
        for i in range(6):
            a.e("v_cvt_pk_bf16_f32 v%d, v%d, v%d" % (PK + i, O + 2 * i, O + 2 * i + 1))
        A0, A1, A2, A3 = T + 16, T + 17, T + 18, T + 19
        a.e("s_add_u32 s49, s45, %d" % u)
        a.e("s_lshl_b32 s49, s49, 1")
        a.e("v_lshrrev_b32 v%d, 4, v12" % A0)
        a.e("v_add_u32 v%d, s49, v%d" % (A0, A0))
        a.e("v_mul_u32_u24 v%d, 20, v%d" % (A0, A0))
        a.e("v_and_b32 v%d, 15, v12" % A1)
        a.e("s_mul_i32 s49, s44, 5")
        for i in range(3):
            a.e("v_add_u32 v%d, s49, v13" % A2)
            if i: a.e("v_add_u32 v%d, %d, v%d" % (A2, 2 * i, A2))
            a.e("v_lshrrev_b32 v%d, 3, v%d" % (A3, A2))
            a.e("v_add_u32 v%d, v%d, v%d" % (A3, A0, A3))
            a.e("v_lshlrev_b32 v%d, 10, v%d" % (A3, A3))
            a.e("v_bfe_u32 v%d, v%d, 1, 2" % (T + 20, A2))
            a.e("v_lshl_add_u32 v%d, v%d, 4, v%d" % (T + 20, T + 20, A1))
            a.e("v_lshl_add_u32 v%d, v%d, 4, v%d" % (A3, T + 20, A3))
            a.e("v_and_b32 v%d, 1, v%d" % (T + 20, A2))
            a.e("v_lshl_add_u32 v%d, v%d, 3, v%d" % (A3, T + 20, A3))
            if i == 2:
                a.e("v_cmp_eq_u32 vcc, 0, v13")
                a.nop(2)
                a.e("v_cndmask_b32 v%d, v11, v%d, vcc" % (A3, A3))
            a.e("buffer_store_dwordx2 %s, v%d, s[40:43], 0 offen" % (vr(PK + 2 * i, 2), A3))
        stamp(a, 2 + u)
    stamp_flush(a, 4, 1, 8)
    a.e("s_barrier")
    a.e("s_endpgm")

def pre(a, name):
    a.e("s_cmp_ge_u32 s2, 256")
    a.e("s_cbranch_scc1 %s_END" % name)
    load_args(a)
    a.e("v_and_b32 v1, 63, v0")
    a.e("v_lshrrev_b32 v2, 6, v0")
    a.nop(1)
    a.e("v_readfirstlane_b32 s26, v2")
    a.e("s_waitcnt lgkmcnt(0)")

def gen_k2():
    a = Asm()
    pre(a, "K2")
    a.e("s_cmp_ge_u32 s26, 4")
    a.e("s_cbranch_scc1 K2_AT")
    gemm2(a, 'G')
    a.label("K2_AT")
    a.vm = []; a.lg = []
    SB[0] = 52
    attention(a)
    SB[0] = 80
    a.label("K2_END")
    a.e("s_endpgm")
    return a.text()

def gen_k3():
    a = Asm()
    pre(a, "K3")
    gemm2(a, 'S')
    a.label("K3_END")
    a.e("s_endpgm")
    return a.text()

KERNELS = [("k2_kernel", 256, 512, 81920, gen_k2, 256), ("k3_kernel", 256, 256, 81920, gen_k3, 256)]
```

```python
from common import *
import struct, os
SCQ = os.environ.get("SCQ", "")
SCH = os.environ.get("SCH", " sc1")
def f2u(x): return struct.unpack("<I", struct.pack("<f", x))[0]

V_DMA = 16
V_XD = 8
V_XA = 24
V_TR = 26
V_CUR, V_NXT = 27, 12
V_XC0, V_XC1, V_XN0 = 13, 14, 15
V_ONE = 28
V_XR = 32
V_AD = 48
V_WF = 64
V_RS = 88
V_GR = 96
V_CS = 104
V_ACC = 120
V_B1 = 216
SLOT = 47104
XOFF = 30720
LDS_CS = 3 * SLOT
LDS_ST = LDS_CS + 1024
K1_LDS = LDS_CS + 2048
KBLK = 1536

def k1_setup(a, typ):
    if typ == 'Q':
        CPR, NCH, MUL, RB, RS = 30, 30, 2185, 3840, 480
        srd(a, 32, 6, 640 * 3840)
        a.e("s_mul_i32 s38, s37, 480")
        srd(a, 48, 24, 0xC00000, 0)
    else:
        CPR, NCH, MUL, RB, RS = 26, 24, 2521, 3072, 416
        srd(a, 32, 12, 640 * 3072)
        a.e("s_sub_u32 s39, s37, 8")
        a.e("s_mul_i32 s38, s39, 384")
        srd(a, 48, 24, SZ_H, WS_H)
        srd(a, 52, 14, 1536 * 2)
    a.e("s_lshl_b32 s41, s26, 6")
    a.e("s_mov_b32 s46, %d" % RB)
    for i in range(8):
        d = V_DMA + i
        a.e("v_add_u32 v2, s41, v1")
        if i: a.e("v_add_u32 v2, %d, v2" % (256 * i))
        a.e("v_mul_u32_u24 v3, %d, v2" % MUL)
        a.e("v_lshrrev_b32 v3, 16, v3")
        a.e("v_mul_u32_u24 v4, %d, v3" % CPR)
        a.e("v_sub_u32 v4, v2, v4")
        a.e("v_and_b32 v5, 35, v3")
        a.e("v_bfe_u32 v6, v3, 4, 1")
        a.e("v_lshl_or_b32 v5, v6, 2, v5")
        a.e("v_bfe_u32 v6, v3, 2, 2")
        a.e("v_lshl_or_b32 v5, v6, 3, v5")
        a.e("v_mul_lo_u32 v5, v5, s46")
        a.e("v_min_u32 v4, %d, v4" % (NCH - 1))
        a.e("v_lshl_add_u32 v5, v4, 4, v5")
        a.e("v_add_u32 v%d, s38, v5" % d)
    a.e("v_bfe_u32 v2, v1, 2, 4")
    a.e("v_mul_u32_u24 v2, %d, v2" % RS)
    a.e("v_and_b32 v3, 3, v1")
    a.e("v_lshl_add_u32 v%d, v3, 3, v2" % V_TR)
    a.e("s_mul_i32 s47, s46, 64")
    return RB, RS

def nW(typ, w):
    n = 30 if typ == 'Q' else 26
    return [i for i in range(8) if w + 4 * i < n]

def issue_x(a, c_imm=None):
    for j in range(4):
        a.e("s_add_u32 m0, s42, %d" % (j * 1024))
        a.nop(1)
        a.e("buffer_load_dwordx4 v%d, s[28:31], s44 offen lds" % (V_XD + j))

def k1_prologue(a, typ, RB, hook=None):
    stamp(a, 1)
    n = 30 if typ == 'Q' else 26
    a.e("s_lshl_b32 s41, s26, 10")
    for c in range(2):
        if c == 1:
            if hook: hook()
            a.e("s_add_u32 s42, s74, %d" % SLOT)
            a.e("s_movk_i32 s44, 128")
            issue_x(a)
            a.e("s_movk_i32 s44, 256")
        a.e("s_mul_i32 s43, s47, %d" % c)
        for i in range(8):
            lab = None
            if 4 * i >= n: continue
            if 4 * i + 3 >= n:
                lab = a.newlabel("K1_SK")
                a.e("s_cmp_ge_u32 s26, %d" % (n - 4 * i))
                a.e("s_cbranch_scc1 %s" % lab)
            a.e("s_add_u32 m0, s41, %d" % (c * SLOT + i * 4096))
            a.nop(1)
            a.e("buffer_load_dwordx4 v%d, s[32:35], s43 offen lds" % (V_DMA + i))
            if lab: a.label(lab)
    a.e("s_lshr_b32 s60, s2, 3")
    a.e("v_and_b32 v2, 31, v1")
    a.e("v_lshrrev_b32 v3, 5, v1")
    a.e("s_and_b32 s61, s27, 1")
    a.e("s_lshl_b32 s61, s61, 10")
    a.e("s_lshl_b32 s62, s60, 5")
    a.e("s_add_u32 s61, s61, s62")
    a.e("v_add_u32 v4, s61, v2")
    a.e("v_mul_u32_u24 v4, 1280, v4")
    a.e("s_lshl_b32 s62, s26, 1")
    a.e("s_add_u32 s62, s62, 2")
    a.e("v_add_u32 v5, s62, v3")
    a.e("v_lshl_add_u32 v4, v5, 7, v4")
    a.e("buffer_load_dword v240, v4, s[28:31], 0 offen")
    LPR = 15 if typ == 'Q' else 12
    a.e("s_mul_i32 s61, s60, %d" % (2 * LPR))
    a.e("v_min_u32 v2, %d, v2" % (2 * LPR - 1))
    a.e("v_add_u32 v4, s61, v2")
    a.e("v_mul_u32_u24 v6, %d, v4" % (4370 if LPR == 15 else 5462))
    a.e("v_lshrrev_b32 v6, 16, v6")
    a.e("v_mul_u32_u24 v7, %d, v6" % LPR)
    a.e("v_sub_u32 v7, v4, v7")
    a.e("v_lshl_add_u32 v6, v5, 6, v6")
    a.e("v_mul_lo_u32 v6, v6, s46")
    a.e("v_lshl_add_u32 v6, v7, 7, v6")
    a.e("s_lshr_b32 s61, s27, 1")
    a.e("s_and_b32 s61, s61, 1")
    a.e("s_mul_i32 s61, s61, %d" % (LPR * 128))
    a.e("v_add_u32 v6, s61, v6")
    a.e("buffer_load_dword v241, v6, s[32:35], 0 offen")

def k1_common_init(a, typ):
    for r in range(V_RS, 240 if typ == 'Q' else 216):
        a.e("v_mov_b32 v%d, 0" % r)
    for r in range(4):
        a.e("v_mov_b32 v%d, 0x3f803f80" % (V_ONE + r))

def k1_addr(a, isv):
    a.e("v_and_b32 v2, 15, v1")
    a.e("v_lshrrev_b32 v3, 4, v1")
    a.e("s_mul_i32 s60, s37, 15")
    for p in range(15):
        d = V_AD + p
        a.e("s_add_u32 s61, s60, %d" % p)
        if not isv[p]:
            a.e("s_cmp_ge_u32 s61, 40")
            a.e("s_cselect_b32 s62, 40, 0")
            a.e("s_cselect_b32 s63, 0x%x, 0" % WS_K)
            a.e("s_sub_u32 s61, s61, s62")
            a.e("s_lshl_b32 s61, s61, 2")
            a.e("s_mul_i32 s65, s59, %d" % KBLK)
            a.e("s_add_u32 s63, s63, s65")
            a.e("v_add_u32 v4, s61, v3")
            a.e("v_mul_u32_u24 v5, 205, v4")
            a.e("v_lshrrev_b32 v5, 10, v5")
            a.e("v_mul_u32_u24 v6, 5, v5")
            a.e("v_sub_u32 v6, v4, v6")
            a.e("v_lshrrev_b32 v7, 1, v6")
            a.e("v_lshlrev_b32 v7, 9, v7")
            a.e("v_and_b32 v6, 1, v6")
            a.e("v_lshl_or_b32 v7, v6, 3, v7")
            a.e("v_lshl_add_u32 v7, v2, 4, v7")
            a.e("s_mov_b32 s65, %d" % (64 * KBLK))
            a.e("v_mul_lo_u32 v5, v5, s65")
            a.e("v_add3_u32 v%d, v5, v7, s63" % d)
        else:
            a.e("s_sub_u32 s61, s61, 80")
            a.e("s_lshl_b32 s61, s61, 4")
            a.e("s_lshl_b32 s63, s59, 11")
            a.e("s_add_u32 s63, s63, 0x%x" % WS_V)
            a.e("v_add_u32 v4, s61, v2")
            a.e("v_mul_u32_u24 v5, 3277, v4")
            a.e("v_lshrrev_b32 v5, 16, v5")
            a.e("v_mul_u32_u24 v6, 20, v5")
            a.e("v_sub_u32 v6, v4, v6")
            a.e("v_and_b32 v7, 1, v3")
            a.e("v_lshl_add_u32 v7, v7, 5, v6")
            a.e("v_lshlrev_b32 v7, 4, v7")
            a.e("v_lshrrev_b32 v6, 1, v3")
            a.e("v_lshl_add_u32 v7, v6, 3, v7")
            a.e("v_lshlrev_b32 v5, 17, v5")
            a.e("v_add3_u32 v%d, v5, v7, s63" % d)

def repack(a, phase):
    pass

def k1_loop(a, typ, T, isv, w, RS, lbl):
    NR = 5 if T == 15 else 6
    D = NR - 1
    Wi = nW(typ, w)
    def slotregs(cur_s, nxt_s):
        a.e("v_add_u32 v%d, %s, v%d" % (V_CUR, cur_s, V_TR))
        a.e("v_add_u32 v%d, %s, v%d" % (V_NXT, nxt_s, V_TR))
        a.e("v_add_u32 v%d, %s, v%d" % (V_XC0, cur_s, V_XA))
        a.e("v_add_u32 v%d, %s, v%d" % (V_XC1, cur_s, V_XA + 1))
        a.e("v_add_u32 v%d, %s, v%d" % (V_XN0, nxt_s, V_XA))
    a.e("s_mov_b32 s70, 0"); a.e("s_mov_b32 s71, %d" % SLOT); a.e("s_mov_b32 s72, %d" % (2 * SLOT))
    slotregs("s70", "s71")
    if typ == 'Q':
        a.e("s_waitcnt vmcnt(%d)" % (4 + len(Wi) + 2))
    a.e("s_barrier")
    stamp(a, 2)
    a.e("ds_read_b128 %s, v%d" % (vr(V_XR, 4), V_XC0))
    a.e("ds_read_b128 %s, v%d offset:2048" % (vr(V_XR + 4, 4), V_XC0))
    for p in range(D):
        f = V_WF + (p % NR) * 4
        a.e("ds_read_b64_tr_b16 %s, v%d offset:%d" % (vr(f, 2), V_CUR, p * 32))
        a.e("ds_read_b64_tr_b16 %s, v%d offset:%d" % (vr(f + 2, 2), V_CUR, p * 32 + 16 * RS))
    a.e("s_mov_b32 s45, 0")
    a.label(lbl)
    for ks in range(2):
        xs = V_XR + ks * 8
        xn = V_XR + (1 - ks) * 8
        if ks == 0:
            a.e("s_add_u32 s42, s72, s41")
            a.e("s_add_u32 s73, s72, s74")
        for p in range(T):
            f = V_WF + (p % NR) * 4
            a.e("s_waitcnt lgkmcnt(%d)" % ((D - 1) * 2 if p > 0 else min((D - 1) * 2, 0) if False else (D - 1) * 2))
            acc0 = V_ACC + p * 8
            dm = None
            if ks == 0 and p >= 1 and p - 1 < len(Wi):
                i = Wi[p - 1]
                a.e("s_add_u32 m0, s42, %d" % (i * 4096)); dm = "buffer_load_dwordx4 v%d, s[32:35], s43 offen lds" % (V_DMA + i)
            if ks == 0 and p >= 9 and p - 9 < 4:
                j = p - 9
                a.e("s_add_u32 m0, s73, %d" % (j * 1024)); dm = "buffer_load_dwordx4 v%d, s[28:31], s44 offen lds" % (V_XD + j)
            if ks == 1 and T == 12 and p == 1:
                a.e("s_add_u32 m0, s73, %d" % (3 * 1024)); dm = "buffer_load_dwordx4 v%d, s[28:31], s44 offen lds" % (V_XD + 3)
            for rt in range(2):
                acc = acc0 + rt * 4
                x = xs + rt * 4
                if isv[p]:
                    a.e("v_mfma_f32_16x16x32_bf16 %s, %s, %s, %s" % (vr(acc, 4), vr(x, 4), vr(f, 4), vr(acc, 4)))
                else:
                    a.e("v_mfma_f32_16x16x32_bf16 %s, %s, %s, %s" % (vr(acc, 4), vr(f, 4), vr(x, 4), vr(acc, 4)))
                q = p + D
                if q < T: base, kk, tt = V_CUR, ks, q
                elif ks == 0: base, kk, tt = V_CUR, 1, q - T
                else: base, kk, tt = V_NXT, 0, q - T
                ff = V_WF + (q % NR) * 4
                off = (32 * kk) * RS + tt * 32 + rt * 16 * RS
                a.e("ds_read_b64_tr_b16 %s, v%d offset:%d" % (vr(ff + 2 * rt, 2), base, off))
            if dm: a.e(dm)
            if p % 4 == w:
                cs = V_CS + (p // 4) * 4
                a.e("v_mfma_f32_16x16x32_bf16 %s, %s, %s, %s" % (vr(cs, 4), vr(f, 4), vr(V_ONE, 4), vr(cs, 4)))
            if p in (5, 7):
                rt = (p - 5) // 2
                x = xs + rt * 4
                a.e("v_mfma_f32_16x16x32_bf16 %s, %s, %s, %s" % (vr(V_RS + rt * 4, 4), vr(V_ONE, 4), vr(x, 4), vr(V_RS + rt * 4, 4)))
            if p in (6, 8):
                rt = (p - 6) // 2
                x = xs + rt * 4
                a.e("v_mfma_f32_16x16x32_bf16 %s, %s, %s, %s" % (vr(V_GR + rt * 4, 4), vr(x, 4), vr(x, 4), vr(V_GR + rt * 4, 4)))
            if p == T - D - 1:
                xb = V_XC1 if ks == 0 else V_XN0
                a.e("ds_read_b128 %s, v%d" % (vr(xn, 4), xb))
                a.e("ds_read_b128 %s, v%d offset:2048" % (vr(xn + 4, 4), xb))
    a.e("s_add_u32 s43, s43, s47")
    a.e("s_add_u32 s44, s44, 128")
    a.e("s_min_u32 s44, s44, %d" % (9 * 128))
    a.e("s_mov_b32 s75, s70"); a.e("s_mov_b32 s70, s71"); a.e("s_mov_b32 s71, s72"); a.e("s_mov_b32 s72, s75")
    slotregs("s70", "s71")
    a.e("s_waitcnt vmcnt(%d)" % (4 + len(Wi)))
    a.e("s_barrier")
    a.e("s_add_u32 s45, s45, 1")
    a.e("s_cmp_lt_u32 s45, 10")
    a.e("s_cbranch_scc1 %s" % lbl)

def k1_stats(a, T, w):
    stamp(a, 3)
    a.e("s_waitcnt lgkmcnt(0)")
    a.nop(10)
    a.e("v_and_b32 v2, 15, v1")
    a.e("v_lshrrev_b32 v3, 4, v1")
    a.e("v_lshlrev_b32 v4, 4, v3")
    a.e("v_add_u32 v4, %d, v4" % LDS_CS)
    a.e("v_cmp_eq_u32 vcc, 0, v2")
    a.e("s_and_saveexec_b64 s[56:57], vcc")
    for q in range(4):
        p = 4 * q + w
        if p < T:
            a.e("ds_write_b128 v4, %s offset:%d" % (vr(V_CS + q * 4, 4), p * 64))
    a.e("s_mov_b64 exec, s[56:57]")
    a.e("v_and_b32 v5, 3, v2")
    a.e("v_lshrrev_b32 v6, 2, v2")
    a.e("v_lshlrev_b32 v7, 3, v2")
    a.e("v_add_u32 v7, s58, v7")
    for r in range(1, 4):
        a.e("v_cmp_eq_u32 s[%d:%d], %d, v5" % (60 + 2 * r, 61 + 2 * r, r))
    a.e("v_cmp_eq_u32 vcc, v6, v3")
    a.e("s_and_saveexec_b64 s[56:57], vcc")
    for rt in range(2):
        g = V_GR + rt * 4
        a.e("v_mov_b32 v8, v%d" % g)
        for r in range(1, 4):
            a.e("v_cndmask_b32 v8, v8, v%d, s[%d:%d]" % (g + r, 60 + 2 * r, 61 + 2 * r))
        a.e("v_mul_f32 v9, 0x%x, v%d" % (f2u(1.0 / 640), V_RS + rt * 4))
        a.e("v_mul_f32 v8, 0x%x, v8" % f2u(1.0 / 640))
        a.e("v_fma_f32 v8, -v9, v9, v8")
        a.e("v_max_f32 v8, 0, v8")
        a.e("v_add_f32 v8, 0x%x, v8" % f2u(1e-5))
        a.e("v_rsq_f32 v10, v8")
        a.nop(1)
        a.e("v_mul_f32 v11, v9, v10")
        a.e("v_sub_f32 v11, 0, v11")
        a.e("ds_write_b64 v7, v[10:11] offset:%d" % (rt * 128))
        a.nop(1)
    a.e("s_mov_b64 exec, s[56:57]")
    a.e("s_waitcnt lgkmcnt(0)")
    a.e("s_barrier")
    stamp(a, 4)

def k1_epi_q(a, isv):
    hasq = not all(isv); hasv = any(isv)
    if hasq:
        a.e("v_lshlrev_b32 v7, 3, v2")
        a.e("v_add_u32 v7, s58, v7")
        a.e("ds_read_b64 v[32:33], v7")
        a.e("ds_read_b64 v[34:35], v7 offset:128")
    if hasv:
        a.e("v_lshlrev_b32 v7, 5, v3")
        a.e("v_add_u32 v7, s58, v7")
        a.e("ds_read_b128 v[8:11], v7")
        a.e("ds_read_b128 v[12:15], v7 offset:16")
        a.e("ds_read_b128 v[16:19], v7 offset:128")
        a.e("ds_read_b128 v[20:23], v7 offset:144")
    a.e("v_lshlrev_b32 v4, 4, v3")
    a.e("v_add_u32 v4, %d, v4" % LDS_CS)
    a.e("v_lshlrev_b32 v5, 2, v2")
    a.e("v_add_u32 v5, %d, v5" % LDS_CS)
    a.e("v_mov_b32 v36, 0x3f803f80")
    a.e("v_mov_b32 v37, 0x3f803f80")
    n = len(isv)
    def rd(p):
        tb = 64 + (p % 3) * 8
        if not isv[p]: a.e("ds_read_b128 %s, v4 offset:%d" % (vr(tb, 4), p * 64))
        else: a.e("ds_read_b32 v%d, v5 offset:%d" % (tb, p * 64))
    rd(0); rd(1)
    for p in range(n):
        acc0 = V_ACC + p * 8
        tb = 64 + (p % 3) * 8
        if p + 2 < n: rd(p + 2)
        a.e("s_waitcnt lgkmcnt(%d)" % min(2, n - 1 - p))
        for rt in range(2):
            t = 40 + rt * 4
            if not isv[p]:
                a.e("v_pk_mul_f32 %s, %s, v[32:33] op_sel:[0,1] op_sel_hi:[1,1]" % (vr(t, 2), vr(tb, 2)) if False else "v_mul_f32 v%d, v%d, v%d" % (t, 33 + rt * 2, tb))
                for r in range(1, 4):
                    a.e("v_mul_f32 v%d, v%d, v%d" % (t + r, 33 + rt * 2, tb + r))
                for r in range(4):
                    a.e("v_fma_f32 v%d, v%d, v%d, v%d" % (t + r, acc0 + rt * 4 + r, 32 + rt * 2, t + r))
            else:
                sb = 8 + rt * 8
                for r in range(4):
                    a.e("v_mul_f32 v%d, v%d, v%d" % (t + r, sb + 2 * r + 1, tb))
                for r in range(4):
                    a.e("v_fma_f32 v%d, v%d, v%d, v%d" % (t + r, acc0 + rt * 4 + r, sb + 2 * r, t + r))
            o = tb + 4 + rt * 2
            a.e("v_cvt_pk_bf16_f32 v%d, v%d, v%d" % (o, t, t + 1))
            a.e("v_cvt_pk_bf16_f32 v%d, v%d, v%d" % (o + 1, t + 2, t + 3))
            a.e("buffer_store_dwordx2 %s, v%d, s[48:51], 0 offen offset:%d%s" % (vr(o, 2), V_AD + p, rt * (1024 if isv[p] else 256), SCQ))
        if isv[p]:
            a.e("v_bfe_u32 v38, v%d, 4, 5" % (V_AD + p))
            a.e("v_cmp_eq_u32 vcc, 0, v38")
            a.e("s_and_saveexec_b64 s[66:67], vcc")
            a.e("buffer_store_dwordx2 v[36:37], v%d, s[48:51], 0 offen offset:320%s" % (V_AD + p, SCQ))
            a.e("buffer_store_dwordx2 v[36:37], v%d, s[48:51], 0 offen offset:1344%s" % (V_AD + p, SCQ))
            a.e("s_mov_b64 exec, s[66:67]")

def k1_epi_h(a):
    a.e("v_lshlrev_b32 v7, 3, v2")
    a.e("v_add_u32 v7, s58, v7")
    a.e("ds_read_b64 v[32:33], v7")
    a.e("ds_read_b64 v[34:35], v7 offset:128")
    a.e("v_lshlrev_b32 v4, 4, v3")
    a.e("v_add_u32 v4, %d, v4" % LDS_CS)
    a.e("s_lshl_b32 s60, s59, 1")
    a.e("s_mul_i32 s60, s60, 48")
    a.e("s_mul_i32 s61, s39, 6")
    a.e("s_add_u32 s60, s60, s61")
    a.e("s_lshl_b32 s60, s60, 10")
    a.e("v_lshlrev_b32 v6, 4, v1")
    a.e("v_add_u32 v6, s60, v6")
    a.e("v_add_u32 v7, %d, v6" % (48 * 1024))
    for i in range(6):
        tb = 64 + (i % 2) * 16
        if i == 4:
            a.e("v_add_u32 v6, 0x1000, v6")
            a.e("v_add_u32 v7, 0x1000, v7")
        a.e("ds_read_b128 %s, v4 offset:%d" % (vr(tb, 4), (2 * i) * 64))
        a.e("ds_read_b128 %s, v4 offset:%d" % (vr(tb + 4, 4), (2 * i + 1) * 64))
        for t in range(2):
            b = V_B1 + (2 * i + t) * 2
            a.e("v_lshlrev_b32 v%d, 16, v%d" % (36 + t * 4, b))
            a.e("v_and_b32 v%d, 0xffff0000, v%d" % (37 + t * 4, b))
            a.e("v_lshlrev_b32 v%d, 16, v%d" % (38 + t * 4, b + 1))
            a.e("v_and_b32 v%d, 0xffff0000, v%d" % (39 + t * 4, b + 1))
        a.e("s_waitcnt lgkmcnt(0)")
        for rt in range(2):
            for t in range(2):
                acc = V_ACC + (2 * i + t) * 8 + rt * 4
                for r in range(4):
                    a.e("v_fma_f32 v%d, v%d, v%d, v%d" % (44 + t * 4 + r, 33 + rt * 2, tb + t * 4 + r, 36 + t * 4 + r))
                for r in range(4):
                    a.e("v_fma_f32 v%d, v%d, v%d, v%d" % (44 + t * 4 + r, acc + r, 32 + rt * 2, 44 + t * 4 + r))
                for r in range(4):
                    a.e("v_max_f32 v%d, 0, v%d" % (44 + t * 4 + r, 44 + t * 4 + r))
                for r in range(4):
                    a.e("v_mul_f32 v%d, v%d, v%d" % (44 + t * 4 + r, 44 + t * 4 + r, 44 + t * 4 + r))
            o = tb + 8 + rt * 4
            for q in range(4):
                a.e("v_cvt_pk_bf16_f32 v%d, v%d, v%d" % (o + q, 44 + 2 * q, 45 + 2 * q))
            a.e("buffer_store_dwordx4 %s, v%d, s[48:51], 0 offen offset:%d%s" % (vr(o, 4), 6 + rt, (i % 4) * 1024, SCH))

def repack_issue(a, X):
    L = a.newlabel("K1_RP")
    su = 92
    a.e("s_add_u32 s%d, s66, %d" % (su, 512 * X))
    a.e("s_mov_b32 s%d, -1" % (94 + X))
    a.e("s_cmp_ge_u32 s%d, 680" % su)
    a.e("s_cbranch_scc1 %s" % L)
    a.e("s_cmp_ge_u32 s%d, 480" % su)
    a.e("s_cselect_b32 s84, s8, s16")
    a.e("s_cselect_b32 s85, s9, s17")
    a.e("s_mov_b32 s86, %d" % (1536 * 1280))
    a.e("s_cselect_b32 s86, %d, s86" % (640 * 1280))
    a.e("s_cselect_b32 s93, 480, 0")
    a.e("s_cselect_b32 s%d, 0x%x, 0" % (94 + X, WS_WOF - WS_W2F))
    a.e("s_cselect_b64 vcc, -1, 0")
    a.e("s_mov_b32 s87, 0x00020000")
    a.e("s_sub_u32 s68, s%d, s93" % su)
    a.e("v_lshrrev_b32 v2, 3, v1")
    a.e("s_mul_i32 s69, s68, 6554")
    a.e("s_lshr_b32 s69, s69, 16")
    a.e("s_mul_i32 s76, s69, 10")
    a.e("s_sub_u32 s76, s68, s76")
    a.e("s_mul_i32 s77, s69, 40960")
    a.e("s_lshl_b32 s78, s76, 7")
    a.e("s_add_u32 s77, s77, s78")
    a.e("v_and_b32 v3, 7, v1")
    a.e("s_lshl_b32 s93, s26, 13")
    a.e("s_add_u32 s93, s93, %d" % (2 * SLOT + X * 4096))
    for j in range(4):
        a.e("v_add_u32 v4, %d, v2" % (8 * j))
        a.e("v_and_b32 v5, 3, v4")
        a.e("v_bfe_u32 v6, v4, 4, 1")
        a.e("v_lshl_or_b32 v5, v6, 2, v5")
        a.e("v_bfe_u32 v6, v4, 2, 2")
        a.e("v_lshl_or_b32 v5, v6, 3, v5")
        a.e("v_cndmask_b32 v4, v4, v5, vcc")
        a.e("v_mul_u32_u24 v4, 1280, v4")
        a.e("v_lshl_add_u32 v4, v3, 4, v4")
        a.e("s_add_u32 m0, s93, %d" % (j * 1024))
        a.nop(1)
        a.e("buffer_load_dwordx4 v4, s[84:87], s77 offen lds")
    a.e("s_mul_i32 s77, s69, 40")
    a.e("s_lshl_b32 s78, s76, 2")
    a.e("s_add_u32 s77, s77, s78")
    a.e("s_lshl_b32 s77, s77, 10")
    a.e("s_add_u32 s%d, s%d, s77" % (94 + X, 94 + X))
    a.label(L)

def repack_finish(a):
    srd(a, 88, 24, WS_WOF - WS_W2F + SZ_WOF, WS_W2F)
    a.e("v_bfe_u32 v2, v1, 2, 4")
    a.e("v_lshlrev_b32 v2, 7, v2")
    a.e("v_and_b32 v3, 3, v1")
    a.e("v_lshl_add_u32 v2, v3, 3, v2")
    a.e("s_lshl_b32 s93, s26, 13")
    a.e("s_add_u32 s93, s93, %d" % (2 * SLOT))
    a.e("v_add_u32 v2, s93, v2")
    a.e("v_lshlrev_b32 v3, 4, v1")
    a.e("s_waitcnt vmcnt(12)")
    for X in range(2):
        L = a.newlabel("K1_RF")
        a.e("s_cmp_eq_u32 s%d, -1" % (94 + X))
        a.e("s_cbranch_scc1 %s" % L)
        for ct in range(4):
            a.e("ds_read_b64_tr_b16 %s, v2 offset:%d" % (vr(64 + ct * 4, 2), X * 4096 + ct * 32))
            a.e("ds_read_b64_tr_b16 %s, v2 offset:%d" % (vr(66 + ct * 4, 2), X * 4096 + ct * 32 + 2048))
        a.e("s_waitcnt lgkmcnt(0)")
        for ct in range(4):
            a.e("buffer_store_dwordx4 %s, v3, s[88:91], s%d offen offset:%d%s" % (vr(64 + ct * 4, 4), 94 + X, ct * 1024, SCH))
        a.nop(2)
        a.label(L)

def gen_k1():
    a = Asm()
    a.e("s_cmp_ge_u32 s2, 256")
    a.e("s_cbranch_scc1 K1_END")
    load_args(a)
    a.e("v_and_b32 v1, 63, v0")
    a.e("v_lshrrev_b32 v2, 6, v0")
    a.nop(1)
    a.e("v_readfirstlane_b32 s26, v2")
    a.e("s_and_b32 s27, s2, 7")
    a.e("s_lshr_b32 s3, s2, 3")
    a.e("s_and_b32 s36, s27, 1")
    a.e("s_lshl_b32 s36, s36, 3")
    a.e("s_and_b32 s37, s3, 7")
    a.e("s_add_u32 s36, s36, s37")
    a.e("s_lshr_b32 s37, s27, 1")
    a.e("s_lshl_b32 s37, s37, 2")
    a.e("s_lshr_b32 s3, s3, 3")
    a.e("s_add_u32 s37, s37, s3")
    a.e("s_lshl_b32 s59, s36, 2")
    a.e("s_add_u32 s59, s59, s26")
    a.e("s_lshl_b32 s58, s26, 8")
    a.e("s_add_u32 s58, s58, %d" % LDS_ST)
    a.e("v_lshrrev_b32 v2, 3, v1")
    a.e("v_and_b32 v3, 7, v1")
    a.e("s_lshl_b32 s3, s59, 5")
    for j in range(4):
        a.e("v_add_u32 v4, %d, v2" % (8 * j))
        a.e("v_bfe_u32 v5, v4, 1, 3")
        a.e("v_xor_b32 v5, v3, v5")
        a.e("v_add_u32 v4, s3, v4")
        a.e("v_mul_u32_u24 v4, 1280, v4")
        a.e("v_lshl_add_u32 v%d, v5, 4, v4" % (V_XD + j))
    a.e("v_and_b32 v2, 15, v1")
    a.e("v_lshrrev_b32 v3, 4, v1")
    a.e("v_lshrrev_b32 v4, 1, v2")
    a.e("v_xor_b32 v4, v3, v4")
    a.e("v_xor_b32 v5, 4, v4")
    a.e("s_lshl_b32 s3, s26, 12")
    a.e("s_add_u32 s74, s3, %d" % XOFF)
    a.e("v_lshlrev_b32 v2, 7, v2")
    a.e("v_add_u32 v2, s74, v2")
    a.e("v_lshl_add_u32 v%d, v4, 4, v2" % V_XA)
    a.e("v_lshl_add_u32 v%d, v5, 4, v2" % (V_XA + 1))
    a.e("s_waitcnt lgkmcnt(0)")
    stamp(a, 0)
    srd(a, 28, 4, 2048 * 1280)
    a.e("s_mov_b32 s42, s74")
    a.e("s_movk_i32 s44, 0")
    issue_x(a)
    a.e("s_cmp_ge_u32 s37, 8")
    a.e("s_cbranch_scc1 K1_H")
    RB, RS = k1_setup(a, 'Q')
    k1_prologue(a, 'Q', RB)
    k1_common_init(a, 'Q')
    a.e("s_mul_i32 s43, s47, 2")
    variants = {"A": [False] * 15, "B": [False] * 5 + [True] * 10, "C": [True] * 15}
    a.e("s_cmp_eq_u32 s37, 5")
    a.e("s_cbranch_scc1 K1_VB")
    a.e("s_cmp_gt_u32 s37, 5")
    a.e("s_cbranch_scc1 K1_VC")
    for vn in "ABC":
        a.label("K1_V%s" % vn)
        k1_addr(a, variants[vn])
        for w in range(1, 4):
            a.e("s_cmp_eq_u32 s26, %d" % w)
            a.e("s_cbranch_scc1 K1_V%s_W%d" % (vn, w))
        for w in range(4):
            a.label("K1_V%s_W%d" % (vn, w))
            k1_loop(a, 'Q', 15, variants[vn], w, RS, "K1_L%s%d" % (vn, w))
            k1_stats(a, 15, w)
            a.e("s_branch K1_E%s" % vn)
        a.label("K1_E%s" % vn)
        k1_epi_q(a, variants[vn])
        stamp(a, 5)
        if STAMPS: a.e("s_waitcnt vmcnt(0)")
        stamp(a, 6)
        stamp_flush(a, 7, 0, 4)
        a.e("s_waitcnt vmcnt(0)")
        a.e("s_endpgm")
    a.label("K1_H")
    RB, RS = k1_setup(a, 'H')
    a.e("v_lshrrev_b32 v2, 4, v1")
    a.e("v_lshlrev_b32 v2, 3, v2")
    a.e("v_add_u32 v2, s38, v2")
    for p in range(12):
        a.e("buffer_load_dwordx2 %s, v2, s[52:55], 0 offen offset:%d" % (vr(V_B1 + 2 * p, 2), p * 32))
    a.e("s_lshl_b32 s66, s36, 3")
    a.e("s_add_u32 s66, s66, s39")
    a.e("s_lshl_b32 s66, s66, 2")
    a.e("s_add_u32 s66, s66, s26")
    def hook():
        repack_issue(a, 0)
        repack_issue(a, 1)
    k1_prologue(a, 'H', RB, hook)
    k1_common_init(a, 'H')
    a.e("s_mul_i32 s43, s47, 2")
    repack_finish(a)
    for w in range(1, 4):
        a.e("s_cmp_eq_u32 s26, %d" % w)
        a.e("s_cbranch_scc1 K1_H_W%d" % w)
    for w in range(4):
        a.label("K1_H_W%d" % w)
        k1_loop(a, 'H', 12, [False] * 12, w, RS, "K1_LH%d" % w)
        k1_stats(a, 12, w)
        a.e("s_branch K1_EH")
    a.label("K1_EH")
    k1_epi_h(a)
    stamp(a, 5)
    if STAMPS: a.e("s_waitcnt vmcnt(0)")
    stamp(a, 6)
    stamp_flush(a, 7, 0, 4)
    a.e("s_waitcnt vmcnt(0)")
    a.label("K1_END")
    a.e("s_endpgm")
    return a.text()
```

```python
from common import *
import struct, os
SCQ = os.environ.get("SCQ", "")
SCH = os.environ.get("SCH", " sc1")
def f2u(x): return struct.unpack("<I", struct.pack("<f", x))[0]

V_DMA = 16
V_XD = 8
V_XA = 24
V_TR = 26
V_CUR, V_NXT = 27, 12
V_XC0, V_XC1, V_XN0 = 13, 14, 15
V_ONE = 28
V_XR = 32
V_AD = 48
V_WF = 64
V_RS = 88
V_GR = 96
V_CS = 104
V_ACC = 120
V_B1 = 216
SLOT = 47104
XOFF = 30720
LDS_CS = 3 * SLOT
LDS_ST = LDS_CS + 1024
K1_LDS = LDS_CS + 2048
KBLK = 1536

def k1_setup(a, typ):
    if typ == 'Q':
        CPR, NCH, MUL, RB, RS = 30, 30, 2185, 3840, 480
        srd(a, 32, 6, 640 * 3840)
        a.e("s_mul_i32 s38, s37, 480")
        srd(a, 48, 24, 0xC00000, 0)
    else:
        CPR, NCH, MUL, RB, RS = 26, 24, 2521, 3072, 416
        srd(a, 32, 12, 640 * 3072)
        a.e("s_sub_u32 s39, s37, 8")
        a.e("s_mul_i32 s38, s39, 384")
        srd(a, 48, 24, SZ_H, WS_H)
        srd(a, 52, 14, 1536 * 2)
    a.e("s_lshl_b32 s41, s26, 6")
    a.e("s_mov_b32 s46, %d" % RB)
    for i in range(8):
        d = V_DMA + i
        a.e("v_add_u32 v2, s41, v1")
        if i: a.e("v_add_u32 v2, %d, v2" % (256 * i))
        a.e("v_mul_u32_u24 v3, %d, v2" % MUL)
        a.e("v_lshrrev_b32 v3, 16, v3")
        a.e("v_mul_u32_u24 v4, %d, v3" % CPR)
        a.e("v_sub_u32 v4, v2, v4")
        a.e("v_and_b32 v5, 35, v3")
        a.e("v_bfe_u32 v6, v3, 4, 1")
        a.e("v_lshl_or_b32 v5, v6, 2, v5")
        a.e("v_bfe_u32 v6, v3, 2, 2")
        a.e("v_lshl_or_b32 v5, v6, 3, v5")
        a.e("v_mul_lo_u32 v5, v5, s46")
        a.e("v_min_u32 v4, %d, v4" % (NCH - 1))
        a.e("v_lshl_add_u32 v5, v4, 4, v5")
        a.e("v_add_u32 v%d, s38, v5" % d)
    a.e("v_bfe_u32 v2, v1, 2, 4")
    a.e("v_mul_u32_u24 v2, %d, v2" % RS)
    a.e("v_and_b32 v3, 3, v1")
    a.e("v_lshl_add_u32 v%d, v3, 3, v2" % V_TR)
    a.e("s_mul_i32 s47, s46, 64")
    return RB, RS

def nW(typ, w):
    n = 30 if typ == 'Q' else 26
    return [i for i in range(8) if w + 4 * i < n]

def issue_x(a, c_imm=None):
    for j in range(4):
        a.e("s_add_u32 m0, s42, %d" % (j * 1024))
        a.nop(1)
        a.e("buffer_load_dwordx4 v%d, s[28:31], s44 offen lds" % (V_XD + j))

def k1_prologue(a, typ, RB, hook=None):
    stamp(a, 1)
    n = 30 if typ == 'Q' else 26
    a.e("s_lshl_b32 s41, s26, 10")
    for c in range(2):
        if c == 1:
            if hook: hook()
            a.e("s_add_u32 s42, s74, %d" % SLOT)
            a.e("s_movk_i32 s44, 128")
            issue_x(a)
            a.e("s_movk_i32 s44, 256")
        a.e("s_mul_i32 s43, s47, %d" % c)
        for i in range(8):
            lab = None
            if 4 * i >= n: continue
            if 4 * i + 3 >= n:
                lab = a.newlabel("K1_SK")
                a.e("s_cmp_ge_u32 s26, %d" % (n - 4 * i))
                a.e("s_cbranch_scc1 %s" % lab)
            a.e("s_add_u32 m0, s41, %d" % (c * SLOT + i * 4096))
            a.nop(1)
            a.e("buffer_load_dwordx4 v%d, s[32:35], s43 offen lds" % (V_DMA + i))
            if lab: a.label(lab)
    a.e("s_lshr_b32 s60, s2, 3")
    a.e("v_and_b32 v2, 31, v1")
    a.e("v_lshrrev_b32 v3, 5, v1")
    a.e("s_and_b32 s61, s27, 1")
    a.e("s_lshl_b32 s61, s61, 10")
    a.e("s_lshl_b32 s62, s60, 5")
    a.e("s_add_u32 s61, s61, s62")
    a.e("v_add_u32 v4, s61, v2")
    a.e("v_mul_u32_u24 v4, 1280, v4")
    a.e("s_lshl_b32 s62, s26, 1")
    a.e("s_add_u32 s62, s62, 2")
    a.e("v_add_u32 v5, s62, v3")
    a.e("v_lshl_add_u32 v4, v5, 7, v4")
    a.e("buffer_load_dword v240, v4, s[28:31], 0 offen")
    LPR = 15 if typ == 'Q' else 12
    a.e("s_mul_i32 s61, s60, %d" % (2 * LPR))
    a.e("v_min_u32 v2, %d, v2" % (2 * LPR - 1))
    a.e("v_add_u32 v4, s61, v2")
    a.e("v_mul_u32_u24 v6, %d, v4" % (4370 if LPR == 15 else 5462))
    a.e("v_lshrrev_b32 v6, 16, v6")
    a.e("v_mul_u32_u24 v7, %d, v6" % LPR)
    a.e("v_sub_u32 v7, v4, v7")
    a.e("v_lshl_add_u32 v6, v5, 6, v6")
    a.e("v_mul_lo_u32 v6, v6, s46")
    a.e("v_lshl_add_u32 v6, v7, 7, v6")
    a.e("s_lshr_b32 s61, s27, 1")
    a.e("s_and_b32 s61, s61, 1")
    a.e("s_mul_i32 s61, s61, %d" % (LPR * 128))
    a.e("v_add_u32 v6, s61, v6")
    a.e("buffer_load_dword v241, v6, s[32:35], 0 offen")

def k1_common_init(a, typ):
    for r in range(V_RS, 240 if typ == 'Q' else 216):
        a.e("v_mov_b32 v%d, 0" % r)
    for r in range(4):
        a.e("v_mov_b32 v%d, 0x3f803f80" % (V_ONE + r))

def k1_addr(a, isv):
    a.e("v_and_b32 v2, 15, v1")
    a.e("v_lshrrev_b32 v3, 4, v1")
    a.e("s_mul_i32 s60, s37, 15")
    for p in range(15):
        d = V_AD + p
        a.e("s_add_u32 s61, s60, %d" % p)
        if not isv[p]:
            a.e("s_cmp_ge_u32 s61, 40")
            a.e("s_cselect_b32 s62, 40, 0")
            a.e("s_cselect_b32 s63, 0x%x, 0" % WS_K)
            a.e("s_sub_u32 s61, s61, s62")
            a.e("s_lshl_b32 s61, s61, 2")
            a.e("s_mul_i32 s65, s59, %d" % KBLK)
            a.e("s_add_u32 s63, s63, s65")
            a.e("v_add_u32 v4, s61, v3")
            a.e("v_mul_u32_u24 v5, 205, v4")
            a.e("v_lshrrev_b32 v5, 10, v5")
            a.e("v_mul_u32_u24 v6, 5, v5")
            a.e("v_sub_u32 v6, v4, v6")
            a.e("v_lshrrev_b32 v7, 1, v6")
            a.e("v_lshlrev_b32 v7, 9, v7")
            a.e("v_and_b32 v6, 1, v6")
            a.e("v_lshl_or_b32 v7, v6, 3, v7")
            a.e("v_lshl_add_u32 v7, v2, 4, v7")
            a.e("s_mov_b32 s65, %d" % (64 * KBLK))
            a.e("v_mul_lo_u32 v5, v5, s65")
            a.e("v_add3_u32 v%d, v5, v7, s63" % d)
        else:
            a.e("s_sub_u32 s61, s61, 80")
            a.e("s_lshl_b32 s61, s61, 4")
            a.e("s_lshl_b32 s63, s59, 11")
            a.e("s_add_u32 s63, s63, 0x%x" % WS_V)
            a.e("v_add_u32 v4, s61, v2")
            a.e("v_mul_u32_u24 v5, 3277, v4")
            a.e("v_lshrrev_b32 v5, 16, v5")
            a.e("v_mul_u32_u24 v6, 20, v5")
            a.e("v_sub_u32 v6, v4, v6")
            a.e("v_and_b32 v7, 1, v3")
            a.e("v_lshl_add_u32 v7, v7, 5, v6")
            a.e("v_lshlrev_b32 v7, 4, v7")
            a.e("v_lshrrev_b32 v6, 1, v3")
            a.e("v_lshl_add_u32 v7, v6, 3, v7")
            a.e("v_lshlrev_b32 v5, 17, v5")
            a.e("v_add3_u32 v%d, v5, v7, s63" % d)

def repack(a, phase):
    pass

def k1_loop(a, typ, T, isv, w, RS, lbl):
    NR = 5 if T == 15 else 6
    D = NR - 1
    Wi = nW(typ, w)
    def slotregs(cur_s, nxt_s):
        a.e("v_add_u32 v%d, %s, v%d" % (V_CUR, cur_s, V_TR))
        a.e("v_add_u32 v%d, %s, v%d" % (V_NXT, nxt_s, V_TR))
        a.e("v_add_u32 v%d, %s, v%d" % (V_XC0, cur_s, V_XA))
        a.e("v_add_u32 v%d, %s, v%d" % (V_XC1, cur_s, V_XA + 1))
        a.e("v_add_u32 v%d, %s, v%d" % (V_XN0, nxt_s, V_XA))
    a.e("s_mov_b32 s70, 0"); a.e("s_mov_b32 s71, %d" % SLOT); a.e("s_mov_b32 s72, %d" % (2 * SLOT))
    slotregs("s70", "s71")
    if typ == 'Q':
        a.e("s_waitcnt vmcnt(%d)" % (4 + len(Wi) + 2))
    a.e("s_barrier")
    stamp(a, 2)
    a.e("ds_read_b128 %s, v%d" % (vr(V_XR, 4), V_XC0))
    a.e("ds_read_b128 %s, v%d offset:2048" % (vr(V_XR + 4, 4), V_XC0))
    for p in range(D):
        f = V_WF + (p % NR) * 4
        a.e("ds_read_b64_tr_b16 %s, v%d offset:%d" % (vr(f, 2), V_CUR, p * 32))
        a.e("ds_read_b64_tr_b16 %s, v%d offset:%d" % (vr(f + 2, 2), V_CUR, p * 32 + 16 * RS))
    a.e("s_mov_b32 s45, 0")
    a.label(lbl)
    for ks in range(2):
        xs = V_XR + ks * 8
        xn = V_XR + (1 - ks) * 8
        if ks == 0:
            a.e("s_add_u32 s42, s72, s41")
            a.e("s_add_u32 s73, s72, s74")
        for p in range(T):
            f = V_WF + (p % NR) * 4
            if ks == 1 and p == T - 2:
                a.e("s_waitcnt vmcnt(%d) lgkmcnt(0)" % (4 + len(Wi)))
                a.e("s_barrier")
                a.e("ds_read_b128 %s, v%d" % (vr(xn, 4), V_XN0))
                a.e("ds_read_b128 %s, v%d offset:2048" % (vr(xn + 4, 4), V_XN0))
            elif ks == 1 and p == T - 1:
                pass
            elif ks == 1 and p >= T - D:
                a.e("s_waitcnt lgkmcnt(%d)" % ((T - 1 - p) * 2))
            else:
                a.e("s_waitcnt lgkmcnt(%d)" % ((D - 1) * 2))
            acc0 = V_ACC + p * 8
            dm = None
            if ks == 0 and p >= 1 and p - 1 < len(Wi):
                i = Wi[p - 1]
                a.e("s_add_u32 m0, s42, %d" % (i * 4096)); dm = "buffer_load_dwordx4 v%d, s[32:35], s43 offen lds" % (V_DMA + i)
            if ks == 0 and p >= 9 and p - 9 < 4:
                j = p - 9
                a.e("s_add_u32 m0, s73, %d" % (j * 1024)); dm = "buffer_load_dwordx4 v%d, s[28:31], s44 offen lds" % (V_XD + j)
            if ks == 1 and T == 12 and p == 1:
                a.e("s_add_u32 m0, s73, %d" % (3 * 1024)); dm = "buffer_load_dwordx4 v%d, s[28:31], s44 offen lds" % (V_XD + 3)
            def rdn(tt, rt):
                ff = V_WF + (tt % NR) * 4
                a.e("ds_read_b64_tr_b16 %s, v%d offset:%d" % (vr(ff + 2 * rt, 2), V_NXT, tt * 32 + rt * 16 * RS))
            for rt in range(2):
                acc = acc0 + rt * 4
                x = xs + rt * 4
                if isv[p]:
                    a.e("v_mfma_f32_16x16x32_bf16 %s, %s, %s, %s" % (vr(acc, 4), vr(x, 4), vr(f, 4), vr(acc, 4)))
                else:
                    a.e("v_mfma_f32_16x16x32_bf16 %s, %s, %s, %s" % (vr(acc, 4), vr(f, 4), vr(x, 4), vr(acc, 4)))
                q = p + D
                if ks == 1 and q >= T:
                    if p == T - 2:
                        tts = list(range(D - 1))
                        for tt in (tts[:(D // 2)] if rt == 0 else tts[(D // 2):]):
                            rdn(tt, 0); rdn(tt, 1)
                    elif p == T - 1:
                        rdn(D - 1, rt)
                    continue
                if q < T: base, kk, tt = V_CUR, ks, q
                else: base, kk, tt = V_CUR, 1, q - T
                ff = V_WF + (q % NR) * 4
                off = (32 * kk) * RS + tt * 32 + rt * 16 * RS
                a.e("ds_read_b64_tr_b16 %s, v%d offset:%d" % (vr(ff + 2 * rt, 2), base, off))
            if dm: a.e(dm)
            if p % 4 == w:
                cs = V_CS + (p // 4) * 4
                a.e("v_mfma_f32_16x16x32_bf16 %s, %s, %s, %s" % (vr(cs, 4), vr(f, 4), vr(V_ONE, 4), vr(cs, 4)))
            if p in (5, 7):
                rt = (p - 5) // 2
                x = xs + rt * 4
                a.e("v_mfma_f32_16x16x32_bf16 %s, %s, %s, %s" % (vr(V_RS + rt * 4, 4), vr(V_ONE, 4), vr(x, 4), vr(V_RS + rt * 4, 4)))
            if p in (6, 8):
                rt = (p - 6) // 2
                x = xs + rt * 4
                a.e("v_mfma_f32_16x16x32_bf16 %s, %s, %s, %s" % (vr(V_GR + rt * 4, 4), vr(x, 4), vr(x, 4), vr(V_GR + rt * 4, 4)))
            if ks == 0 and p == T - D - 1:
                a.e("ds_read_b128 %s, v%d" % (vr(xn, 4), V_XC1))
                a.e("ds_read_b128 %s, v%d offset:2048" % (vr(xn + 4, 4), V_XC1))
    a.e("s_add_u32 s43, s43, s47")
    a.e("s_add_u32 s44, s44, 128")
    a.e("s_min_u32 s44, s44, %d" % (9 * 128))
    a.e("s_mov_b32 s75, s70"); a.e("s_mov_b32 s70, s71"); a.e("s_mov_b32 s71, s72"); a.e("s_mov_b32 s72, s75")
    slotregs("s70", "s71")
    a.e("s_add_u32 s45, s45, 1")
    a.e("s_cmp_lt_u32 s45, 10")
    a.e("s_cbranch_scc1 %s" % lbl)

def k1_stats(a, T, w):
    stamp(a, 3)
    a.e("s_waitcnt lgkmcnt(0)")
    a.nop(10)
    a.e("v_and_b32 v2, 15, v1")
    a.e("v_lshrrev_b32 v3, 4, v1")
    a.e("v_lshlrev_b32 v4, 4, v3")
    a.e("v_add_u32 v4, %d, v4" % LDS_CS)
    a.e("v_cmp_eq_u32 vcc, 0, v2")
    a.e("s_and_saveexec_b64 s[56:57], vcc")
    for q in range(4):
        p = 4 * q + w
        if p < T:
            a.e("ds_write_b128 v4, %s offset:%d" % (vr(V_CS + q * 4, 4), p * 64))
    a.e("s_mov_b64 exec, s[56:57]")
    a.e("v_and_b32 v5, 3, v2")
    a.e("v_lshrrev_b32 v6, 2, v2")
    a.e("v_lshlrev_b32 v7, 3, v2")
    a.e("v_add_u32 v7, s58, v7")
    for r in range(1, 4):
        a.e("v_cmp_eq_u32 s[%d:%d], %d, v5" % (60 + 2 * r, 61 + 2 * r, r))
    a.e("v_cmp_eq_u32 vcc, v6, v3")
    a.e("s_and_saveexec_b64 s[56:57], vcc")
    for rt in range(2):
        g = V_GR + rt * 4
        a.e("v_mov_b32 v8, v%d" % g)
        for r in range(1, 4):
            a.e("v_cndmask_b32 v8, v8, v%d, s[%d:%d]" % (g + r, 60 + 2 * r, 61 + 2 * r))
        a.e("v_mul_f32 v9, 0x%x, v%d" % (f2u(1.0 / 640), V_RS + rt * 4))
        a.e("v_mul_f32 v8, 0x%x, v8" % f2u(1.0 / 640))
        a.e("v_fma_f32 v8, -v9, v9, v8")
        a.e("v_max_f32 v8, 0, v8")
        a.e("v_add_f32 v8, 0x%x, v8" % f2u(1e-5))
        a.e("v_rsq_f32 v10, v8")
        a.nop(1)
        a.e("v_mul_f32 v11, v9, v10")
        a.e("v_sub_f32 v11, 0, v11")
        a.e("ds_write_b64 v7, v[10:11] offset:%d" % (rt * 128))
        a.nop(1)
    a.e("s_mov_b64 exec, s[56:57]")
    a.e("s_waitcnt lgkmcnt(0)")
    a.e("s_barrier")
    stamp(a, 4)

def k1_epi_q(a, isv):
    hasq = not all(isv); hasv = any(isv)
    if hasq:
        a.e("v_lshlrev_b32 v7, 3, v2")
        a.e("v_add_u32 v7, s58, v7")
        a.e("ds_read_b64 v[32:33], v7")
        a.e("ds_read_b64 v[34:35], v7 offset:128")
    if hasv:
        a.e("v_lshlrev_b32 v7, 5, v3")
        a.e("v_add_u32 v7, s58, v7")
        a.e("ds_read_b128 v[8:11], v7")
        a.e("ds_read_b128 v[12:15], v7 offset:16")
        a.e("ds_read_b128 v[16:19], v7 offset:128")
        a.e("ds_read_b128 v[20:23], v7 offset:144")
    a.e("v_lshlrev_b32 v4, 4, v3")
    a.e("v_add_u32 v4, %d, v4" % LDS_CS)
    a.e("v_lshlrev_b32 v5, 2, v2")
    a.e("v_add_u32 v5, %d, v5" % LDS_CS)
    a.e("v_mov_b32 v36, 0x3f803f80")
    a.e("v_mov_b32 v37, 0x3f803f80")
    n = len(isv)
    def rd(p):
        tb = 64 + (p % 3) * 8
        if not isv[p]: a.e("ds_read_b128 %s, v4 offset:%d" % (vr(tb, 4), p * 64))
        else: a.e("ds_read_b32 v%d, v5 offset:%d" % (tb, p * 64))
    rd(0); rd(1)
    for p in range(n):
        acc0 = V_ACC + p * 8
        tb = 64 + (p % 3) * 8
        if p + 2 < n: rd(p + 2)
        a.e("s_waitcnt lgkmcnt(%d)" % min(2, n - 1 - p))
        for rt in range(2):
            t = 40 + rt * 4
            if not isv[p]:
                a.e("v_pk_mul_f32 %s, %s, v[32:33] op_sel:[0,1] op_sel_hi:[1,1]" % (vr(t, 2), vr(tb, 2)) if False else "v_mul_f32 v%d, v%d, v%d" % (t, 33 + rt * 2, tb))
                for r in range(1, 4):
                    a.e("v_mul_f32 v%d, v%d, v%d" % (t + r, 33 + rt * 2, tb + r))
                for r in range(4):
                    a.e("v_fma_f32 v%d, v%d, v%d, v%d" % (t + r, acc0 + rt * 4 + r, 32 + rt * 2, t + r))
            else:
                sb = 8 + rt * 8
                for r in range(4):
                    a.e("v_mul_f32 v%d, v%d, v%d" % (t + r, sb + 2 * r + 1, tb))
                for r in range(4):
                    a.e("v_fma_f32 v%d, v%d, v%d, v%d" % (t + r, acc0 + rt * 4 + r, sb + 2 * r, t + r))
            o = tb + 4 + rt * 2
            a.e("v_cvt_pk_bf16_f32 v%d, v%d, v%d" % (o, t, t + 1))
            a.e("v_cvt_pk_bf16_f32 v%d, v%d, v%d" % (o + 1, t + 2, t + 3))
            a.e("buffer_store_dwordx2 %s, v%d, s[48:51], 0 offen offset:%d%s" % (vr(o, 2), V_AD + p, rt * (1024 if isv[p] else 256), SCQ))
        if isv[p]:
            a.e("v_bfe_u32 v38, v%d, 4, 5" % (V_AD + p))
            a.e("v_cmp_eq_u32 vcc, 0, v38")
            a.e("s_and_saveexec_b64 s[66:67], vcc")
            a.e("buffer_store_dwordx2 v[36:37], v%d, s[48:51], 0 offen offset:320%s" % (V_AD + p, SCQ))
            a.e("buffer_store_dwordx2 v[36:37], v%d, s[48:51], 0 offen offset:1344%s" % (V_AD + p, SCQ))
            a.e("s_mov_b64 exec, s[66:67]")

def k1_epi_h(a):
    a.e("v_lshlrev_b32 v7, 3, v2")
    a.e("v_add_u32 v7, s58, v7")
    a.e("ds_read_b64 v[32:33], v7")
    a.e("ds_read_b64 v[34:35], v7 offset:128")
    a.e("v_lshlrev_b32 v4, 4, v3")
    a.e("v_add_u32 v4, %d, v4" % LDS_CS)
    a.e("s_lshl_b32 s60, s59, 1")
    a.e("s_mul_i32 s60, s60, 48")
    a.e("s_mul_i32 s61, s39, 6")
    a.e("s_add_u32 s60, s60, s61")
    a.e("s_lshl_b32 s60, s60, 10")
    a.e("v_lshlrev_b32 v6, 4, v1")
    a.e("v_add_u32 v6, s60, v6")
    a.e("v_add_u32 v7, %d, v6" % (48 * 1024))
    for i in range(6):
        tb = 64 + (i % 2) * 16
        if i == 4:
            a.e("v_add_u32 v6, 0x1000, v6")
            a.e("v_add_u32 v7, 0x1000, v7")
        a.e("ds_read_b128 %s, v4 offset:%d" % (vr(tb, 4), (2 * i) * 64))
        a.e("ds_read_b128 %s, v4 offset:%d" % (vr(tb + 4, 4), (2 * i + 1) * 64))
        for t in range(2):
            b = V_B1 + (2 * i + t) * 2
            a.e("v_lshlrev_b32 v%d, 16, v%d" % (36 + t * 4, b))
            a.e("v_and_b32 v%d, 0xffff0000, v%d" % (37 + t * 4, b))
            a.e("v_lshlrev_b32 v%d, 16, v%d" % (38 + t * 4, b + 1))
            a.e("v_and_b32 v%d, 0xffff0000, v%d" % (39 + t * 4, b + 1))
        a.e("s_waitcnt lgkmcnt(0)")
        for rt in range(2):
            for t in range(2):
                acc = V_ACC + (2 * i + t) * 8 + rt * 4
                for r in range(4):
                    a.e("v_fma_f32 v%d, v%d, v%d, v%d" % (44 + t * 4 + r, 33 + rt * 2, tb + t * 4 + r, 36 + t * 4 + r))
                for r in range(4):
                    a.e("v_fma_f32 v%d, v%d, v%d, v%d" % (44 + t * 4 + r, acc + r, 32 + rt * 2, 44 + t * 4 + r))
                for r in range(4):
                    a.e("v_max_f32 v%d, 0, v%d" % (44 + t * 4 + r, 44 + t * 4 + r))
                for r in range(4):
                    a.e("v_mul_f32 v%d, v%d, v%d" % (44 + t * 4 + r, 44 + t * 4 + r, 44 + t * 4 + r))
            o = tb + 8 + rt * 4
            for q in range(4):
                a.e("v_cvt_pk_bf16_f32 v%d, v%d, v%d" % (o + q, 44 + 2 * q, 45 + 2 * q))
            a.e("buffer_store_dwordx4 %s, v%d, s[48:51], 0 offen offset:%d%s" % (vr(o, 4), 6 + rt, (i % 4) * 1024, SCH))

def repack_issue(a, X):
    L = a.newlabel("K1_RP")
    su = 92
    a.e("s_add_u32 s%d, s66, %d" % (su, 512 * X))
    a.e("s_mov_b32 s%d, -1" % (94 + X))
    a.e("s_cmp_ge_u32 s%d, 680" % su)
    a.e("s_cbranch_scc1 %s" % L)
    a.e("s_cmp_ge_u32 s%d, 480" % su)
    a.e("s_cselect_b32 s84, s8, s16")
    a.e("s_cselect_b32 s85, s9, s17")
    a.e("s_mov_b32 s86, %d" % (1536 * 1280))
    a.e("s_cselect_b32 s86, %d, s86" % (640 * 1280))
    a.e("s_cselect_b32 s93, 480, 0")
    a.e("s_cselect_b32 s%d, 0x%x, 0" % (94 + X, WS_WOF - WS_W2F))
    a.e("s_cselect_b64 vcc, -1, 0")
    a.e("s_mov_b32 s87, 0x00020000")
    a.e("s_sub_u32 s68, s%d, s93" % su)
    a.e("v_lshrrev_b32 v2, 3, v1")
    a.e("s_mul_i32 s69, s68, 6554")
    a.e("s_lshr_b32 s69, s69, 16")
    a.e("s_mul_i32 s76, s69, 10")
    a.e("s_sub_u32 s76, s68, s76")
    a.e("s_mul_i32 s77, s69, 40960")
    a.e("s_lshl_b32 s78, s76, 7")
    a.e("s_add_u32 s77, s77, s78")
    a.e("v_and_b32 v3, 7, v1")
    a.e("s_lshl_b32 s93, s26, 13")
    a.e("s_add_u32 s93, s93, %d" % (2 * SLOT + X * 4096))
    for j in range(4):
        a.e("v_add_u32 v4, %d, v2" % (8 * j))
        a.e("v_and_b32 v5, 3, v4")
        a.e("v_bfe_u32 v6, v4, 4, 1")
        a.e("v_lshl_or_b32 v5, v6, 2, v5")
        a.e("v_bfe_u32 v6, v4, 2, 2")
        a.e("v_lshl_or_b32 v5, v6, 3, v5")
        a.e("v_cndmask_b32 v4, v4, v5, vcc")
        a.e("v_mul_u32_u24 v4, 1280, v4")
        a.e("v_lshl_add_u32 v4, v3, 4, v4")
        a.e("s_add_u32 m0, s93, %d" % (j * 1024))
        a.nop(1)
        a.e("buffer_load_dwordx4 v4, s[84:87], s77 offen lds")
    a.e("s_mul_i32 s77, s69, 40")
    a.e("s_lshl_b32 s78, s76, 2")
    a.e("s_add_u32 s77, s77, s78")
    a.e("s_lshl_b32 s77, s77, 10")
    a.e("s_add_u32 s%d, s%d, s77" % (94 + X, 94 + X))
    a.label(L)

def repack_finish(a):
    srd(a, 88, 24, WS_WOF - WS_W2F + SZ_WOF, WS_W2F)
    a.e("v_bfe_u32 v2, v1, 2, 4")
    a.e("v_lshlrev_b32 v2, 7, v2")
    a.e("v_and_b32 v3, 3, v1")
    a.e("v_lshl_add_u32 v2, v3, 3, v2")
    a.e("s_lshl_b32 s93, s26, 13")
    a.e("s_add_u32 s93, s93, %d" % (2 * SLOT))
    a.e("v_add_u32 v2, s93, v2")
    a.e("v_lshlrev_b32 v3, 4, v1")
    a.e("s_waitcnt vmcnt(12)")
    for X in range(2):
        L = a.newlabel("K1_RF")
        a.e("s_cmp_eq_u32 s%d, -1" % (94 + X))
        a.e("s_cbranch_scc1 %s" % L)
        for ct in range(4):
            a.e("ds_read_b64_tr_b16 %s, v2 offset:%d" % (vr(64 + ct * 4, 2), X * 4096 + ct * 32))
            a.e("ds_read_b64_tr_b16 %s, v2 offset:%d" % (vr(66 + ct * 4, 2), X * 4096 + ct * 32 + 2048))
        a.e("s_waitcnt lgkmcnt(0)")
        for ct in range(4):
            a.e("buffer_store_dwordx4 %s, v3, s[88:91], s%d offen offset:%d%s" % (vr(64 + ct * 4, 4), 94 + X, ct * 1024, SCH))
        a.nop(2)
        a.label(L)

def gen_k1():
    a = Asm()
    a.e("s_cmp_ge_u32 s2, 256")
    a.e("s_cbranch_scc1 K1_END")
    load_args(a)
    a.e("v_and_b32 v1, 63, v0")
    a.e("v_lshrrev_b32 v2, 6, v0")
    a.nop(1)
    a.e("v_readfirstlane_b32 s26, v2")
    a.e("s_and_b32 s27, s2, 7")
    a.e("s_lshr_b32 s3, s2, 3")
    a.e("s_and_b32 s36, s27, 1")
    a.e("s_lshl_b32 s36, s36, 3")
    a.e("s_and_b32 s37, s3, 7")
    a.e("s_add_u32 s36, s36, s37")
    a.e("s_lshr_b32 s37, s27, 1")
    a.e("s_lshl_b32 s37, s37, 2")
    a.e("s_lshr_b32 s3, s3, 3")
    a.e("s_add_u32 s37, s37, s3")
    a.e("s_lshl_b32 s59, s36, 2")
    a.e("s_add_u32 s59, s59, s26")
    a.e("s_lshl_b32 s58, s26, 8")
    a.e("s_add_u32 s58, s58, %d" % LDS_ST)
    a.e("v_lshrrev_b32 v2, 3, v1")
    a.e("v_and_b32 v3, 7, v1")
    a.e("s_lshl_b32 s3, s59, 5")
    for j in range(4):
        a.e("v_add_u32 v4, %d, v2" % (8 * j))
        a.e("v_bfe_u32 v5, v4, 1, 3")
        a.e("v_xor_b32 v5, v3, v5")
        a.e("v_add_u32 v4, s3, v4")
        a.e("v_mul_u32_u24 v4, 1280, v4")
        a.e("v_lshl_add_u32 v%d, v5, 4, v4" % (V_XD + j))
    a.e("v_and_b32 v2, 15, v1")
    a.e("v_lshrrev_b32 v3, 4, v1")
    a.e("v_lshrrev_b32 v4, 1, v2")
    a.e("v_xor_b32 v4, v3, v4")
    a.e("v_xor_b32 v5, 4, v4")
    a.e("s_lshl_b32 s3, s26, 12")
    a.e("s_add_u32 s74, s3, %d" % XOFF)
    a.e("v_lshlrev_b32 v2, 7, v2")
    a.e("v_add_u32 v2, s74, v2")
    a.e("v_lshl_add_u32 v%d, v4, 4, v2" % V_XA)
    a.e("v_lshl_add_u32 v%d, v5, 4, v2" % (V_XA + 1))
    a.e("s_waitcnt lgkmcnt(0)")
    stamp(a, 0)
    srd(a, 28, 4, 2048 * 1280)
    LZ = a.newlabel("K1_NZ")
    a.e("s_cmp_lg_u32 s2, 255")
    a.e("s_cbranch_scc1 %s" % LZ)
    srd(a, 32, 24, 4096, 0x2200000)
    a.e("s_lshl_b32 s3, s26, 10")
    a.e("v_lshlrev_b32 v2, 4, v1")
    a.e("v_add_u32 v2, s3, v2")
    for r in range(4):
        a.e("v_mov_b32 v%d, 0" % (4 + r))
    a.e("buffer_store_dwordx4 v[4:7], v2, s[32:35], 0 offen")
    a.nop(2)
    a.label(LZ)
    a.e("s_mov_b32 s42, s74")
    a.e("s_movk_i32 s44, 0")
    issue_x(a)
    a.e("s_cmp_ge_u32 s37, 8")
    a.e("s_cbranch_scc1 K1_H")
    RB, RS = k1_setup(a, 'Q')
    k1_prologue(a, 'Q', RB)
    k1_common_init(a, 'Q')
    a.e("s_mul_i32 s43, s47, 2")
    variants = {"A": [False] * 15, "B": [False] * 5 + [True] * 10, "C": [True] * 15}
    a.e("s_cmp_eq_u32 s37, 5")
    a.e("s_cbranch_scc1 K1_VB")
    a.e("s_cmp_gt_u32 s37, 5")
    a.e("s_cbranch_scc1 K1_VC")
    for vn in "ABC":
        a.label("K1_V%s" % vn)
        k1_addr(a, variants[vn])
        for w in range(1, 4):
            a.e("s_cmp_eq_u32 s26, %d" % w)
            a.e("s_cbranch_scc1 K1_V%s_W%d" % (vn, w))
        for w in range(4):
            a.label("K1_V%s_W%d" % (vn, w))
            k1_loop(a, 'Q', 15, variants[vn], w, RS, "K1_L%s%d" % (vn, w))
            k1_stats(a, 15, w)
            a.e("s_branch K1_E%s" % vn)
        a.label("K1_E%s" % vn)
        k1_epi_q(a, variants[vn])
        stamp(a, 5)
        if STAMPS: a.e("s_waitcnt vmcnt(0)")
        stamp(a, 6)
        stamp_flush(a, 7, 0, 4)
        a.e("s_waitcnt vmcnt(0)")
        a.e("s_endpgm")
    a.label("K1_H")
    RB, RS = k1_setup(a, 'H')
    a.e("v_lshrrev_b32 v2, 4, v1")
    a.e("v_lshlrev_b32 v2, 3, v2")
    a.e("v_add_u32 v2, s38, v2")
    for p in range(12):
        a.e("buffer_load_dwordx2 %s, v2, s[52:55], 0 offen offset:%d" % (vr(V_B1 + 2 * p, 2), p * 32))
    a.e("s_lshl_b32 s66, s36, 3")
    a.e("s_add_u32 s66, s66, s39")
    a.e("s_lshl_b32 s66, s66, 2")
    a.e("s_add_u32 s66, s66, s26")
    def hook():
        repack_issue(a, 0)
        repack_issue(a, 1)
    k1_prologue(a, 'H', RB, hook)
    k1_common_init(a, 'H')
    a.e("s_mul_i32 s43, s47, 2")
    repack_finish(a)
    for w in range(1, 4):
        a.e("s_cmp_eq_u32 s26, %d" % w)
        a.e("s_cbranch_scc1 K1_H_W%d" % w)
    for w in range(4):
        a.label("K1_H_W%d" % w)
        k1_loop(a, 'H', 12, [False] * 12, w, RS, "K1_LH%d" % w)
        k1_stats(a, 12, w)
        a.e("s_branch K1_EH")
    a.label("K1_EH")
    k1_epi_h(a)
    stamp(a, 5)
    if STAMPS: a.e("s_waitcnt vmcnt(0)")
    stamp(a, 6)
    stamp_flush(a, 7, 0, 4)
    a.e("s_waitcnt vmcnt(0)")
    a.label("K1_END")
    a.e("s_endpgm")
    return a.text()
```

```python
from common import *
import struct
def f2u(x): return struct.unpack("<I", struct.pack("<f", x))[0]
NEG = f2u(-1e30)
LOG2E = f2u(1.4426950408889634)
QS = 1.4426950408889634 * (20.0 ** -0.5)
KBLK = 1280

def decode_gemm(a):
    a.e("s_and_b32 s27, s2, 7")
    a.e("s_lshr_b32 s3, s2, 3")
    a.e("s_and_b32 s36, s27, 3")
    a.e("s_lshl_b32 s36, s36, 3")
    a.e("s_lshr_b32 s37, s3, 2")
    a.e("s_add_u32 s36, s36, s37")
    a.e("s_lshr_b32 s37, s27, 2")
    a.e("s_lshl_b32 s37, s37, 2")
    a.e("s_and_b32 s3, s3, 3")
    a.e("s_add_u32 s37, s37, s3")

WS_FLAG = 0x2200000
def gemm2(a):
    NS = 48
    NST = 12
    V_XO = 7
    ACC, RING = 16, 96
    stamp(a, 0)
    decode_gemm(a)
    srd(a, 28, 24, SZ_H, WS_H)
    srd(a, 32, 24, SZ_W2F, WS_W2F)
    srd(a, 48, 4, 2048 * 1280)
    srd(a, 52, 18, 1280)
    srd(a, 56, 20, 2048 * 1280)
    a.e("s_mul_i32 s38, s37, 160")
    a.e("v_lshlrev_b32 v%d, 4, v1" % V_XO)
    a.e("v_add_u32 v8, 0x1000, v%d" % V_XO)
    a.e("s_mul_i32 s39, s26, 20480")
    a.e("s_mul_i32 s45, s26, %d" % NST)
    a.e("s_mul_i32 s40, s45, 40")
    a.e("s_mul_i32 s41, s37, 5")
    a.e("s_add_u32 s40, s40, s41")
    a.e("s_lshl_b32 s40, s40, 10")
    for t in range(4):
        a.e("s_lshl_b32 s%d, s36, 2" % (41 + t))
        a.e("s_add_u32 s%d, s%d, %d" % (41 + t, 41 + t, t))
        a.e("s_mul_i32 s%d, s%d, %d" % (41 + t, 41 + t, NS))
        a.e("s_add_u32 s%d, s%d, s45" % (41 + t, 41 + t))
        a.e("s_lshl_b32 s%d, s%d, 10" % (41 + t, 41 + t))
    def LD(st):
        base = RING + (st % 4) * 36
        if st > 0: a.e("s_add_u32 s40, s40, 40960")
        for ct in range(5):
            if ct < 4:
                a.vmem("buffer_load_dwordx4 %s, v%d, s[32:35], s40 offen offset:%d" % (vr(base + 16 + ct * 4, 4), V_XO, ct * 1024), "W%d_%d" % (st, ct))
            else:
                a.vmem("buffer_load_dwordx4 %s, v8, s[32:35], s40 offen" % (vr(base + 16 + ct * 4, 4)), "W%d_%d" % (st, ct))
            if ct == 0:
                for t in range(4):
                    if st > 0: a.e("s_add_u32 s%d, s%d, 1024" % (41 + t, 41 + t))
                    a.vmem("buffer_load_dwordx4 %s, v%d, s[28:31], s%d offen" % (vr(base + t * 4, 4), V_XO, 41 + t), "X%d" % st)
    stamp(a, 1)
    for st in range(min(4, NST)):
        LD(st)
    EP = 240
    XR = lambda ct: EP + 10 + ct * 2 if ct < 3 else 2 + (ct - 3) * 2
    a.e("v_lshrrev_b32 v9, 4, v1")
    a.e("v_and_b32 v15, 15, v1")
    a.e("s_lshl_b32 s47, s36, 6")
    a.e("s_lshl_b32 s46, s26, 4")
    a.e("s_add_u32 s47, s47, s46")
    a.e("v_add_u32 v14, s47, v15")
    a.e("v_mul_u32_u24 v14, 1280, v14")
    a.e("v_lshl_add_u32 v14, v9, 3, v14")
    a.e("v_add_u32 v14, s38, v14")
    a.e("v_lshlrev_b32 v10, 3, v9")
    a.e("v_add_u32 v10, s38, v10")
    for r in range(ACC, ACC + 80):
        a.e("v_mov_b32 v%d, 0" % r)
    stamp(a, 2)
    stamp(a, 3)
    def EPL():
        for ct in range(5):
            a.vmem("buffer_load_dwordx2 %s, v10, s[52:55], 0 offen offset:%d" % (vr(EP + ct * 2, 2), ct * 32), "EP")
        for ct in range(5):
            a.vmem("buffer_load_dwordx2 %s, v14, s[48:51], 0 offen offset:%d" % (vr(XR(ct), 2), ct * 32), "EP")
    for st in range(NST):
        base = RING + (st % 4) * 36
        for ct in range(5):
            a.wait_vm(["W%d_%d" % (st, ct), "X%d" % st])
            for rt in range(4):
                acc = ACC + (rt * 5 + ct) * 4
                a.e("v_mfma_f32_16x16x32_bf16 %s, %s, %s, %s" % (vr(acc, 4), vr(base + 16 + ct * 4, 4), vr(base + rt * 4, 4), vr(acc, 4)))
        if st + 4 < NST: LD(st + 4)
        if st == NST - 5: EPL()
    stamp(a, 4)
    a.nop(10)
    a.e("v_lshlrev_b32 v10, 4, v1")
    a.e("v_add_u32 v11, s39, v10")
    for t in range(20):
        a.e("ds_write_b128 v11, %s offset:%d" % (vr(ACC + t * 4, 4), t * 1024))
    a.e("s_waitcnt lgkmcnt(0)")
    a.e("s_barrier")
    stamp(a, 5)
    a.lg = []
    a.e("s_mul_i32 s46, s26, 5120")
    a.e("v_add_u32 v11, s46, v10")
    a.e("v_add_u32 v12, 0xa000, v11")
    a.e("v_add_u32 v13, 0x14000, v11")
    a.e("v_add_u32 v15, 0x1e000, v11")
    AD = [11, 12, 13, 15]
    def RD(ct):
        for sw in range(8):
            a.lds("ds_read_b128 %s, v%d offset:%d" % (vr(16 + ct * 32 + sw * 4, 4), AD[sw // 2], (sw % 2) * 20480 + ct * 1024), "R%d" % ct)
    RD(0)
    a.wait_vm("EP")
    for ct in range(5):
        if ct + 1 < 5: RD(ct + 1)
        a.wait_lg("R%d" % ct)
        b = 16 + ct * 32
        for h in (0, 16):
            for r in range(4):
                a.e("v_add_f32 v%d, v%d, v%d" % (b + h + r, b + h + r, b + h + 4 + r))
                a.e("v_add_f32 v%d, v%d, v%d" % (b + h + 8 + r, b + h + 8 + r, b + h + 12 + r))
            for r in range(4):
                a.e("v_add_f32 v%d, v%d, v%d" % (b + h + r, b + h + r, b + h + 8 + r))
        e = EP + ct * 2
        a.e("v_lshlrev_b32 v%d, 16, v%d" % (b + 4, e))
        a.e("v_and_b32 v%d, 0xffff0000, v%d" % (b + 5, e))
        a.e("v_lshlrev_b32 v%d, 16, v%d" % (b + 6, e + 1))
        a.e("v_and_b32 v%d, 0xffff0000, v%d" % (b + 7, e + 1))
        for r in range(4):
            a.e("v_add_f32 v%d, v%d, v%d" % (b + r, b + r, b + 4 + r))
        for r in range(4):
            a.e("v_mul_f32 v%d, 0x%x, v%d" % (b + 4 + r, LOG2E ^ 0x80000000, b + r))
        for r in range(4):
            a.e("v_exp_f32 v%d, v%d" % (b + 4 + r, b + 4 + r))
        e2 = XR(ct)
        a.e("v_lshlrev_b32 v%d, 16, v%d" % (b + 8, e2))
        a.e("v_and_b32 v%d, 0xffff0000, v%d" % (b + 9, e2))
        a.e("v_lshlrev_b32 v%d, 16, v%d" % (b + 10, e2 + 1))
        a.e("v_and_b32 v%d, 0xffff0000, v%d" % (b + 11, e2 + 1))
        for r in range(4):
            a.e("v_add_f32 v%d, 1.0, v%d" % (b + 4 + r, b + 4 + r))
        for r in range(4):
            a.e("v_rcp_f32 v%d, v%d" % (b + 4 + r, b + 4 + r))
        a.nop(1)
        for r in range(4):
            a.e("v_mul_f32 v%d, v%d, v%d" % (b + r, b + r, b + 4 + r))
        for r in range(4):
            a.e("v_fma_f32 v%d, v%d, v%d, v%d" % (b + r, b + r, b + 16 + r, b + 8 + r))
        a.e("v_cvt_pk_bf16_f32 v%d, v%d, v%d" % (b + 12, b, b + 1))
        a.e("v_cvt_pk_bf16_f32 v%d, v%d, v%d" % (b + 13, b + 2, b + 3))
        a.e("buffer_store_dwordx2 %s, v14, s[56:59], 0 offen offset:%d" % (vr(b + 12, 2), ct * 32))
    stamp(a, 6)
    if STAMPS: a.e("s_waitcnt vmcnt(0)")
    stamp(a, 7)
    stamp_flush(a, 8, 1, 8)
    a.e("s_endpgm")

def attention(a):
    a.e("s_setprio 3")
    O, S = 16, 32
    K0, K1, V = 80, 120, 132
    Q = 212
    T = 228
    srd(a, 28, 24, SZ_QK, WS_Q)
    srd(a, 32, 24, SZ_QK, WS_K)
    srd(a, 96, 24, SZ_V, WS_V)
    srd(a, 40, 24, SZ_O, WS_O)
    decode_gemm(a)
    a.e("s_lshl_b32 s44, s37, 2")
    a.e("s_add_u32 s44, s44, s26")
    a.e("s_sub_u32 s44, s44, 4")
    a.e("s_lshl_b32 s45, s36, 1")
    stamp(a, 0)
    a.e("v_lshlrev_b32 v8, 4, v1")
    a.e("v_and_b32 v12, 31, v1")
    a.e("v_lshrrev_b32 v13, 5, v1")
    a.e("v_mov_b32 v11, 0x%x" % OOB)
    a.e("v_lshlrev_b32 v9, 3, v12")
    a.e("v_add_u32 v9, 1024, v9")
    a.e("v_cmp_gt_u32 vcc, 32, v1")
    a.e("v_mul_u32_u24 v2, %d, v13" % KBLK)
    a.e("v_add_u32 v2, v9, v2")
    a.e("v_cndmask_b32 v3, v11, v9, vcc")
    a.e("v_cndmask_b32 v4, v9, v11, vcc")
    a.e("v_cmp_ge_u32 vcc, 20, v12")
    a.e("s_lshl_b32 s47, s44, 6")
    a.e("s_add_u32 s48, s47, s45")
    a.e("v_cndmask_b32 v10, v11, v8, vcc")
    for u in range(2):
        a.e("s_add_u32 s49, s48, %d" % u)
        a.e("s_mul_i32 s49, s49, %d" % KBLK)
        a.vmem("buffer_load_dwordx4 %s, v8, s[28:31], s49 offen" % vr(Q + 8 * u, 4), "Q%d" % u)
        a.vmem("buffer_load_dwordx2 %s, v3, s[28:31], s49 offen" % vr(Q + 8 * u + 4, 2), "Q%d" % u)
        a.vmem("buffer_load_dwordx2 %s, v4, s[28:31], s49 offen" % vr(Q + 8 * u + 6, 2), "Q%d" % u)
    for b in range(10):
        a.e("s_add_i32 s49, s45, %d" % (b - 8))
        if b % 2 == 0:
            a.e("s_add_i32 s50, s49, s47")
            a.e("s_mul_i32 s50, s50, %d" % KBLK)
            a.e("v_add_u32 v5, s50, v2")
            a.vmem("buffer_load_dwordx2 %s, v5, s[32:35], 0 offen" % vr(K1 + b, 2), "K%d" % b)
        a.e("s_max_i32 s49, s49, 0")
        a.e("s_add_u32 s49, s49, s47")
        a.e("s_mul_i32 s50, s49, %d" % KBLK)
        a.vmem("buffer_load_dwordx4 %s, v8, s[32:35], s50 offen" % vr(K0 + 4 * b, 4), "K%d" % b)
    for b in range(10):
        a.e("s_add_i32 s49, s45, %d" % (b - 8))
        a.e("s_max_i32 s49, s49, 0")
        a.e("s_add_u32 s49, s49, s47")
        a.e("s_lshl_b32 s50, s49, 11")
        a.vmem("buffer_load_dwordx4 %s, v10, s[96:99], s50 offen" % vr(V + 8 * b, 4), "V%d" % b)
        a.vmem("buffer_load_dwordx4 %s, v10, s[96:99], s50 offen offset:1024" % vr(V + 8 * b + 4, 4), "V%d" % b)
    a.e("v_lshlrev_b32 v14, 2, v13")
    a.e("v_sub_u32 v14, v12, v14")
    for r in range(16):
        c = (r & 3) + 8 * (r >> 2)
        a.e("v_cmp_le_i32 s[%d:%d], %d, v14" % (64 + 2 * r, 65 + 2 * r, c))
    a.e("v_mov_b32 v%d, 0x%x" % (T, NEG))
    a.e("v_mov_b32 v%d, 0" % (T + 1))
    a.e("v_mov_b32 v%d, 0x%x" % (T + 7, f2u(-1e20)))
    a.e("s_mov_b32 s51, 0x%x" % f2u(QS))
    VM, VMO, VT1, VT2, VNM = T + 2, T + 3, T + 4, T + 5, T + 6
    stamp(a, 1)
    for u in range(2):
        q0, qlo, qhi = Q + 8 * u, Q + 8 * u + 4, Q + 8 * u + 6
        for ch in range(3):
            blocks = [u + 3 * ch + i for i in range(3)]
            for i, b in enumerate(blocks):
                sb = S + 16 * i
                rel = b - u
                if rel == 0:
                    for r in range(16):
                        a.e("v_cndmask_b32 v%d, v%d, v%d, s[%d:%d]" % (sb + r, T + 1, T, 64 + 2 * r, 65 + 2 * r))
                if rel == 8:
                    for r in range(16):
                        a.e("v_cndmask_b32 v%d, v%d, v%d, s[%d:%d]" % (sb + r, T, T + 1, 64 + 2 * r, 65 + 2 * r))
            for i, b in enumerate(blocks):
                sb = S + 16 * i
                rel = b - u
                a.wait_vm(["K%d" % b, "K%d" % (b - b % 2), "Q%d" % u])
                if rel < 8:
                    L1 = a.newlabel("AT_INV"); L2 = a.newlabel("AT_NXT")
                    a.e("s_add_i32 s49, s45, %d" % (b - 8))
                    a.e("s_cmp_lt_i32 s49, 0")
                    a.e("s_cbranch_scc1 %s" % L1)
                c = vr(sb, 16) if rel in (0, 8) else "0"
                a.e("v_mfma_f32_32x32x16_bf16 %s, %s, %s, %s" % (vr(sb, 16), vr(K0 + 4 * b, 4), vr(q0, 4), c))
                a.e("v_mfma_f32_32x32x8_bf16 %s, %s, %s, %s" % (vr(sb, 16), vr(K1 + (b - b % 2), 2), vr(qlo if b % 2 == 0 else qhi, 2), vr(sb, 16)))
                if rel < 8:
                    a.e("s_branch %s" % L2)
                    a.label(L1)
                    for r in range(16):
                        a.e("v_mov_b32 v%d, v%d" % (sb + r, T))
                    a.label(L2)
            n = 48
            a.nop(8)
            a.e("v_max3_f32 v%d, v%d, v%d, v%d" % (VM, S, S + 1, S + 2))
            a.e("v_max3_f32 v%d, v%d, v%d, v%d" % (VT1, S + 3, S + 4, S + 5))
            rr = list(range(6, n)); tgl = 0
            while rr:
                d = VM if tgl == 0 else VT1
                a.e("v_max3_f32 v%d, v%d, v%d, v%d" % (d, d, S + rr[0], S + rr[1])); rr = rr[2:]
                tgl ^= 1
            if ch > 0:
                a.e("v_max3_f32 v%d, v%d, v%d, v%d" % (VM, VM, VT1, VMO))
            else:
                a.e("v_max3_f32 v%d, v%d, v%d, v%d" % (VM, VM, VT1, T + 7))
            a.e("v_mov_b32 v%d, v%d" % (VT1, VM))
            a.nop(2)
            a.e("v_permlane32_swap_b32 v%d, v%d" % (VM, VT1))
            a.nop(1)
            a.e("v_max_f32 v%d, v%d, v%d" % (VM, VM, VT1))
            a.e("v_mul_f32 v%d, s51, v%d" % (VNM, VM))
            a.e("v_sub_f32 v%d, 0, v%d" % (VNM, VNM))
            if ch > 0:
                a.e("v_sub_f32 v%d, v%d, v%d" % (VT2, VNM, T + 14))
                a.e("v_exp_f32 v%d, v%d" % (VT2, VT2))
                a.nop(1)
                for r in range(12):
                    a.e("v_mul_f32 v%d, v%d, v%d" % (O + r, VT2, O + r))
            a.e("v_mov_b32 v%d, v%d" % (VMO, VM))
            a.e("v_mov_b32 v%d, v%d" % (T + 14, VNM))
            for i, b in enumerate(blocks):
                sb = S + 16 * i
                for r in range(16):
                    a.e("v_fma_f32 v%d, v%d, s51, v%d" % (sb + r, sb + r, VNM))
                for r in range(16):
                    a.e("v_exp_f32 v%d, v%d" % (sb + r, sb + r))
                a.nop(1)
                for r in range(8):
                    a.e("v_cvt_pk_bf16_f32 v%d, v%d, v%d" % (sb + r, sb + 2 * r, sb + 2 * r + 1))
                a.wait_vm("V%d" % b)
                a.nop(1)
                c = "0" if (ch == 0 and i == 0) else vr(O, 16)
                a.e("v_mfma_f32_32x32x16_bf16 %s, %s, %s, %s" % (vr(O, 16), vr(V + 8 * b, 4), vr(sb, 4), c))
                a.e("v_mfma_f32_32x32x16_bf16 %s, %s, %s, %s" % (vr(O, 16), vr(V + 8 * b + 4, 4), vr(sb + 4, 4), vr(O, 16)))
            if ch < 2: a.nop(4)
        a.nop(14)
        a.e("v_mov_b32 v%d, v%d" % (VT1, O + 8))
        a.e("v_mov_b32 v%d, v%d" % (VT2, O + 8))
        a.nop(2)
        a.e("v_permlane32_swap_b32 v%d, v%d" % (VT1, VT2))
        a.nop(1)
        a.e("v_rcp_f32 v%d, v%d" % (VT2, VT2))
        a.nop(1)
        for r in range(12):
            a.e("v_mul_f32 v%d, v%d, v%d" % (O + r, VT2, O + r))
        PK = T + 8
        for i in range(6):
            a.e("v_cvt_pk_bf16_f32 v%d, v%d, v%d" % (PK + i, O + 2 * i, O + 2 * i + 1))
        A0, A1, A2, A3 = T + 16, T + 17, T + 18, T + 19
        a.e("s_add_u32 s49, s45, %d" % u)
        a.e("s_lshl_b32 s49, s49, 1")
        a.e("v_lshrrev_b32 v%d, 4, v12" % A0)
        a.e("v_add_u32 v%d, s49, v%d" % (A0, A0))
        a.e("v_mul_u32_u24 v%d, 20, v%d" % (A0, A0))
        a.e("v_and_b32 v%d, 15, v12" % A1)
        a.e("s_mul_i32 s49, s44, 5")
        for i in range(3):
            a.e("v_add_u32 v%d, s49, v13" % A2)
            if i: a.e("v_add_u32 v%d, %d, v%d" % (A2, 2 * i, A2))
            a.e("v_lshrrev_b32 v%d, 3, v%d" % (A3, A2))
            a.e("v_add_u32 v%d, v%d, v%d" % (A3, A0, A3))
            a.e("v_lshlrev_b32 v%d, 10, v%d" % (A3, A3))
            a.e("v_bfe_u32 v%d, v%d, 1, 2" % (T + 20, A2))
            a.e("v_lshl_add_u32 v%d, v%d, 4, v%d" % (T + 20, T + 20, A1))
            a.e("v_lshl_add_u32 v%d, v%d, 4, v%d" % (A3, T + 20, A3))
            a.e("v_and_b32 v%d, 1, v%d" % (T + 20, A2))
            a.e("v_lshl_add_u32 v%d, v%d, 3, v%d" % (A3, T + 20, A3))
            if i == 2:
                a.e("v_cmp_eq_u32 vcc, 0, v13")
                a.nop(2)
                a.e("v_cndmask_b32 v%d, v11, v%d, vcc" % (A3, A3))
            a.e("buffer_store_dwordx2 %s, v%d, s[40:43], 0 offen sc1" % (vr(PK + 2 * i, 2), A3))
        stamp(a, 2 + u)
    a.vm = []; a.lg = []
    srd(a, 28, 24, SZ_WOF, WS_WOF)
    srd(a, 32, 24, 4096, WS_FLAG)
    a.e("s_sub_u32 s3, s26, 4")
    a.e("s_mul_i32 s45, s3, 5")
    a.e("s_mul_i32 s46, s45, 40")
    a.e("s_mul_i32 s47, s37, 5")
    a.e("s_add_u32 s46, s46, s47")
    a.e("s_lshl_b32 s46, s46, 10")
    a.e("v_add_u32 v9, 0x1000, v8")
    WB, OB, ACC = 96, 16, 176
    WREG = lambda sg, ct: 96 + (sg * 5 + ct) * 4
    OREG = lambda sg, t: 16 + (sg * 4 + t) * 4
    a.e("s_waitcnt vmcnt(0)")
    a.e("s_lshl_b32 s47, s36, 7")
    a.e("s_lshl_b32 s48, s37, 2")
    a.e("s_add_u32 s48, s48, s3")
    a.e("s_lshl_b32 s48, s48, 2")
    a.e("s_add_u32 s48, s48, s47")
    a.e("v_mov_b32 v2, 1")
    a.e("v_mov_b32 v3, s48")
    a.e("s_mov_b64 exec, 1")
    a.e("buffer_store_dword v2, v3, s[32:35], 0 offen sc1")
    a.e("s_mov_b64 exec, -1")
    for sg in range(5):
        for ct in range(5):
            if ct < 4:
                a.vmem("buffer_load_dwordx4 %s, v8, s[28:31], s46 offen offset:%d" % (vr(WREG(sg, ct), 4), ct * 1024), "W")
            else:
                a.vmem("buffer_load_dwordx4 %s, v9, s[28:31], s46 offen" % (vr(WREG(sg, ct), 4)), "W")
        if sg < 4: a.e("s_add_u32 s46, s46, 40960")
    a.e("v_and_b32 v3, 31, v1")
    a.e("v_lshlrev_b32 v3, 2, v3")
    a.e("v_add_u32 v3, s47, v3")
    stamp(a, 3)
    a.e("s_mov_b32 s49, 0")
    LP = a.newlabel("AT_POLL"); LD_ = a.newlabel("AT_GO")
    a.label(LP)
    a.e("buffer_load_dword v2, v3, s[32:35], 0 offen sc1")
    a.e("s_waitcnt vmcnt(0)")
    a.e("v_cmp_ne_u32 vcc, 1, v2")
    a.e("s_add_u32 s49, s49, 1")
    a.e("s_cmp_eq_u64 vcc, 0")
    a.e("s_cbranch_scc1 %s" % LD_)
    a.e("s_cmp_ge_u32 s49, 0x40000")
    a.e("s_cbranch_scc1 %s" % LD_)
    a.e("s_sleep 1")
    a.e("s_branch %s" % LP)
    a.label(LD_)
    stamp(a, 4)
    a.vm = []
    for t in range(4):
        a.e("s_lshl_b32 s%d, s36, 2" % (64 + t))
        a.e("s_add_u32 s%d, s%d, %d" % (64 + t, 64 + t, t))
        a.e("s_mul_i32 s%d, s%d, 20" % (64 + t, 64 + t))
        a.e("s_add_u32 s%d, s%d, s45" % (64 + t, 64 + t))
        a.e("s_lshl_b32 s%d, s%d, 10" % (64 + t, 64 + t))
    for sg in range(5):
        for t in range(4):
            a.vmem("buffer_load_dwordx4 %s, v8, s[40:43], s%d offen offset:%d sc1" % (vr(OREG(sg, t), 4), 64 + t, (sg % 4) * 1024) if sg < 4 else
                   "buffer_load_dwordx4 %s, v9, s[40:43], s%d offen sc1" % (vr(OREG(sg, t), 4), 64 + t), "O%d" % sg)
    AC = lambda t, ct: (196 + (t * 5 + ct) * 4) if (t * 5 + ct) < 15 else (2 + 0)
    for half in range(2):
        cts = (0, 1, 2) if half == 0 else (3, 4)
        for sg in range(5):
            a.wait_vm("O%d" % sg)
            for ct in cts:
                for t in range(4):
                    acc = 196 + ((ct - cts[0]) * 4 + t) * 4
                    c = "0" if sg == 0 else vr(acc, 4)
                    a.e("v_mfma_f32_16x16x32_bf16 %s, %s, %s, %s" % (vr(acc, 4), vr(WREG(sg, ct), 4), vr(OREG(sg, t), 4), c))
        a.nop(10)
        if half == 0:
            a.e("s_mul_i32 s39, s3, 20480")
            a.e("s_add_u32 s39, s39, 81920")
            a.e("v_add_u32 v11, s39, v8")
        for ct in cts:
            for t in range(4):
                acc = 196 + ((ct - cts[0]) * 4 + t) * 4
                a.e("ds_write_b128 v11, %s offset:%d" % (vr(acc, 4), (t * 5 + ct) * 1024))
        if half == 0:
            a.e("s_waitcnt lgkmcnt(0)")
    stamp(a, 5)
    a.e("s_waitcnt lgkmcnt(0)")
    a.e("s_barrier")
    stamp_flush(a, 6, 1, 8)
    a.e("s_endpgm")

def pre(a, name):
    a.e("s_cmp_ge_u32 s2, 256")
    a.e("s_cbranch_scc1 %s_END" % name)
    load_args(a)
    a.e("v_and_b32 v1, 63, v0")
    a.e("v_lshrrev_b32 v2, 6, v0")
    a.nop(1)
    a.e("v_readfirstlane_b32 s26, v2")
    a.e("s_waitcnt lgkmcnt(0)")

def gen_k2():
    a = Asm()
    pre(a, "K2")
    a.e("s_cmp_ge_u32 s26, 4")
    a.e("s_cbranch_scc1 K2_AT")
    gemm2(a)
    a.label("K2_AT")
    a.vm = []; a.lg = []
    SB[0] = 52
    attention(a)
    SB[0] = 80
    a.label("K2_END")
    a.e("s_endpgm")
    return a.text()

KERNELS = [("k2_kernel", 256, 512, 163840, gen_k2, 256)]
```

```python
from common import *
import struct, os
SCQ = os.environ.get("SCQ", "")
SCH = os.environ.get("SCH", " sc1")
def f2u(x): return struct.unpack("<I", struct.pack("<f", x))[0]

V_DMA = 16
V_XD = 8
V_XA = 24
V_TR = 26
V_CUR, V_NXT = 27, 12
V_XC0, V_XC1, V_XN0 = 13, 14, 15
V_ONE = 28
V_XR = 32
V_WF = 64
V_ST = 92
V_CS = 108
V_ACC = 128
V_B1 = 224
SLOT = 47104
XOFF = 30720
LDS_CS = 3 * SLOT
LDS_ST = LDS_CS + 1024
K1_LDS = LDS_CS + 2048
KBLK = 1280

def k1_setup(a, typ):
    if typ == 'Q':
        CPR, NCH, MUL, RB, RS = 30, 30, 2185, 3840, 480
        srd(a, 32, 6, 640 * 3840)
        a.e("s_mul_i32 s38, s37, 480")
        srd(a, 48, 24, 0xC00000, 0)
    else:
        CPR, NCH, MUL, RB, RS = 26, 24, 2521, 3072, 416
        srd(a, 32, 12, 640 * 3072)
        a.e("s_sub_u32 s39, s37, 8")
        a.e("s_mul_i32 s38, s39, 384")
        srd(a, 48, 24, SZ_H, WS_H)
        srd(a, 52, 14, 1536 * 2)
    a.e("s_lshl_b32 s41, s26, 6")
    a.e("s_mov_b32 s46, %d" % RB)
    for i in range(8):
        d = V_DMA + i
        a.e("v_add_u32 v2, s41, v1")
        if i: a.e("v_add_u32 v2, %d, v2" % (256 * i))
        a.e("v_mul_u32_u24 v3, %d, v2" % MUL)
        a.e("v_lshrrev_b32 v3, 16, v3")
        a.e("v_mul_u32_u24 v4, %d, v3" % CPR)
        a.e("v_sub_u32 v4, v2, v4")
        a.e("v_and_b32 v5, 35, v3")
        a.e("v_bfe_u32 v6, v3, 4, 1")
        a.e("v_lshl_or_b32 v5, v6, 2, v5")
        a.e("v_bfe_u32 v6, v3, 2, 2")
        a.e("v_lshl_or_b32 v5, v6, 3, v5")
        a.e("v_mul_lo_u32 v5, v5, s46")
        a.e("v_min_u32 v4, %d, v4" % (NCH - 1))
        a.e("v_lshl_add_u32 v5, v4, 4, v5")
        a.e("v_add_u32 v%d, s38, v5" % d)
    a.e("v_bfe_u32 v2, v1, 2, 4")
    a.e("v_mul_u32_u24 v2, %d, v2" % RS)
    a.e("v_and_b32 v3, 3, v1")
    a.e("v_lshl_add_u32 v%d, v3, 3, v2" % V_TR)
    a.e("s_and_b32 s3, s26, 1")
    a.e("s_mul_i32 s3, s3, %d" % (256 if typ == 'Q' else 192))
    a.e("v_add_u32 v%d, s3, v%d" % (V_TR, V_TR))
    a.e("s_mul_i32 s47, s46, 64")
    return RB, RS

def nW(typ, w):
    n = 30 if typ == 'Q' else 26
    return [i for i in range(8) if w + 4 * i < n]

def issue_x(a, c_imm=None):
    for j in range(4):
        a.e("s_add_u32 m0, s42, %d" % (j * 1024))
        a.nop(1)
        a.e("buffer_load_dwordx4 v%d, s[28:31], s44 offen lds" % (V_XD + j))

def k1_prologue(a, typ, RB, hook=None):
    stamp(a, 1)
    n = 30 if typ == 'Q' else 26
    a.e("s_lshl_b32 s41, s26, 10")
    for c in range(2):
        if c == 1:
            if hook: hook()
            a.e("s_add_u32 s42, s74, %d" % SLOT)
            a.e("s_movk_i32 s44, 128")
            issue_x(a)
            a.e("s_movk_i32 s44, 256")
        a.e("s_mul_i32 s43, s47, %d" % c)
        for i in range(8):
            lab = None
            if 4 * i >= n: continue
            if 4 * i + 3 >= n:
                lab = a.newlabel("K1_SK")
                a.e("s_cmp_ge_u32 s26, %d" % (n - 4 * i))
                a.e("s_cbranch_scc1 %s" % lab)
            a.e("s_add_u32 m0, s41, %d" % (c * SLOT + i * 4096))
            a.nop(1)
            a.e("buffer_load_dwordx4 v%d, s[32:35], s43 offen lds" % (V_DMA + i))
            if lab: a.label(lab)
    a.e("s_lshr_b32 s60, s2, 3")
    a.e("v_and_b32 v2, 31, v1")
    a.e("v_lshrrev_b32 v3, 5, v1")
    a.e("s_and_b32 s61, s27, 1")
    a.e("s_lshl_b32 s61, s61, 10")
    a.e("s_lshl_b32 s62, s60, 5")
    a.e("s_add_u32 s61, s61, s62")
    a.e("v_add_u32 v4, s61, v2")
    a.e("v_mul_u32_u24 v4, 1280, v4")
    a.e("s_lshl_b32 s62, s26, 1")
    a.e("s_add_u32 s62, s62, 2")
    a.e("v_add_u32 v5, s62, v3")
    a.e("v_lshl_add_u32 v4, v5, 7, v4")
    a.e("v_mov_b32 v126, v4")
    LPR = 15 if typ == 'Q' else 12
    a.e("s_mul_i32 s61, s60, %d" % (2 * LPR))
    a.e("v_min_u32 v2, %d, v2" % (2 * LPR - 1))
    a.e("v_add_u32 v4, s61, v2")
    a.e("v_mul_u32_u24 v6, %d, v4" % (4370 if LPR == 15 else 5462))
    a.e("v_lshrrev_b32 v6, 16, v6")
    a.e("v_mul_u32_u24 v7, %d, v6" % LPR)
    a.e("v_sub_u32 v7, v4, v7")
    a.e("v_lshl_add_u32 v6, v5, 6, v6")
    a.e("v_mul_lo_u32 v6, v6, s46")
    a.e("v_lshl_add_u32 v6, v7, 7, v6")
    a.e("s_lshr_b32 s61, s27, 1")
    a.e("s_and_b32 s61, s61, 1")
    a.e("s_mul_i32 s61, s61, %d" % (LPR * 128))
    a.e("v_add_u32 v6, s61, v6")
    a.e("v_mov_b32 v127, v6")
    LT = a.newlabel("K1_T")
    a.e("s_cmp_lg_u32 s26, 0")
    a.e("s_cbranch_scc1 %s" % LT)
    a.e("buffer_load_dword v124, v126, s[28:31], 0 offen")
    a.e("buffer_load_dword v125, v127, s[32:35], 0 offen")
    a.label(LT)

def k1_common_init(a, typ):
    for r in list(range(V_ST, 124)) + list(range(V_ACC, 256 if typ == 'Q' else 224)):
        a.e("v_mov_b32 v%d, 0" % r)
    for r in range(4):
        a.e("v_mov_b32 v%d, 0x3f803f80" % (V_ONE + r))

def k1_loop(a, typ, TT, isvall, w, RS, lbl):
    wr, wc = w >> 1, w & 1
    T0 = (TT + 1) // 2
    T = T0 if wc == 0 else TT - T0
    isv = isvall[wc * T0: wc * T0 + T]
    NR = 7 if T == 7 else 4
    D = 3
    Wi = nW(typ, w)
    def slotregs(cur_s, nxt_s):
        a.e("v_add_u32 v%d, %s, v%d" % (V_CUR, cur_s, V_TR))
        a.e("v_add_u32 v%d, %s, v%d" % (V_NXT, nxt_s, V_TR))
        a.e("v_add_u32 v%d, %s, v%d" % (V_XC0, cur_s, V_XA))
        a.e("v_add_u32 v%d, %s, v%d" % (V_XC1, cur_s, V_XA + 1))
        a.e("v_add_u32 v%d, %s, v%d" % (V_XN0, nxt_s, V_XA))
    a.e("s_mov_b32 s70, 0"); a.e("s_mov_b32 s71, %d" % SLOT); a.e("s_mov_b32 s72, %d" % (2 * SLOT))
    slotregs("s70", "s71")
    if typ == 'Q':
        a.e("s_waitcnt vmcnt(%d)" % (4 + len(Wi) + (2 if w == 0 else 0)))
    a.e("s_barrier")
    stamp(a, 2)
    a.lg = []
    def rdx(xs, base, tag):
        for rt in range(4):
            a.lds("ds_read_b128 %s, v%d offset:%d" % (vr(xs + rt * 4, 4), base, rt * 2048), tag)
    def rdw(base, ks, pl, h):
        ff = V_WF + ((ks * T + pl) % NR) * 4
        a.lds("ds_read_b64_tr_b16 %s, v%d offset:%d" % (vr(ff + 2 * h, 2), base, (32 * ks) * RS + pl * 32 + h * 16 * RS), "W%d_%d" % (ks, pl))
    rdx(V_XR, V_XC0, "X0")
    for pl in range(D):
        rdw(V_CUR, 0, pl, 0); rdw(V_CUR, 0, pl, 1)
    a.e("s_mov_b32 s45, 0")
    a.e("s_mov_b64 s[76:77], %d" % (0 if os.environ.get("NODMA") else -1))
    a.label(lbl)
    L = [("W", i) for i in Wi] + [("X", j) for j in range(4)]
    nL = len(L)
    slots = 2 * T - 2
    per = [1] * slots
    for k in range(nL - slots): per[k] += 1
    a.e("s_add_u32 s42, s72, s41")
    a.e("s_add_u32 s73, s72, s74")
    si = 0
    for ks in range(2):
        xs = V_XR + ks * 16
        xn = V_XR + (1 - ks) * 16
        for pl in range(T):
            f = V_WF + ((ks * T + pl) % NR) * 4
            if ks == 1 and pl == T - 2:
                a.e("s_waitcnt vmcnt(%d) lgkmcnt(0)" % nL); a.lg = []
                a.e("s_barrier")
                rdx(xn, V_XN0, "X0")
            else:
                a.wait_lg(["W%d_%d" % (ks, pl), "X%d" % ks])
            dms = []
            if not (ks == 1 and pl >= T - 2):
                for _ in range(per[si]):
                    if L: dms.append(L.pop(0))
                si += 1
            for rt in range(4):
                acc = V_ACC + (pl * 4 + rt) * 4
                x = xs + rt * 4
                if isv[pl]:
                    a.e("v_mfma_f32_16x16x32_bf16 %s, %s, %s, %s" % (vr(acc, 4), vr(x, 4), vr(f, 4), vr(acc, 4)))
                else:
                    a.e("v_mfma_f32_16x16x32_bf16 %s, %s, %s, %s" % (vr(acc, 4), vr(f, 4), vr(x, 4), vr(acc, 4)))
                q = pl + D
                if rt < 2:
                    if ks == 1 and q >= T:
                        if pl == T - 2:
                            a.lg_last = None
                            ks2, tt = 0, rt
                            ff = V_WF + (tt % NR) * 4
                            for h in range(2):
                                a.lds("ds_read_b64_tr_b16 %s, v%d offset:%d" % (vr(ff + 2 * h, 2), V_NXT, tt * 32 + h * 16 * RS), "W0_%d" % tt)
                        elif pl == T - 1:
                            ff = V_WF + (2 % NR) * 4
                            a.lds("ds_read_b64_tr_b16 %s, v%d offset:%d" % (vr(ff + 2 * rt, 2), V_NXT, 2 * 32 + rt * 16 * RS), "W0_2")
                    elif q < T:
                        rdw(V_CUR, ks, q, rt)
                    else:
                        rdw(V_CUR, 1, q - T, rt)
                if rt >= 2 and dms:
                    kind, i = dms.pop(0)
                    a.e("s_mov_b64 exec, s[76:77]")
                    if kind == "W":
                        a.e("s_add_u32 m0, s42, %d" % (i * 4096)); a.nop(1)
                        a.e("buffer_load_dwordx4 v%d, s[32:35], s43 offen lds" % (V_DMA + i))
                    else:
                        a.e("s_add_u32 m0, s73, %d" % (i * 1024)); a.nop(1)
                        a.e("buffer_load_dwordx4 v%d, s[28:31], s44 offen lds" % (V_XD + i))
                    a.e("s_mov_b64 exec, -1")
                    if not L and not dms and w >= 1:
                        LT = a.newlabel("K1_T")
                        a.e("s_cmp_lg_u32 s45, %d" % (2 * (w - 1)))
                        a.e("s_cbranch_scc1 %s" % LT)
                        a.e("buffer_load_dword v124, v126, s[28:31], 0 offen")
                        a.e("buffer_load_dword v125, v127, s[32:35], 0 offen")
                        a.label(LT)
            if pl % 2 == wr:
                cs = V_CS + (pl // 2) * 4
                a.e("v_mfma_f32_16x16x32_bf16 %s, %s, %s, %s" % (vr(cs, 4), vr(f, 4), vr(V_ONE, 4), vr(cs, 4)))
            RSP = 2 if typ == 'Q' else 4
            if pl < 4:
                x = xs + pl * 4
                st = V_ST + pl * 4
                if wc == 0:
                    if pl < RSP:
                        a.e("v_mfma_f32_16x16x32_bf16 %s, %s, %s, %s" % (vr(st, 4), vr(V_ONE, 4), vr(x, 4), vr(st, 4)))
                else:
                    a.e("v_mfma_f32_16x16x32_bf16 %s, %s, %s, %s" % (vr(st, 4), vr(x, 4), vr(x, 4), vr(st, 4)))
            if wc == 1 and pl >= 4 and pl - 4 + RSP < 4:
                rt = pl - 4 + RSP
                x = xs + rt * 4
                st = 240 + (pl - 4) * 4
                a.e("v_mfma_f32_16x16x32_bf16 %s, %s, %s, %s" % (vr(st, 4), vr(V_ONE, 4), vr(x, 4), vr(st, 4)))
            if ks == 0 and pl == 0:
                rdx(xn, V_XC1, "X1")
    assert not L, L
    a.e("s_add_u32 s43, s43, s47")
    a.e("s_add_u32 s44, s44, 128")
    a.e("s_min_u32 s44, s44, %d" % (9 * 128))
    a.e("s_mov_b32 s75, s70"); a.e("s_mov_b32 s70, s71"); a.e("s_mov_b32 s71, s72"); a.e("s_mov_b32 s72, s75")
    slotregs("s70", "s71")
    a.e("s_add_u32 s45, s45, 1")
    a.e("s_cmp_lt_u32 s45, 8")
    a.e("s_cselect_b64 s[76:77], %d, 0" % (0 if os.environ.get("NODMA") else -1))
    a.e("s_cmp_lt_u32 s45, 10")
    a.e("s_cbranch_scc1 %s" % lbl)
    a.lg = []

def k1_stats(a, TT, w):
    wr, wc = w >> 1, w & 1
    T0 = (TT + 1) // 2
    T = T0 if wc == 0 else TT - T0
    stamp(a, 3)
    a.e("s_waitcnt lgkmcnt(0)")
    a.nop(10)
    a.e("v_and_b32 v2, 15, v1")
    a.e("v_lshrrev_b32 v3, 4, v1")
    a.e("v_lshlrev_b32 v4, 4, v3")
    a.e("v_add_u32 v4, %d, v4" % LDS_CS)
    a.e("v_cmp_eq_u32 vcc, 0, v2")
    a.e("s_and_saveexec_b64 s[56:57], vcc")
    for pl in range(T):
        if pl % 2 == wr:
            a.e("ds_write_b128 v4, %s offset:%d" % (vr(V_CS + (pl // 2) * 4, 4), (wc * T0 + pl) * 64))
    a.e("s_mov_b64 exec, s[56:57]")
    a.e("v_lshlrev_b32 v7, 3, v2")
    a.e("v_add_u32 v7, %d, v7" % (LDS_ST + wr * 512))
    RSP = 2 if TT == 15 else 4
    if wc == 0:
        a.e("v_cmp_eq_u32 vcc, 0, v3")
        a.e("s_and_saveexec_b64 s[56:57], vcc")
        for rt in range(RSP):
            a.e("ds_write_b32 v7, v%d offset:%d" % (V_ST + rt * 4, rt * 128))
    else:
        if RSP < 4:
            a.e("v_cmp_eq_u32 vcc, 0, v3")
            a.e("s_and_saveexec_b64 s[56:57], vcc")
            for rt in range(RSP, 4):
                a.e("ds_write_b32 v7, v%d offset:%d" % (240 + (rt - RSP) * 4, rt * 128))
            a.e("s_mov_b64 exec, s[56:57]")
        a.e("v_and_b32 v5, 3, v2")
        a.e("v_lshrrev_b32 v6, 2, v2")
        for r in range(1, 4):
            a.e("v_cmp_eq_u32 s[%d:%d], %d, v5" % (60 + 2 * r, 61 + 2 * r, r))
        a.e("v_cmp_eq_u32 vcc, v6, v3")
        a.e("s_and_saveexec_b64 s[56:57], vcc")
        for rt in range(4):
            g = V_ST + rt * 4
            a.e("v_mov_b32 v8, v%d" % g)
            for r in range(1, 4):
                a.e("v_cndmask_b32 v8, v8, v%d, s[%d:%d]" % (g + r, 60 + 2 * r, 61 + 2 * r))
            a.e("ds_write_b32 v7, v8 offset:%d" % (rt * 128 + 4))
            a.nop(1)
    a.e("s_mov_b64 exec, s[56:57]")
    a.e("s_waitcnt vmcnt(0) lgkmcnt(0)")
    a.e("s_barrier")

def k1_stats2(a):
    L = a.newlabel("K1_S2")
    a.e("v_and_b32 v2, 15, v1")
    a.e("v_lshrrev_b32 v3, 4, v1")
    a.e("s_cmp_ge_u32 s26, 2")
    a.e("s_cbranch_scc1 %s" % L)
    a.e("s_lshl_b32 s3, s26, 9")
    a.e("s_add_u32 s3, s3, %d" % LDS_ST)
    a.e("v_lshlrev_b32 v7, 3, v1")
    a.e("v_add_u32 v7, s3, v7")
    a.e("ds_read_b64 v[8:9], v7")
    a.e("s_waitcnt lgkmcnt(0)")
    a.e("v_mul_f32 v9, 0x%x, v9" % f2u(1.0 / 640))
    a.e("v_mul_f32 v8, 0x%x, v8" % f2u(1.0 / 640))
    a.e("v_fma_f32 v9, -v8, v8, v9")
    a.e("v_max_f32 v9, 0, v9")
    a.e("v_add_f32 v9, 0x%x, v9" % f2u(1e-5))
    a.e("v_rsq_f32 v10, v9")
    a.nop(1)
    a.e("v_mul_f32 v11, v8, v10")
    a.e("v_sub_f32 v11, 0, v11")
    a.e("ds_write_b64 v7, v[10:11]")
    a.e("s_waitcnt lgkmcnt(0)")
    a.label(L)
    a.e("s_barrier")
    stamp(a, 4)
    a.e("s_lshr_b32 s58, s26, 1")
    a.e("s_lshl_b32 s58, s58, 9")
    a.e("s_add_u32 s58, s58, %d" % LDS_ST)
    a.e("s_and_b32 s57, s26, 1")

def k1_epi_q(a, isvall, wc):
    T0 = 8
    T = 8 if wc == 0 else 7
    isv = isvall[wc * 8: wc * 8 + T]
    hasq = not all(isv); hasv = any(isv)
    SQ, SV = 32, 40
    if hasq:
        a.e("v_lshlrev_b32 v7, 3, v2")
        a.e("v_add_u32 v7, s58, v7")
        for rt in range(4):
            a.e("ds_read_b64 %s, v7 offset:%d" % (vr(SQ + 2 * rt, 2), rt * 128))
    if hasv:
        a.e("v_lshlrev_b32 v7, 5, v3")
        a.e("v_add_u32 v7, s58, v7")
        for rt in range(4):
            a.e("ds_read_b128 %s, v7 offset:%d" % (vr(SV + 8 * rt, 4), rt * 128))
            a.e("ds_read_b128 %s, v7 offset:%d" % (vr(SV + 8 * rt + 4, 4), rt * 128 + 16))
    a.e("v_lshlrev_b32 v4, 4, v3")
    a.e("v_add_u32 v4, %d, v4" % LDS_CS)
    a.e("v_lshlrev_b32 v5, 2, v2")
    a.e("v_add_u32 v5, %d, v5" % LDS_CS)
    CSB = 72
    for pl in range(T):
        p = wc * 8 + pl
        if not isv[pl]: a.e("ds_read_b128 %s, v4 offset:%d" % (vr(CSB + pl * 4, 4), p * 64))
        else: a.e("ds_read_b32 v%d, v5 offset:%d" % (CSB + pl * 4, p * 64))
    a.e("s_lshr_b32 s60, s26, 1")
    a.e("s_mul_i32 s61, s60, 2560")
    a.e("s_lshl_b32 s62, s60, 12")
    AD = 104
    for pl in range(T):
        p = wc * 8 + pl
        d = AD + pl
        if not isv[pl]:
            a.e("v_add_u32 v8, %d, v3" % (4 * p))
            a.e("v_mul_u32_u24 v9, 205, v8")
            a.e("v_lshrrev_b32 v9, 10, v9")
            a.e("v_mul_u32_u24 v10, 5, v9")
            a.e("v_sub_u32 v10, v8, v10")
            a.e("v_lshrrev_b32 v11, 1, v10")
            a.e("v_lshlrev_b32 v11, 9, v11")
            a.e("v_cmp_eq_u32 vcc, 4, v10")
            a.e("v_and_b32 v10, 1, v10")
            a.e("v_lshl_or_b32 v11, v10, 3, v11")
            a.e("v_lshl_add_u32 v11, v2, 4, v11")
            a.e("v_lshlrev_b32 v10, 3, v2")
            a.e("v_add_u32 v10, 0x400, v10")
            a.e("v_cndmask_b32 v11, v11, v10, vcc")
            a.e("v_lshl_add_u32 v11, v9, 13, v11")
            a.e("v_add_u32 v%d, s61, v11" % d)
            if 4 * p <= 4 + 5 * 11 and any((4 * p + g) % 5 == 4 for g in range(4)):
                a.e("v_mov_b32 v10, 0x100")
                a.e("v_mov_b32 v8, 0x80")
                a.e("v_cndmask_b32 v10, v10, v8, vcc")
                a.e("v_add_u32 v%d, v10, v%d" % (AD + 8 + pl, d))
            else:
                a.e("v_add_u32 v%d, 0x100, v%d" % (AD + 8 + pl, d))
        else:
            a.e("v_add_u32 v8, %d, v2" % (16 * p))
            a.e("v_mul_u32_u24 v9, 3277, v8")
            a.e("v_lshrrev_b32 v9, 16, v9")
            a.e("v_mul_u32_u24 v10, 20, v9")
            a.e("v_sub_u32 v10, v8, v10")
            a.e("v_and_b32 v11, 1, v3")
            a.e("v_lshl_add_u32 v11, v11, 5, v10")
            a.e("v_lshlrev_b32 v11, 4, v11")
            a.e("v_lshrrev_b32 v10, 1, v3")
            a.e("v_lshl_add_u32 v11, v10, 3, v11")
            a.e("v_lshl_add_u32 v11, v9, 13, v11")
            a.e("v_add_u32 v%d, s62, v11" % d)
    a.e("s_waitcnt lgkmcnt(0)")
    k = 0
    for pl in range(T):
        tb = CSB + pl * 4
        for rt in range(4):
            acc = V_ACC + (pl * 4 + rt) * 4
            t = 8 + (k % 2) * 8; k += 1
            if not isv[pl]:
                for r in range(4):
                    a.e("v_mul_f32 v%d, v%d, v%d" % (t + r, SQ + 2 * rt + 1, tb + r))
                for r in range(4):
                    a.e("v_fma_f32 v%d, v%d, v%d, v%d" % (t + r, acc + r, SQ + 2 * rt, t + r))
                off = (rt >> 1) * 1280
            else:
                sb = SV + rt * 8
                for r in range(4):
                    a.e("v_mul_f32 v%d, v%d, v%d" % (t + r, sb + 2 * r + 1, tb))
                for r in range(4):
                    a.e("v_fma_f32 v%d, v%d, v%d, v%d" % (t + r, acc + r, sb + 2 * r, t + r))
                off = (rt >> 1) * 2048 + (rt & 1) * 1024
            a.e("v_cvt_pk_bf16_f32 v%d, v%d, v%d" % (t + 4, t, t + 1))
            a.e("v_cvt_pk_bf16_f32 v%d, v%d, v%d" % (t + 5, t + 2, t + 3))
            a.e("ds_write_b64 v%d, %s offset:%d" % (AD + pl + (8 if (not isv[pl] and rt & 1) else 0), vr(t + 4, 2), off))

def k1_copyout(a, isvall):
    hv = [isvall[(20 * j) // 16] if (20 * j) % 16 == 0 else isvall[(20 * j) // 16 + 1] for j in range(12)]
    hv = [isvall[(20 * j + 19) // 16] for j in range(12)]
    if any(hv):
        a.e("v_lshrrev_b32 v6, 1, v1")
        a.e("v_lshlrev_b32 v6, 10, v6")
        a.e("v_and_b32 v7, 1, v1")
        a.e("v_lshl_add_u32 v6, v7, 9, v6")
        a.e("s_lshl_b32 s3, s26, 13")
        a.e("s_add_u32 s3, s3, 320")
        a.e("v_add_u32 v6, s3, v6")
        a.e("v_add_u32 v7, 0x10000, v6")
        for r in range(4):
            a.e("v_mov_b32 v%d, 0x3f803f80" % (8 + r))
        a.e("v_cmp_gt_u32 vcc, 16, v1")
        a.e("s_and_saveexec_b64 s[56:57], vcc")
        for i in range(3):
            if hv[4 * i]:
                a.e("ds_write_b128 v%d, v[8:11] offset:%d" % (6 if i < 2 else 7, (i % 2) * 32768))
        a.e("s_mov_b64 exec, s[56:57]")
    a.e("s_waitcnt lgkmcnt(0)")
    a.e("s_barrier")
    a.e("v_lshlrev_b32 v6, 4, v1")
    a.e("s_lshl_b32 s3, s26, 13")
    a.e("v_add_u32 v7, s3, v6")
    a.e("v_add_u32 v5, 0x1000, v6")
    a.e("v_add_u32 v4, 0x10000, v7")
    a.e("s_mul_i32 s60, s37, 12")
    a.e("s_add_u32 s60, s60, s26")
    for i in range(3):
        isvh = hv[4 * i]
        assert all(hv[4 * i + k] == isvh for k in range(4))
        np_ = 8 if isvh else 5
        a.e("s_add_u32 s61, s60, %d" % (4 * i))
        if isvh:
            a.e("s_sub_u32 s61, s61, 64")
            a.e("s_lshl_b32 s61, s61, 17")
            a.e("s_lshl_b32 s62, s36, 13")
            a.e("s_add_u32 s61, s61, s62")
            a.e("s_add_u32 s61, s61, 0x%x" % WS_V)
        else:
            a.e("s_cmp_ge_u32 s61, 32")
            a.e("s_cselect_b32 s62, 0x%x, 0" % (WS_K - 32 * 64 * KBLK))
            a.e("s_mul_i32 s61, s61, %d" % (64 * KBLK))
            a.e("s_add_u32 s61, s61, s62")
            a.e("s_mul_i32 s62, s36, %d" % (4 * KBLK))
            a.e("s_add_u32 s61, s61, s62")
        rb = 32 + (i % 2) * 32
        if isvh and not (i and hv[4 * (i - 1)]):
            a.e("v_and_b32 v8, 31, v1")
            a.e("v_cmp_gt_u32 vcc, 21, v8")
            a.e("s_mov_b64 exec, vcc")
        for k in range(np_):
            o = i * 32768 + k * 1024
            a.e("ds_read_b128 %s, v%d offset:%d" % (vr(rb + k * 4, 4), 7 if o < 65536 else 4, o % 65536))
        for k in range(np_):
            a.e("s_waitcnt lgkmcnt(%d)" % (np_ - 1 - k))
            a.e("buffer_store_dwordx4 %s, v%d, s[48:51], s61 offen offset:%d%s" % (vr(rb + k * 4, 4), 6 if k < 4 else 5, (k % 4) * 1024, SCH))
    a.e("s_mov_b64 exec, -1")

def k1_epi_h(a):
    a.e("v_lshlrev_b32 v7, 3, v2")
    a.e("v_add_u32 v7, s58, v7")
    for rt in range(4):
        a.e("ds_read_b64 %s, v7 offset:%d" % (vr(32 + 2 * rt, 2), rt * 128))
    a.e("v_lshlrev_b32 v4, 4, v3")
    a.e("s_mul_i32 s61, s57, 384")
    a.e("s_add_u32 s61, s61, %d" % LDS_CS)
    a.e("v_add_u32 v4, s61, v4")
    a.e("s_lshl_b32 s60, s36, 3")
    a.e("s_lshr_b32 s61, s26, 1")
    a.e("s_lshl_b32 s61, s61, 2")
    a.e("s_add_u32 s60, s60, s61")
    a.e("s_mul_i32 s60, s60, 48")
    a.e("s_mul_i32 s61, s39, 6")
    a.e("s_add_u32 s60, s60, s61")
    a.e("s_mul_i32 s61, s57, 3")
    a.e("s_add_u32 s60, s60, s61")
    a.e("s_lshl_b32 s60, s60, 10")
    a.e("v_lshlrev_b32 v6, 4, v1")
    for i in range(3):
        tb = 64 + i * 8
        a.e("ds_read_b128 %s, v4 offset:%d" % (vr(tb, 4), (2 * i) * 64))
        a.e("ds_read_b128 %s, v4 offset:%d" % (vr(tb + 4, 4), (2 * i + 1) * 64))
    a.e("s_waitcnt lgkmcnt(0)")
    k = 0
    for rt in range(4):
        if rt: a.e("s_add_u32 s60, s60, %d" % (48 * 1024))
        for i in range(3):
            tb = 64 + i * 8
            for t in range(2):
                b = V_B1 + (2 * i + t) * 2
                if rt == 0:
                    e = 88 + (2 * i + t) * 4
                    a.e("v_lshlrev_b32 v%d, 16, v%d" % (e, b))
                    a.e("v_and_b32 v%d, 0xffff0000, v%d" % (e + 1, b))
                    a.e("v_lshlrev_b32 v%d, 16, v%d" % (e + 2, b + 1))
                    a.e("v_and_b32 v%d, 0xffff0000, v%d" % (e + 3, b + 1))
            q = 8 + (k % 2) * 12; k += 1
            for t in range(2):
                e = 88 + (2 * i + t) * 4
                acc = V_ACC + ((2 * i + t) * 4 + rt) * 4
                for r in range(4):
                    a.e("v_fma_f32 v%d, v%d, v%d, v%d" % (q + t * 4 + r, 33 + rt * 2, tb + t * 4 + r, e + r))
                for r in range(4):
                    a.e("v_fma_f32 v%d, v%d, v%d, v%d" % (q + t * 4 + r, acc + r, 32 + rt * 2, q + t * 4 + r))
                for r in range(4):
                    a.e("v_max_f32 v%d, 0, v%d" % (q + t * 4 + r, q + t * 4 + r))
                for r in range(4):
                    a.e("v_mul_f32 v%d, v%d, v%d" % (q + t * 4 + r, q + t * 4 + r, q + t * 4 + r))
            for c in range(4):
                a.e("v_cvt_pk_bf16_f32 v%d, v%d, v%d" % (q + 8 + c, q + 2 * c, q + 2 * c + 1))
            a.e("buffer_store_dwordx4 %s, v6, s[48:51], s60 offen offset:%d%s" % (vr(q + 8, 4), i * 1024, SCH))

def repack_issue(a, X):
    L = a.newlabel("K1_RP")
    su = 92
    a.e("s_add_u32 s%d, s66, %d" % (su, 512 * X))
    a.e("s_mov_b32 s%d, -1" % (94 + X))
    a.e("s_cmp_ge_u32 s%d, 680" % su)
    a.e("s_cbranch_scc1 %s" % L)
    a.e("s_cmp_ge_u32 s%d, 480" % su)
    a.e("s_cselect_b32 s84, s8, s16")
    a.e("s_cselect_b32 s85, s9, s17")
    a.e("s_mov_b32 s86, %d" % (1536 * 1280))
    a.e("s_cselect_b32 s86, %d, s86" % (640 * 1280))
    a.e("s_cselect_b32 s93, 480, 0")
    a.e("s_cselect_b32 s%d, 0x%x, 0" % (94 + X, WS_WOF - WS_W2F))
    a.e("s_cselect_b64 vcc, -1, 0")
    a.e("s_mov_b32 s87, 0x00020000")
    a.e("s_sub_u32 s68, s%d, s93" % su)
    a.e("v_lshrrev_b32 v2, 3, v1")
    a.e("s_mul_i32 s69, s68, 6554")
    a.e("s_lshr_b32 s69, s69, 16")
    a.e("s_mul_i32 s76, s69, 10")
    a.e("s_sub_u32 s76, s68, s76")
    a.e("s_mul_i32 s77, s69, 40960")
    a.e("s_lshl_b32 s78, s76, 7")
    a.e("s_add_u32 s77, s77, s78")
    a.e("v_and_b32 v3, 7, v1")
    a.e("s_lshl_b32 s93, s26, 13")
    a.e("s_add_u32 s93, s93, %d" % (2 * SLOT + X * 4096))
    for j in range(4):
        a.e("v_add_u32 v4, %d, v2" % (8 * j))
        a.e("v_and_b32 v5, 3, v4")
        a.e("v_bfe_u32 v6, v4, 4, 1")
        a.e("v_lshl_or_b32 v5, v6, 2, v5")
        a.e("v_bfe_u32 v6, v4, 2, 2")
        a.e("v_lshl_or_b32 v5, v6, 3, v5")
        a.e("v_cndmask_b32 v4, v4, v5, vcc")
        a.e("v_mul_u32_u24 v4, 1280, v4")
        a.e("v_lshl_add_u32 v4, v3, 4, v4")
        a.e("s_add_u32 m0, s93, %d" % (j * 1024))
        a.nop(1)
        a.e("buffer_load_dwordx4 v4, s[84:87], s77 offen lds")
    a.e("s_mul_i32 s77, s69, 40")
    a.e("s_lshl_b32 s78, s76, 2")
    a.e("s_add_u32 s77, s77, s78")
    a.e("s_lshl_b32 s77, s77, 10")
    a.e("s_add_u32 s%d, s%d, s77" % (94 + X, 94 + X))
    a.label(L)

def repack_finish(a):
    srd(a, 88, 24, WS_WOF - WS_W2F + SZ_WOF, WS_W2F)
    a.e("v_bfe_u32 v2, v1, 2, 4")
    a.e("v_lshlrev_b32 v2, 7, v2")
    a.e("v_and_b32 v3, 3, v1")
    a.e("v_lshl_add_u32 v2, v3, 3, v2")
    a.e("s_lshl_b32 s93, s26, 13")
    a.e("s_add_u32 s93, s93, %d" % (2 * SLOT))
    a.e("v_add_u32 v2, s93, v2")
    a.e("v_lshlrev_b32 v3, 4, v1")
    a.e("s_waitcnt vmcnt(10)")
    for X in range(2):
        L = a.newlabel("K1_RF")
        a.e("s_cmp_eq_u32 s%d, -1" % (94 + X))
        a.e("s_cbranch_scc1 %s" % L)
        for ct in range(4):
            a.e("ds_read_b64_tr_b16 %s, v2 offset:%d" % (vr(64 + ct * 4, 2), X * 4096 + ct * 32))
            a.e("ds_read_b64_tr_b16 %s, v2 offset:%d" % (vr(66 + ct * 4, 2), X * 4096 + ct * 32 + 2048))
        a.e("s_waitcnt lgkmcnt(0)")
        for ct in range(4):
            a.e("buffer_store_dwordx4 %s, v3, s[88:91], s%d offen offset:%d%s" % (vr(64 + ct * 4, 4), 94 + X, ct * 1024, SCH))
        a.nop(2)
        a.label(L)

def gen_k1():
    a = Asm()
    a.e("s_cmp_ge_u32 s2, 256")
    a.e("s_cbranch_scc1 K1_END")
    load_args(a)
    a.e("v_and_b32 v1, 63, v0")
    a.e("v_lshrrev_b32 v2, 6, v0")
    a.nop(1)
    a.e("v_readfirstlane_b32 s26, v2")
    a.e("s_and_b32 s27, s2, 7")
    a.e("s_lshr_b32 s3, s2, 3")
    a.e("s_and_b32 s36, s27, 1")
    a.e("s_lshl_b32 s36, s36, 3")
    a.e("s_and_b32 s37, s3, 7")
    a.e("s_add_u32 s36, s36, s37")
    a.e("s_lshr_b32 s37, s27, 1")
    a.e("s_lshl_b32 s37, s37, 2")
    a.e("s_lshr_b32 s3, s3, 3")
    a.e("s_add_u32 s37, s37, s3")
    a.e("s_lshl_b32 s59, s36, 2")
    a.e("s_add_u32 s59, s59, s26")
    a.e("v_lshrrev_b32 v2, 3, v1")
    a.e("v_and_b32 v3, 7, v1")
    a.e("s_lshl_b32 s3, s59, 5")
    for j in range(4):
        a.e("v_add_u32 v4, %d, v2" % (8 * j))
        a.e("v_bfe_u32 v5, v4, 1, 3")
        a.e("v_xor_b32 v5, v3, v5")
        a.e("v_add_u32 v4, s3, v4")
        a.e("v_mul_u32_u24 v4, 1280, v4")
        a.e("v_lshl_add_u32 v%d, v5, 4, v4" % (V_XD + j))
    a.e("v_and_b32 v2, 15, v1")
    a.e("v_lshrrev_b32 v3, 4, v1")
    a.e("v_lshrrev_b32 v4, 1, v2")
    a.e("v_xor_b32 v4, v3, v4")
    a.e("v_xor_b32 v5, 4, v4")
    a.e("s_lshl_b32 s3, s26, 12")
    a.e("s_add_u32 s74, s3, %d" % XOFF)
    a.e("v_lshlrev_b32 v2, 7, v2")
    a.e("s_lshr_b32 s3, s26, 1")
    a.e("s_lshl_b32 s3, s3, 13")
    a.e("s_add_u32 s3, s3, %d" % XOFF)
    a.e("v_add_u32 v2, s3, v2")
    a.e("v_lshl_add_u32 v%d, v4, 4, v2" % V_XA)
    a.e("v_lshl_add_u32 v%d, v5, 4, v2" % (V_XA + 1))
    a.e("s_waitcnt lgkmcnt(0)")
    stamp(a, 0)
    srd(a, 28, 4, 2048 * 1280)
    LZ = a.newlabel("K1_NZ")
    a.e("s_cmp_lg_u32 s2, 255")
    a.e("s_cbranch_scc1 %s" % LZ)
    srd(a, 32, 24, 4096, 0x2200000)
    a.e("s_lshl_b32 s3, s26, 10")
    a.e("v_lshlrev_b32 v2, 4, v1")
    a.e("v_add_u32 v2, s3, v2")
    for r in range(4):
        a.e("v_mov_b32 v%d, 0" % (4 + r))
    a.e("buffer_store_dwordx4 v[4:7], v2, s[32:35], 0 offen")
    a.nop(2)
    a.label(LZ)
    a.e("s_mov_b32 s42, s74")
    a.e("s_movk_i32 s44, 0")
    issue_x(a)
    a.e("s_cmp_ge_u32 s37, 8")
    a.e("s_cbranch_scc1 K1_H")
    RB, RS = k1_setup(a, 'Q')
    k1_prologue(a, 'Q', RB)
    k1_common_init(a, 'Q')
    a.e("s_mul_i32 s43, s47, 2")
    variants = {"A": [False] * 15, "B": [False] * 5 + [True] * 10, "C": [True] * 15}
    a.e("s_cmp_eq_u32 s37, 5")
    a.e("s_cbranch_scc1 K1_VB")
    a.e("s_cmp_gt_u32 s37, 5")
    a.e("s_cbranch_scc1 K1_VC")
    for vn in "ABC":
        a.label("K1_V%s" % vn)
        for w in range(1, 4):
            a.e("s_cmp_eq_u32 s26, %d" % w)
            a.e("s_cbranch_scc1 K1_V%s_W%d" % (vn, w))
        for w in range(4):
            a.label("K1_V%s_W%d" % (vn, w))
            k1_loop(a, 'Q', 15, variants[vn], w, RS, "K1_L%s%d" % (vn, w))
            k1_stats(a, 15, w)
            a.e("s_branch K1_E%s" % vn)
        a.label("K1_E%s" % vn)
        k1_stats2(a)
        a.e("s_cmp_eq_u32 s57, 1")
        a.e("s_cbranch_scc1 K1_E%s1" % vn)
        k1_epi_q(a, variants[vn], 0)
        a.e("s_branch K1_F%s" % vn)
        a.label("K1_E%s1" % vn)
        k1_epi_q(a, variants[vn], 1)
        a.label("K1_F%s" % vn)
        k1_copyout(a, variants[vn])
        stamp(a, 5)
        if STAMPS: a.e("s_waitcnt vmcnt(0)")
        stamp(a, 6)
        stamp_flush(a, 7, 0, 4)
        a.e("s_waitcnt vmcnt(0)")
        a.e("s_endpgm")
    a.label("K1_H")
    RB, RS = k1_setup(a, 'H')
    a.e("v_lshrrev_b32 v2, 4, v1")
    a.e("v_lshlrev_b32 v2, 3, v2")
    a.e("v_add_u32 v2, s38, v2")
    a.e("s_and_b32 s3, s26, 1")
    a.e("s_mul_i32 s3, s3, 192")
    a.e("v_add_u32 v2, s3, v2")
    for p in range(6):
        a.e("buffer_load_dwordx2 %s, v2, s[52:55], 0 offen offset:%d" % (vr(V_B1 + 2 * p, 2), p * 32))
    a.e("s_lshl_b32 s66, s36, 3")
    a.e("s_add_u32 s66, s66, s39")
    a.e("s_lshl_b32 s66, s66, 2")
    a.e("s_add_u32 s66, s66, s26")
    def hook():
        repack_issue(a, 0)
        repack_issue(a, 1)
    k1_prologue(a, 'H', RB, hook)
    k1_common_init(a, 'H')
    a.e("s_mul_i32 s43, s47, 2")
    repack_finish(a)
    for w in range(1, 4):
        a.e("s_cmp_eq_u32 s26, %d" % w)
        a.e("s_cbranch_scc1 K1_H_W%d" % w)
    for w in range(4):
        a.label("K1_H_W%d" % w)
        k1_loop(a, 'H', 12, [False] * 12, w, RS, "K1_LH%d" % w)
        k1_stats(a, 12, w)
        a.e("s_branch K1_EH")
    a.label("K1_EH")
    k1_stats2(a)
    k1_epi_h(a)
    stamp(a, 5)
    if STAMPS: a.e("s_waitcnt vmcnt(0)")
    stamp(a, 6)
    stamp_flush(a, 7, 0, 4)
    a.e("s_waitcnt vmcnt(0)")
    a.label("K1_END")
    a.e("s_endpgm")
    return a.text()
```

```python
from common import *
import struct, os
SCQ = os.environ.get("SCQ", "")
SCH = os.environ.get("SCH", " sc1")
def f2u(x): return struct.unpack("<I", struct.pack("<f", x))[0]

V_DMA = 16
V_XD = 8
V_XA = 24
V_TR = 26
V_CUR, V_NXT = 27, 12
V_XC0, V_XC1, V_XN0 = 13, 14, 15
V_ONE = 28
V_XR = 32
V_WF = 64
V_ST = 92
V_CS = 108
V_ACC = 128
V_B1 = 224
SLOT = 47104
XOFF = 30720
LDS_CS = 3 * SLOT
LDS_ST = LDS_CS + 1024
K1_LDS = LDS_CS + 2048
KBLK = 1280

def k1_setup(a, typ):
    if typ == 'Q':
        CPR, NCH, MUL, RB, RS = 30, 30, 2185, 3840, 480
        srd(a, 32, 6, 640 * 3840)
        a.e("s_mul_i32 s38, s37, 480")
        srd(a, 48, 24, 0xC00000, 0)
    else:
        CPR, NCH, MUL, RB, RS = 26, 24, 2521, 3072, 416
        srd(a, 32, 12, 640 * 3072)
        a.e("s_sub_u32 s39, s37, 8")
        a.e("s_mul_i32 s38, s39, 384")
        srd(a, 48, 24, SZ_H, WS_H)
        srd(a, 52, 14, 1536 * 2)
    a.e("s_lshl_b32 s41, s26, 6")
    a.e("s_mov_b32 s46, %d" % RB)
    for i in range(8):
        d = V_DMA + i
        a.e("v_add_u32 v2, s41, v1")
        if i: a.e("v_add_u32 v2, %d, v2" % (256 * i))
        a.e("v_mul_u32_u24 v3, %d, v2" % MUL)
        a.e("v_lshrrev_b32 v3, 16, v3")
        a.e("v_mul_u32_u24 v4, %d, v3" % CPR)
        a.e("v_sub_u32 v4, v2, v4")
        a.e("v_and_b32 v5, 35, v3")
        a.e("v_bfe_u32 v6, v3, 4, 1")
        a.e("v_lshl_or_b32 v5, v6, 2, v5")
        a.e("v_bfe_u32 v6, v3, 2, 2")
        a.e("v_lshl_or_b32 v5, v6, 3, v5")
        a.e("v_mul_lo_u32 v5, v5, s46")
        a.e("v_min_u32 v4, %d, v4" % (NCH - 1))
        a.e("v_lshl_add_u32 v5, v4, 4, v5")
        a.e("v_add_u32 v%d, s38, v5" % d)
    a.e("v_bfe_u32 v2, v1, 2, 4")
    a.e("v_mul_u32_u24 v2, %d, v2" % RS)
    a.e("v_and_b32 v3, 3, v1")
    a.e("v_lshl_add_u32 v%d, v3, 3, v2" % V_TR)
    a.e("s_and_b32 s3, s26, 1")
    a.e("s_mul_i32 s3, s3, %d" % (256 if typ == 'Q' else 192))
    a.e("v_add_u32 v%d, s3, v%d" % (V_TR, V_TR))
    a.e("s_mul_i32 s47, s46, 64")
    return RB, RS

def nW(typ, w):
    n = 30 if typ == 'Q' else 26
    return [i for i in range(8) if w + 4 * i < n]

def issue_x(a, c_imm=None):
    for j in range(4):
        a.e("s_add_u32 m0, s42, %d" % (j * 1024))
        a.nop(1)
        a.e("buffer_load_dwordx4 v%d, s[28:31], s44 offen lds" % (V_XD + j))

def k1_prologue(a, typ, RB, hook=None):
    stamp(a, 1)
    n = 30 if typ == 'Q' else 26
    a.e("s_lshl_b32 s41, s26, 10")
    for c in range(2):
        if c == 1:
            if hook: hook()
            a.e("s_add_u32 s42, s74, %d" % SLOT)
            a.e("s_movk_i32 s44, 128")
            issue_x(a)
            a.e("s_movk_i32 s44, 256")
        a.e("s_mul_i32 s43, s47, %d" % c)
        for i in range(8):
            lab = None
            if 4 * i >= n: continue
            if 4 * i + 3 >= n:
                lab = a.newlabel("K1_SK")
                a.e("s_cmp_ge_u32 s26, %d" % (n - 4 * i))
                a.e("s_cbranch_scc1 %s" % lab)
            a.e("s_add_u32 m0, s41, %d" % (c * SLOT + i * 4096))
            a.nop(1)
            a.e("buffer_load_dwordx4 v%d, s[32:35], s43 offen lds" % (V_DMA + i))
            if lab: a.label(lab)
    a.e("s_lshr_b32 s60, s2, 3")
    a.e("v_and_b32 v2, 31, v1")
    a.e("v_lshrrev_b32 v3, 5, v1")
    a.e("s_and_b32 s61, s27, 1")
    a.e("s_lshl_b32 s61, s61, 10")
    a.e("s_lshl_b32 s62, s60, 5")
    a.e("s_add_u32 s61, s61, s62")
    a.e("v_add_u32 v4, s61, v2")
    a.e("v_mul_u32_u24 v4, 1280, v4")
    a.e("s_lshl_b32 s62, s26, 1")
    a.e("s_add_u32 s62, s62, 2")
    a.e("v_add_u32 v5, s62, v3")
    a.e("v_lshl_add_u32 v4, v5, 7, v4")
    a.e("v_mov_b32 v126, v4")
    LPR = 15 if typ == 'Q' else 12
    a.e("s_mul_i32 s61, s60, %d" % (2 * LPR))
    a.e("v_min_u32 v2, %d, v2" % (2 * LPR - 1))
    a.e("v_add_u32 v4, s61, v2")
    a.e("v_mul_u32_u24 v6, %d, v4" % (4370 if LPR == 15 else 5462))
    a.e("v_lshrrev_b32 v6, 16, v6")
    a.e("v_mul_u32_u24 v7, %d, v6" % LPR)
    a.e("v_sub_u32 v7, v4, v7")
    a.e("v_lshl_add_u32 v6, v5, 6, v6")
    a.e("v_mul_lo_u32 v6, v6, s46")
    a.e("v_lshl_add_u32 v6, v7, 7, v6")
    a.e("s_lshr_b32 s61, s27, 1")
    a.e("s_and_b32 s61, s61, 1")
    a.e("s_mul_i32 s61, s61, %d" % (LPR * 128))
    a.e("v_add_u32 v6, s61, v6")
    a.e("v_mov_b32 v127, v6")
    LT = a.newlabel("K1_T")
    a.e("s_cmp_lg_u32 s26, 0")
    a.e("s_cbranch_scc1 %s" % LT)
    a.e("buffer_load_dword v124, v126, s[28:31], 0 offen")
    a.e("buffer_load_dword v125, v127, s[32:35], 0 offen")
    a.label(LT)

def k1_common_init(a, typ):
    for r in list(range(V_ST, 124)) + list(range(V_ACC, 256 if typ == 'Q' else 224)):
        a.e("v_mov_b32 v%d, 0" % r)
    for r in range(4):
        a.e("v_mov_b32 v%d, 0x3f803f80" % (V_ONE + r))

def k1_loop(a, typ, TT, isvall, w, RS, lbl):
    wr, wc = w >> 1, w & 1
    T0 = (TT + 1) // 2
    T = T0 if wc == 0 else TT - T0
    isv = isvall[wc * T0: wc * T0 + T]
    NR = 7 if T == 7 else 4
    D = 3
    Wi = nW(typ, w)
    def slotregs(cur_s, nxt_s):
        a.e("v_add_u32 v%d, %s, v%d" % (V_CUR, cur_s, V_TR))
        a.e("v_add_u32 v%d, %s, v%d" % (V_NXT, nxt_s, V_TR))
        a.e("v_add_u32 v%d, %s, v%d" % (V_XC0, cur_s, V_XA))
        a.e("v_add_u32 v%d, %s, v%d" % (V_XC1, cur_s, V_XA + 1))
        a.e("v_add_u32 v%d, %s, v%d" % (V_XN0, nxt_s, V_XA))
    a.e("s_mov_b32 s70, 0"); a.e("s_mov_b32 s71, %d" % SLOT); a.e("s_mov_b32 s72, %d" % (2 * SLOT))
    slotregs("s70", "s71")
    if typ == 'Q':
        a.e("s_waitcnt vmcnt(%d)" % (4 + len(Wi) + (2 if w == 0 else 0)))
    a.e("s_barrier")
    stamp(a, 2)
    a.lg = []
    def rdx(xs, base, tag):
        for rt in range(4):
            a.lds("ds_read_b128 %s, v%d offset:%d" % (vr(xs + rt * 4, 4), base, rt * 2048), tag)
    def rdw(base, ks, pl, h):
        ff = V_WF + ((ks * T + pl) % NR) * 4
        a.lds("ds_read_b64_tr_b16 %s, v%d offset:%d" % (vr(ff + 2 * h, 2), base, (32 * ks) * RS + pl * 32 + h * 16 * RS), "W%d_%d" % (ks, pl))
    rdx(V_XR, V_XC0, "X0")
    for pl in range(D):
        rdw(V_CUR, 0, pl, 0); rdw(V_CUR, 0, pl, 1)
    a.e("s_mov_b32 s45, 0")
    a.label(lbl)
    L = [("W", i) for i in Wi] + [("X", j) for j in range(4)]
    nL = len(L)
    slots = 2 * T - 2
    per = [1] * slots
    for k in range(nL - slots): per[k] += 1
    a.e("s_add_u32 s42, s72, s41")
    a.e("s_add_u32 s73, s72, s74")
    si = 0
    for ks in range(2):
        xs = V_XR + ks * 16
        xn = V_XR + (1 - ks) * 16
        for pl in range(T):
            f = V_WF + ((ks * T + pl) % NR) * 4
            if ks == 1 and pl == T - 2:
                a.e("s_waitcnt vmcnt(%d) lgkmcnt(0)" % nL); a.lg = []
                a.e("s_barrier")
                rdx(xn, V_XN0, "X0")
            else:
                a.wait_lg(["W%d_%d" % (ks, pl), "X%d" % ks])
            dms = []
            if not (ks == 1 and pl >= T - 2):
                for _ in range(per[si]):
                    if L: dms.append(L.pop(0))
                si += 1
            for rt in range(4):
                acc = V_ACC + (pl * 4 + rt) * 4
                x = xs + rt * 4
                if rt >= 2 and dms:
                    kind, i = dms[0]
                    if kind == "W": a.e("s_add_u32 m0, s42, %d" % (i * 4096))
                    else: a.e("s_add_u32 m0, s73, %d" % (i * 1024))
                if isv[pl]:
                    a.e("v_mfma_f32_16x16x32_bf16 %s, %s, %s, %s" % (vr(acc, 4), vr(x, 4), vr(f, 4), vr(acc, 4)))
                else:
                    a.e("v_mfma_f32_16x16x32_bf16 %s, %s, %s, %s" % (vr(acc, 4), vr(f, 4), vr(x, 4), vr(acc, 4)))
                q = pl + D
                if rt < 2:
                    if ks == 1 and q >= T:
                        if pl == T - 2:
                            a.lg_last = None
                            ks2, tt = 0, rt
                            ff = V_WF + (tt % NR) * 4
                            for h in range(2):
                                a.lds("ds_read_b64_tr_b16 %s, v%d offset:%d" % (vr(ff + 2 * h, 2), V_NXT, tt * 32 + h * 16 * RS), "W0_%d" % tt)
                        elif pl == T - 1:
                            ff = V_WF + (2 % NR) * 4
                            a.lds("ds_read_b64_tr_b16 %s, v%d offset:%d" % (vr(ff + 2 * rt, 2), V_NXT, 2 * 32 + rt * 16 * RS), "W0_2")
                    elif q < T:
                        rdw(V_CUR, ks, q, rt)
                    else:
                        rdw(V_CUR, 1, q - T, rt)
                if rt >= 2 and dms:
                    kind, i = dms.pop(0)
                    if kind == "W":
                        a.e("buffer_load_dwordx4 v%d, s[32:35], s43 offen lds" % (V_DMA + i))
                    else:
                        a.e("buffer_load_dwordx4 v%d, s[28:31], s44 offen lds" % (V_XD + i))
                    if not L and not dms and w >= 1:
                        LT = a.newlabel("K1_T")
                        a.e("s_cmp_lg_u32 s45, %d" % (2 * (w - 1)))
                        a.e("s_cbranch_scc1 %s" % LT)
                        a.e("buffer_load_dword v124, v126, s[28:31], 0 offen")
                        a.e("buffer_load_dword v125, v127, s[32:35], 0 offen")
                        a.label(LT)
            if pl % 2 == wr:
                cs = V_CS + (pl // 2) * 4
                a.e("v_mfma_f32_16x16x32_bf16 %s, %s, %s, %s" % (vr(cs, 4), vr(f, 4), vr(V_ONE, 4), vr(cs, 4)))
            RSP = 2 if typ == 'Q' else 4
            if pl < 4:
                x = xs + pl * 4
                st = V_ST + pl * 4
                if wc == 0:
                    if pl < RSP:
                        a.e("v_mfma_f32_16x16x32_bf16 %s, %s, %s, %s" % (vr(st, 4), vr(V_ONE, 4), vr(x, 4), vr(st, 4)))
                else:
                    a.e("v_mfma_f32_16x16x32_bf16 %s, %s, %s, %s" % (vr(st, 4), vr(x, 4), vr(x, 4), vr(st, 4)))
            if wc == 1 and pl >= 4 and pl - 4 + RSP < 4:
                rt = pl - 4 + RSP
                x = xs + rt * 4
                st = 240 + (pl - 4) * 4
                a.e("v_mfma_f32_16x16x32_bf16 %s, %s, %s, %s" % (vr(st, 4), vr(V_ONE, 4), vr(x, 4), vr(st, 4)))
            if ks == 0 and pl == 0:
                rdx(xn, V_XC1, "X1")
    assert not L, L
    a.e("s_add_u32 s43, s43, s47")
    a.e("s_add_u32 s44, s44, 128")
    a.e("s_min_u32 s44, s44, %d" % (9 * 128))
    a.e("s_mov_b32 s75, s70"); a.e("s_mov_b32 s70, s71"); a.e("s_mov_b32 s71, s72"); a.e("s_mov_b32 s72, s75")
    slotregs("s70", "s71")
    a.e("s_add_u32 s45, s45, 1")
    a.e("s_cmp_lt_u32 s45, 10")
    a.e("s_cbranch_scc1 %s" % lbl)
    a.lg = []

def k1_stats(a, TT, w):
    wr, wc = w >> 1, w & 1
    T0 = (TT + 1) // 2
    T = T0 if wc == 0 else TT - T0
    stamp(a, 3)
    a.e("s_waitcnt lgkmcnt(0)")
    a.nop(10)
    a.e("v_and_b32 v2, 15, v1")
    a.e("v_lshrrev_b32 v3, 4, v1")
    a.e("v_lshlrev_b32 v4, 4, v3")
    a.e("v_add_u32 v4, %d, v4" % LDS_CS)
    a.e("v_cmp_eq_u32 vcc, 0, v2")
    a.e("s_and_saveexec_b64 s[56:57], vcc")
    for pl in range(T):
        if pl % 2 == wr:
            a.e("ds_write_b128 v4, %s offset:%d" % (vr(V_CS + (pl // 2) * 4, 4), (wc * T0 + pl) * 64))
    a.e("s_mov_b64 exec, s[56:57]")
    a.e("v_lshlrev_b32 v7, 3, v2")
    a.e("v_add_u32 v7, %d, v7" % (LDS_ST + wr * 512))
    RSP = 2 if TT == 15 else 4
    if wc == 0:
        a.e("v_cmp_eq_u32 vcc, 0, v3")
        a.e("s_and_saveexec_b64 s[56:57], vcc")
        for rt in range(RSP):
            a.e("ds_write_b32 v7, v%d offset:%d" % (V_ST + rt * 4, rt * 128))
    else:
        if RSP < 4:
            a.e("v_cmp_eq_u32 vcc, 0, v3")
            a.e("s_and_saveexec_b64 s[56:57], vcc")
            for rt in range(RSP, 4):
                a.e("ds_write_b32 v7, v%d offset:%d" % (240 + (rt - RSP) * 4, rt * 128))
            a.e("s_mov_b64 exec, s[56:57]")
        a.e("v_and_b32 v5, 3, v2")
        a.e("v_lshrrev_b32 v6, 2, v2")
        for r in range(1, 4):
            a.e("v_cmp_eq_u32 s[%d:%d], %d, v5" % (60 + 2 * r, 61 + 2 * r, r))
        a.e("v_cmp_eq_u32 vcc, v6, v3")
        a.e("s_and_saveexec_b64 s[56:57], vcc")
        for rt in range(4):
            g = V_ST + rt * 4
            a.e("v_mov_b32 v8, v%d" % g)
            for r in range(1, 4):
                a.e("v_cndmask_b32 v8, v8, v%d, s[%d:%d]" % (g + r, 60 + 2 * r, 61 + 2 * r))
            a.e("ds_write_b32 v7, v8 offset:%d" % (rt * 128 + 4))
            a.nop(1)
    a.e("s_mov_b64 exec, s[56:57]")
    a.e("s_waitcnt vmcnt(0) lgkmcnt(0)")
    a.e("s_barrier")

def k1_stats2(a):
    L = a.newlabel("K1_S2")
    a.e("v_and_b32 v2, 15, v1")
    a.e("v_lshrrev_b32 v3, 4, v1")
    a.e("s_cmp_ge_u32 s26, 2")
    a.e("s_cbranch_scc1 %s" % L)
    a.e("s_lshl_b32 s3, s26, 9")
    a.e("s_add_u32 s3, s3, %d" % LDS_ST)
    a.e("v_lshlrev_b32 v7, 3, v1")
    a.e("v_add_u32 v7, s3, v7")
    a.e("ds_read_b64 v[8:9], v7")
    a.e("s_waitcnt lgkmcnt(0)")
    a.e("v_mul_f32 v9, 0x%x, v9" % f2u(1.0 / 640))
    a.e("v_mul_f32 v8, 0x%x, v8" % f2u(1.0 / 640))
    a.e("v_fma_f32 v9, -v8, v8, v9")
    a.e("v_max_f32 v9, 0, v9")
    a.e("v_add_f32 v9, 0x%x, v9" % f2u(1e-5))
    a.e("v_rsq_f32 v10, v9")
    a.nop(6)
    a.e("v_mul_f32 v11, v8, v10")
    a.e("v_sub_f32 v11, 0, v11")
    a.e("ds_write_b64 v7, v[10:11]")
    a.e("s_waitcnt lgkmcnt(0)")
    a.label(L)
    a.e("s_barrier")
    stamp(a, 4)
    a.e("s_lshr_b32 s58, s26, 1")
    a.e("s_lshl_b32 s58, s58, 9")
    a.e("s_add_u32 s58, s58, %d" % LDS_ST)
    a.e("s_and_b32 s57, s26, 1")

def k1_epi_q(a, isvall, wc):
    T0 = 8
    T = 8 if wc == 0 else 7
    isv = isvall[wc * 8: wc * 8 + T]
    hasq = not all(isv); hasv = any(isv)
    SQ, SV = 32, 40
    if hasq:
        a.e("v_lshlrev_b32 v7, 3, v2")
        a.e("v_add_u32 v7, s58, v7")
        for rt in range(4):
            a.e("ds_read_b64 %s, v7 offset:%d" % (vr(SQ + 2 * rt, 2), rt * 128))
    if hasv:
        a.e("v_lshlrev_b32 v7, 5, v3")
        a.e("v_add_u32 v7, s58, v7")
        for rt in range(4):
            a.e("ds_read_b128 %s, v7 offset:%d" % (vr(SV + 8 * rt, 4), rt * 128))
            a.e("ds_read_b128 %s, v7 offset:%d" % (vr(SV + 8 * rt + 4, 4), rt * 128 + 16))
    a.e("v_lshlrev_b32 v4, 4, v3")
    a.e("v_add_u32 v4, %d, v4" % LDS_CS)
    a.e("v_lshlrev_b32 v5, 2, v2")
    a.e("v_add_u32 v5, %d, v5" % LDS_CS)
    CSB = 72
    for pl in range(T):
        p = wc * 8 + pl
        if not isv[pl]: a.e("ds_read_b128 %s, v4 offset:%d" % (vr(CSB + pl * 4, 4), p * 64))
        else: a.e("ds_read_b32 v%d, v5 offset:%d" % (CSB + pl * 4, p * 64))
    a.e("s_lshr_b32 s60, s26, 1")
    a.e("s_mul_i32 s61, s60, 2560")
    a.e("s_lshl_b32 s62, s60, 12")
    AD = 104
    for pl in range(T):
        p = wc * 8 + pl
        d = AD + pl
        if not isv[pl]:
            a.e("v_add_u32 v8, %d, v3" % (4 * p))
            a.e("v_mul_u32_u24 v9, 205, v8")
            a.e("v_lshrrev_b32 v9, 10, v9")
            a.e("v_mul_u32_u24 v10, 5, v9")
            a.e("v_sub_u32 v10, v8, v10")
            a.e("v_lshrrev_b32 v11, 1, v10")
            a.e("v_lshlrev_b32 v11, 9, v11")
            a.e("v_cmp_eq_u32 vcc, 4, v10")
            a.e("v_and_b32 v10, 1, v10")
            a.e("v_lshl_or_b32 v11, v10, 3, v11")
            a.e("v_lshl_add_u32 v11, v2, 4, v11")
            a.e("v_lshlrev_b32 v10, 3, v2")
            a.e("v_add_u32 v10, 0x400, v10")
            a.e("v_cndmask_b32 v11, v11, v10, vcc")
            a.e("v_lshl_add_u32 v11, v9, 13, v11")
            a.e("v_add_u32 v%d, s61, v11" % d)
            if 4 * p <= 4 + 5 * 11 and any((4 * p + g) % 5 == 4 for g in range(4)):
                a.e("v_mov_b32 v10, 0x100")
                a.e("v_mov_b32 v8, 0x80")
                a.e("v_cndmask_b32 v10, v10, v8, vcc")
                a.e("v_add_u32 v%d, v10, v%d" % (AD + 8 + pl, d))
            else:
                a.e("v_add_u32 v%d, 0x100, v%d" % (AD + 8 + pl, d))
        else:
            a.e("v_add_u32 v8, %d, v2" % (16 * p))
            a.e("v_mul_u32_u24 v9, 3277, v8")
            a.e("v_lshrrev_b32 v9, 16, v9")
            a.e("v_mul_u32_u24 v10, 20, v9")
            a.e("v_sub_u32 v10, v8, v10")
            a.e("v_and_b32 v11, 1, v3")
            a.e("v_lshl_add_u32 v11, v11, 5, v10")
            a.e("v_lshlrev_b32 v11, 4, v11")
            a.e("v_lshrrev_b32 v10, 1, v3")
            a.e("v_lshl_add_u32 v11, v10, 3, v11")
            a.e("v_lshl_add_u32 v11, v9, 13, v11")
            a.e("v_add_u32 v%d, s62, v11" % d)
    a.e("s_waitcnt lgkmcnt(0)")
    k = 0
    for pl in range(T):
        tb = CSB + pl * 4
        for rt in range(4):
            acc = V_ACC + (pl * 4 + rt) * 4
            t = 8 + (k % 2) * 8; k += 1
            if not isv[pl]:
                for r in range(4):
                    a.e("v_mul_f32 v%d, v%d, v%d" % (t + r, SQ + 2 * rt + 1, tb + r))
                for r in range(4):
                    a.e("v_fma_f32 v%d, v%d, v%d, v%d" % (t + r, acc + r, SQ + 2 * rt, t + r))
                off = (rt >> 1) * 1280
            else:
                sb = SV + rt * 8
                for r in range(4):
                    a.e("v_mul_f32 v%d, v%d, v%d" % (t + r, sb + 2 * r + 1, tb))
                for r in range(4):
                    a.e("v_fma_f32 v%d, v%d, v%d, v%d" % (t + r, acc + r, sb + 2 * r, t + r))
                off = (rt >> 1) * 2048 + (rt & 1) * 1024
            a.e("v_cvt_pk_bf16_f32 v%d, v%d, v%d" % (t + 4, t, t + 1))
            a.e("v_cvt_pk_bf16_f32 v%d, v%d, v%d" % (t + 5, t + 2, t + 3))
            a.e("ds_write_b64 v%d, %s offset:%d" % (AD + pl + (8 if (not isv[pl] and rt & 1) else 0), vr(t + 4, 2), off))

def k1_copyout(a, isvall):
    hv = [isvall[(20 * j) // 16] if (20 * j) % 16 == 0 else isvall[(20 * j) // 16 + 1] for j in range(12)]
    hv = [isvall[(20 * j + 19) // 16] for j in range(12)]
    if any(hv):
        a.e("v_lshrrev_b32 v6, 1, v1")
        a.e("v_lshlrev_b32 v6, 10, v6")
        a.e("v_and_b32 v7, 1, v1")
        a.e("v_lshl_add_u32 v6, v7, 9, v6")
        a.e("s_lshl_b32 s3, s26, 13")
        a.e("s_add_u32 s3, s3, 320")
        a.e("v_add_u32 v6, s3, v6")
        a.e("v_add_u32 v7, 0x10000, v6")
        for r in range(4):
            a.e("v_mov_b32 v%d, 0x3f803f80" % (8 + r))
        a.e("v_cmp_gt_u32 vcc, 16, v1")
        a.e("s_and_saveexec_b64 s[56:57], vcc")
        for i in range(3):
            if hv[4 * i]:
                a.e("ds_write_b128 v%d, v[8:11] offset:%d" % (6 if i < 2 else 7, (i % 2) * 32768))
        a.e("s_mov_b64 exec, s[56:57]")
    a.e("s_waitcnt lgkmcnt(0)")
    a.e("s_barrier")
    a.e("v_lshlrev_b32 v6, 4, v1")
    a.e("s_lshl_b32 s3, s26, 13")
    a.e("v_add_u32 v7, s3, v6")
    a.e("v_add_u32 v5, 0x1000, v6")
    a.e("v_add_u32 v4, 0x10000, v7")
    a.e("s_mul_i32 s60, s37, 12")
    a.e("s_add_u32 s60, s60, s26")
    for i in range(3):
        isvh = hv[4 * i]
        assert all(hv[4 * i + k] == isvh for k in range(4))
        np_ = 8 if isvh else 5
        a.e("s_add_u32 s61, s60, %d" % (4 * i))
        if isvh:
            a.e("s_sub_u32 s61, s61, 64")
            a.e("s_lshl_b32 s61, s61, 17")
            a.e("s_lshl_b32 s62, s36, 13")
            a.e("s_add_u32 s61, s61, s62")
            a.e("s_add_u32 s61, s61, 0x%x" % WS_V)
        else:
            a.e("s_cmp_ge_u32 s61, 32")
            a.e("s_cselect_b32 s62, 0x%x, 0" % (WS_K - 32 * 64 * KBLK))
            a.e("s_mul_i32 s61, s61, %d" % (64 * KBLK))
            a.e("s_add_u32 s61, s61, s62")
            a.e("s_mul_i32 s62, s36, %d" % (4 * KBLK))
            a.e("s_add_u32 s61, s61, s62")
        rb = 32 + (i % 2) * 32
        if isvh and not (i and hv[4 * (i - 1)]) and not os.environ.get("VFULL"):
            a.e("v_and_b32 v8, 31, v1")
            a.e("v_cmp_gt_u32 vcc, 21, v8")
            a.e("s_mov_b64 exec, vcc")
        for k in range(np_):
            o = i * 32768 + k * 1024
            a.e("ds_read_b128 %s, v%d offset:%d" % (vr(rb + k * 4, 4), 7 if o < 65536 else 4, o % 65536))
        for k in range(np_):
            a.e("s_waitcnt lgkmcnt(%d)" % (np_ - 1 - k))
            a.e("buffer_store_dwordx4 %s, v%d, s[48:51], s61 offen offset:%d%s" % (vr(rb + k * 4, 4), 6 if k < 4 else 5, (k % 4) * 1024, SCH))
    a.e("s_mov_b64 exec, -1")

def k1_epi_h(a):
    a.e("v_lshlrev_b32 v7, 3, v2")
    a.e("v_add_u32 v7, s58, v7")
    for rt in range(4):
        a.e("ds_read_b64 %s, v7 offset:%d" % (vr(32 + 2 * rt, 2), rt * 128))
    a.e("v_lshlrev_b32 v4, 4, v3")
    a.e("s_mul_i32 s61, s57, 384")
    a.e("s_add_u32 s61, s61, %d" % LDS_CS)
    a.e("v_add_u32 v4, s61, v4")
    a.e("s_lshl_b32 s60, s36, 3")
    a.e("s_lshr_b32 s61, s26, 1")
    a.e("s_lshl_b32 s61, s61, 2")
    a.e("s_add_u32 s60, s60, s61")
    a.e("s_mul_i32 s60, s60, 48")
    a.e("s_mul_i32 s61, s39, 6")
    a.e("s_add_u32 s60, s60, s61")
    a.e("s_mul_i32 s61, s57, 3")
    a.e("s_add_u32 s60, s60, s61")
    a.e("s_lshl_b32 s60, s60, 10")
    a.e("v_lshlrev_b32 v6, 4, v1")
    for i in range(3):
        tb = 64 + i * 8
        a.e("ds_read_b128 %s, v4 offset:%d" % (vr(tb, 4), (2 * i) * 64))
        a.e("ds_read_b128 %s, v4 offset:%d" % (vr(tb + 4, 4), (2 * i + 1) * 64))
    a.e("s_waitcnt lgkmcnt(0)")
    k = 0
    for rt in range(4):
        if rt: a.e("s_add_u32 s60, s60, %d" % (48 * 1024))
        for i in range(3):
            tb = 64 + i * 8
            for t in range(2):
                b = V_B1 + (2 * i + t) * 2
                if rt == 0:
                    e = 88 + (2 * i + t) * 4
                    a.e("v_lshlrev_b32 v%d, 16, v%d" % (e, b))
                    a.e("v_and_b32 v%d, 0xffff0000, v%d" % (e + 1, b))
                    a.e("v_lshlrev_b32 v%d, 16, v%d" % (e + 2, b + 1))
                    a.e("v_and_b32 v%d, 0xffff0000, v%d" % (e + 3, b + 1))
            q = 8 + (k % 2) * 12; k += 1
            for t in range(2):
                e = 88 + (2 * i + t) * 4
                acc = V_ACC + ((2 * i + t) * 4 + rt) * 4
                for r in range(4):
                    a.e("v_fma_f32 v%d, v%d, v%d, v%d" % (q + t * 4 + r, 33 + rt * 2, tb + t * 4 + r, e + r))
                for r in range(4):
                    a.e("v_fma_f32 v%d, v%d, v%d, v%d" % (q + t * 4 + r, acc + r, 32 + rt * 2, q + t * 4 + r))
                for r in range(4):
                    a.e("v_max_f32 v%d, 0, v%d" % (q + t * 4 + r, q + t * 4 + r))
                for r in range(4):
                    a.e("v_mul_f32 v%d, v%d, v%d" % (q + t * 4 + r, q + t * 4 + r, q + t * 4 + r))
            for c in range(4):
                a.e("v_cvt_pk_bf16_f32 v%d, v%d, v%d" % (q + 8 + c, q + 2 * c, q + 2 * c + 1))
            a.e("buffer_store_dwordx4 %s, v6, s[48:51], s60 offen offset:%d%s" % (vr(q + 8, 4), i * 1024, SCH))

def repack_issue(a, X):
    L = a.newlabel("K1_RP")
    su = 92
    a.e("s_add_u32 s%d, s66, %d" % (su, 512 * X))
    a.e("s_mov_b32 s%d, -1" % (94 + X))
    a.e("s_cmp_ge_u32 s%d, 680" % su)
    a.e("s_cbranch_scc1 %s" % L)
    a.e("s_cmp_ge_u32 s%d, 480" % su)
    a.e("s_cselect_b32 s84, s8, s16")
    a.e("s_cselect_b32 s85, s9, s17")
    a.e("s_mov_b32 s86, %d" % (1536 * 1280))
    a.e("s_cselect_b32 s86, %d, s86" % (640 * 1280))
    a.e("s_cselect_b32 s93, 480, 0")
    a.e("s_cselect_b32 s%d, 0x%x, 0" % (94 + X, WS_WOF - WS_W2F))
    a.e("s_cselect_b64 vcc, -1, 0")
    a.e("s_mov_b32 s87, 0x00020000")
    a.e("s_sub_u32 s68, s%d, s93" % su)
    a.e("v_lshrrev_b32 v2, 3, v1")
    a.e("s_mul_i32 s69, s68, 6554")
    a.e("s_lshr_b32 s69, s69, 16")
    a.e("s_mul_i32 s76, s69, 10")
    a.e("s_sub_u32 s76, s68, s76")
    a.e("s_mul_i32 s77, s69, 40960")
    a.e("s_lshl_b32 s78, s76, 7")
    a.e("s_add_u32 s77, s77, s78")
    a.e("v_and_b32 v3, 7, v1")
    a.e("s_lshl_b32 s93, s26, 13")
    a.e("s_add_u32 s93, s93, %d" % (2 * SLOT + X * 4096))
    for j in range(4):
        a.e("v_add_u32 v4, %d, v2" % (8 * j))
        a.e("v_and_b32 v5, 3, v4")
        a.e("v_bfe_u32 v6, v4, 4, 1")
        a.e("v_lshl_or_b32 v5, v6, 2, v5")
        a.e("v_bfe_u32 v6, v4, 2, 2")
        a.e("v_lshl_or_b32 v5, v6, 3, v5")
        a.e("v_cndmask_b32 v4, v4, v5, vcc")
        a.e("v_mul_u32_u24 v4, 1280, v4")
        a.e("v_lshl_add_u32 v4, v3, 4, v4")
        a.e("s_add_u32 m0, s93, %d" % (j * 1024))
        a.nop(1)
        a.e("buffer_load_dwordx4 v4, s[84:87], s77 offen lds")
    a.e("s_mul_i32 s77, s69, 40")
    a.e("s_lshl_b32 s78, s76, 2")
    a.e("s_add_u32 s77, s77, s78")
    a.e("s_lshl_b32 s77, s77, 10")
    a.e("s_add_u32 s%d, s%d, s77" % (94 + X, 94 + X))
    a.label(L)

def repack_finish(a):
    srd(a, 88, 24, WS_WOF - WS_W2F + SZ_WOF, WS_W2F)
    a.e("v_bfe_u32 v2, v1, 2, 4")
    a.e("v_lshlrev_b32 v2, 7, v2")
    a.e("v_and_b32 v3, 3, v1")
    a.e("v_lshl_add_u32 v2, v3, 3, v2")
    a.e("s_lshl_b32 s93, s26, 13")
    a.e("s_add_u32 s93, s93, %d" % (2 * SLOT))
    a.e("v_add_u32 v2, s93, v2")
    a.e("v_lshlrev_b32 v3, 4, v1")
    a.e("s_waitcnt vmcnt(10)")
    for X in range(2):
        L = a.newlabel("K1_RF")
        a.e("s_cmp_eq_u32 s%d, -1" % (94 + X))
        a.e("s_cbranch_scc1 %s" % L)
        for ct in range(4):
            a.e("ds_read_b64_tr_b16 %s, v2 offset:%d" % (vr(64 + ct * 4, 2), X * 4096 + ct * 32))
            a.e("ds_read_b64_tr_b16 %s, v2 offset:%d" % (vr(66 + ct * 4, 2), X * 4096 + ct * 32 + 2048))
        a.e("s_waitcnt lgkmcnt(0)")
        for ct in range(4):
            a.e("buffer_store_dwordx4 %s, v3, s[88:91], s%d offen offset:%d%s" % (vr(64 + ct * 4, 4), 94 + X, ct * 1024, SCH))
        a.nop(2)
        a.label(L)

def gen_k1():
    a = Asm()
    a.e("s_cmp_ge_u32 s2, 256")
    a.e("s_cbranch_scc1 K1_END")
    load_args(a)
    a.e("v_and_b32 v1, 63, v0")
    a.e("v_lshrrev_b32 v2, 6, v0")
    a.nop(1)
    a.e("v_readfirstlane_b32 s26, v2")
    a.e("s_and_b32 s27, s2, 7")
    a.e("s_lshr_b32 s3, s2, 3")
    a.e("s_and_b32 s36, s27, 1")
    a.e("s_lshl_b32 s36, s36, 3")
    a.e("s_and_b32 s37, s3, 7")
    a.e("s_add_u32 s36, s36, s37")
    a.e("s_lshr_b32 s37, s27, 1")
    a.e("s_lshl_b32 s37, s37, 2")
    a.e("s_lshr_b32 s3, s3, 3")
    a.e("s_add_u32 s37, s37, s3")
    a.e("s_lshl_b32 s59, s36, 2")
    a.e("s_add_u32 s59, s59, s26")
    a.e("v_lshrrev_b32 v2, 3, v1")
    a.e("v_and_b32 v3, 7, v1")
    a.e("s_lshl_b32 s3, s59, 5")
    for j in range(4):
        a.e("v_add_u32 v4, %d, v2" % (8 * j))
        a.e("v_bfe_u32 v5, v4, 1, 3")
        a.e("v_xor_b32 v5, v3, v5")
        a.e("v_add_u32 v4, s3, v4")
        a.e("v_mul_u32_u24 v4, 1280, v4")
        a.e("v_lshl_add_u32 v%d, v5, 4, v4" % (V_XD + j))
    a.e("v_and_b32 v2, 15, v1")
    a.e("v_lshrrev_b32 v3, 4, v1")
    a.e("v_lshrrev_b32 v4, 1, v2")
    a.e("v_xor_b32 v4, v3, v4")
    a.e("v_xor_b32 v5, 4, v4")
    a.e("s_lshl_b32 s3, s26, 12")
    a.e("s_add_u32 s74, s3, %d" % XOFF)
    a.e("v_lshlrev_b32 v2, 7, v2")
    a.e("s_lshr_b32 s3, s26, 1")
    a.e("s_lshl_b32 s3, s3, 13")
    a.e("s_add_u32 s3, s3, %d" % XOFF)
    a.e("v_add_u32 v2, s3, v2")
    a.e("v_lshl_add_u32 v%d, v4, 4, v2" % V_XA)
    a.e("v_lshl_add_u32 v%d, v5, 4, v2" % (V_XA + 1))
    a.e("s_waitcnt lgkmcnt(0)")
    stamp(a, 0)
    srd(a, 28, 4, 2048 * 1280)
    LZ = a.newlabel("K1_NZ")
    a.e("s_cmp_lg_u32 s2, 255")
    a.e("s_cbranch_scc1 %s" % LZ)
    srd(a, 32, 24, 4096, 0x2200000)
    a.e("s_lshl_b32 s3, s26, 10")
    a.e("v_lshlrev_b32 v2, 4, v1")
    a.e("v_add_u32 v2, s3, v2")
    for r in range(4):
        a.e("v_mov_b32 v%d, 0" % (4 + r))
    a.e("buffer_store_dwordx4 v[4:7], v2, s[32:35], 0 offen")
    a.nop(2)
    a.label(LZ)
    a.e("s_mov_b32 s42, s74")
    a.e("s_movk_i32 s44, 0")
    issue_x(a)
    a.e("s_cmp_ge_u32 s37, 8")
    a.e("s_cbranch_scc1 K1_H")
    RB, RS = k1_setup(a, 'Q')
    k1_prologue(a, 'Q', RB)
    k1_common_init(a, 'Q')
    a.e("s_mul_i32 s43, s47, 2")
    variants = {"A": [False] * 15, "B": [False] * 5 + [True] * 10, "C": [True] * 15}
    a.e("s_cmp_eq_u32 s37, 5")
    a.e("s_cbranch_scc1 K1_VB")
    a.e("s_cmp_gt_u32 s37, 5")
    a.e("s_cbranch_scc1 K1_VC")
    for vn in "ABC":
        a.label("K1_V%s" % vn)
        for w in range(1, 4):
            a.e("s_cmp_eq_u32 s26, %d" % w)
            a.e("s_cbranch_scc1 K1_V%s_W%d" % (vn, w))
        for w in range(4):
            a.label("K1_V%s_W%d" % (vn, w))
            k1_loop(a, 'Q', 15, variants[vn], w, RS, "K1_L%s%d" % (vn, w))
            k1_stats(a, 15, w)
            a.e("s_branch K1_E%s" % vn)
        a.label("K1_E%s" % vn)
        k1_stats2(a)
        a.e("s_cmp_eq_u32 s57, 1")
        a.e("s_cbranch_scc1 K1_E%s1" % vn)
        k1_epi_q(a, variants[vn], 0)
        a.e("s_branch K1_F%s" % vn)
        a.label("K1_E%s1" % vn)
        k1_epi_q(a, variants[vn], 1)
        a.label("K1_F%s" % vn)
        k1_copyout(a, variants[vn])
        stamp(a, 5)
        if STAMPS: a.e("s_waitcnt vmcnt(0)")
        stamp(a, 6)
        stamp_flush(a, 7, 0, 4)
        a.e("s_waitcnt vmcnt(0)")
        a.e("s_endpgm")
    a.label("K1_H")
    RB, RS = k1_setup(a, 'H')
    a.e("v_lshrrev_b32 v2, 4, v1")
    a.e("v_lshlrev_b32 v2, 3, v2")
    a.e("v_add_u32 v2, s38, v2")
    a.e("s_and_b32 s3, s26, 1")
    a.e("s_mul_i32 s3, s3, 192")
    a.e("v_add_u32 v2, s3, v2")
    for p in range(6):
        a.e("buffer_load_dwordx2 %s, v2, s[52:55], 0 offen offset:%d" % (vr(V_B1 + 2 * p, 2), p * 32))
    a.e("s_lshl_b32 s66, s36, 3")
    a.e("s_add_u32 s66, s66, s39")
    a.e("s_lshl_b32 s66, s66, 2")
    a.e("s_add_u32 s66, s66, s26")
    def hook():
        repack_issue(a, 0)
        repack_issue(a, 1)
    k1_prologue(a, 'H', RB, hook)
    k1_common_init(a, 'H')
    a.e("s_mul_i32 s43, s47, 2")
    repack_finish(a)
    for w in range(1, 4):
        a.e("s_cmp_eq_u32 s26, %d" % w)
        a.e("s_cbranch_scc1 K1_H_W%d" % w)
    for w in range(4):
        a.label("K1_H_W%d" % w)
        k1_loop(a, 'H', 12, [False] * 12, w, RS, "K1_LH%d" % w)
        k1_stats(a, 12, w)
        a.e("s_branch K1_EH")
    a.label("K1_EH")
    k1_stats2(a)
    k1_epi_h(a)
    stamp(a, 5)
    if STAMPS: a.e("s_waitcnt vmcnt(0)")
    stamp(a, 6)
    stamp_flush(a, 7, 0, 4)
    a.e("s_waitcnt vmcnt(0)")
    a.label("K1_END")
    a.e("s_endpgm")
    return a.text()
```

```python
import os
from common import *
import struct
def f2u(x): return struct.unpack("<I", struct.pack("<f", x))[0]
NEG = f2u(-1e30)
LOG2E = f2u(1.4426950408889634)
QS = 1.4426950408889634 * (20.0 ** -0.5)
KBLK = 1280

def decode_gemm(a):
    a.e("s_and_b32 s27, s2, 7")
    a.e("s_lshr_b32 s3, s2, 3")
    a.e("s_and_b32 s36, s27, 3")
    a.e("s_lshl_b32 s36, s36, 3")
    a.e("s_lshr_b32 s37, s3, 2")
    a.e("s_add_u32 s36, s36, s37")
    a.e("s_lshr_b32 s37, s27, 2")
    a.e("s_lshl_b32 s37, s37, 2")
    a.e("s_and_b32 s3, s3, 3")
    a.e("s_add_u32 s37, s37, s3")

WS_FLAG = 0x2200000
def gemm2(a):
    NS = 48
    NST = 12
    V_XO = 7
    ACC, RING = 16, 96
    stamp(a, 0)
    decode_gemm(a)
    srd(a, 28, 24, SZ_H, WS_H)
    srd(a, 32, 24, SZ_W2F, WS_W2F)
    srd(a, 48, 4, 2048 * 1280)
    srd(a, 52, 18, 1280)
    srd(a, 56, 20, 2048 * 1280)
    a.e("s_mul_i32 s38, s37, 160")
    a.e("v_lshlrev_b32 v%d, 4, v1" % V_XO)
    a.e("v_add_u32 v8, 0x1000, v%d" % V_XO)
    a.e("s_mul_i32 s39, s26, 20480")
    a.e("s_mul_i32 s45, s26, %d" % NST)
    a.e("s_mul_i32 s40, s45, 40")
    a.e("s_mul_i32 s41, s37, 5")
    a.e("s_add_u32 s40, s40, s41")
    a.e("s_lshl_b32 s40, s40, 10")
    for t in range(4):
        a.e("s_lshl_b32 s%d, s36, 2" % (41 + t))
        a.e("s_add_u32 s%d, s%d, %d" % (41 + t, 41 + t, t))
        a.e("s_mul_i32 s%d, s%d, %d" % (41 + t, 41 + t, NS))
        a.e("s_add_u32 s%d, s%d, s45" % (41 + t, 41 + t))
        a.e("s_lshl_b32 s%d, s%d, 10" % (41 + t, 41 + t))
    def LD(st):
        base = RING + (st % 4) * 36
        if st > 0: a.e("s_add_u32 s40, s40, 40960")
        for ct in range(5):
            if ct < 4:
                a.vmem("buffer_load_dwordx4 %s, v%d, s[32:35], s40 offen offset:%d" % (vr(base + 16 + ct * 4, 4), V_XO, ct * 1024), "W%d_%d" % (st, ct))
            else:
                a.vmem("buffer_load_dwordx4 %s, v8, s[32:35], s40 offen" % (vr(base + 16 + ct * 4, 4)), "W%d_%d" % (st, ct))
            if ct == 0:
                for t in range(4):
                    if st > 0: a.e("s_add_u32 s%d, s%d, 1024" % (41 + t, 41 + t))
                    a.vmem("buffer_load_dwordx4 %s, v%d, s[28:31], s%d offen" % (vr(base + t * 4, 4), V_XO, 41 + t), "X%d" % st)
    stamp(a, 1)
    if os.environ.get("B0", "0") == "1": a.e("s_barrier")
    for st in range(min(4, NST)):
        LD(st)
    EP = 240
    XR = lambda ct: EP + 10 + ct * 2 if ct < 3 else 2 + (ct - 3) * 2
    a.e("v_lshrrev_b32 v9, 4, v1")
    a.e("v_and_b32 v15, 15, v1")
    a.e("s_lshl_b32 s47, s36, 6")
    a.e("s_lshl_b32 s46, s26, 4")
    a.e("s_add_u32 s47, s47, s46")
    a.e("v_add_u32 v14, s47, v15")
    a.e("v_mul_u32_u24 v14, 1280, v14")
    a.e("v_lshl_add_u32 v14, v9, 3, v14")
    a.e("v_add_u32 v14, s38, v14")
    a.e("v_lshlrev_b32 v10, 3, v9")
    a.e("v_add_u32 v10, s38, v10")
    for r in range(ACC, ACC + 80):
        a.e("v_mov_b32 v%d, 0" % r)
    stamp(a, 2)
    stamp(a, 3)
    def EPL():
        for ct in range(5):
            a.vmem("buffer_load_dwordx2 %s, v10, s[52:55], 0 offen offset:%d" % (vr(EP + ct * 2, 2), ct * 32), "EP")
        for ct in range(5):
            a.vmem("buffer_load_dwordx2 %s, v14, s[48:51], 0 offen offset:%d" % (vr(XR(ct), 2), ct * 32), "EP")
    for st in range(NST):
        base = RING + (st % 4) * 36
        for ct in range(5):
            a.wait_vm(["W%d_%d" % (st, ct), "X%d" % st])
            for rt in range(4):
                acc = ACC + (rt * 5 + ct) * 4
                a.e("v_mfma_f32_16x16x32_bf16 %s, %s, %s, %s" % (vr(acc, 4), vr(base + 16 + ct * 4, 4), vr(base + rt * 4, 4), vr(acc, 4)))
        if st + 4 < NST: LD(st + 4)
        if st == NST - 5: EPL()
    stamp(a, 4)
    a.nop(10)
    a.e("v_lshlrev_b32 v10, 4, v1")
    a.e("v_add_u32 v11, s39, v10")
    for t in range(20):
        a.e("ds_write_b128 v11, %s offset:%d" % (vr(ACC + t * 4, 4), t * 1024))
    a.e("s_waitcnt lgkmcnt(0)")
    a.e("s_barrier")
    stamp(a, 5)
    a.lg = []
    a.e("s_mul_i32 s46, s26, 5120")
    a.e("v_add_u32 v11, s46, v10")
    a.e("v_add_u32 v12, 0xa000, v11")
    a.e("v_add_u32 v13, 0x14000, v11")
    a.e("v_add_u32 v15, 0x1e000, v11")
    AD = [11, 12, 13, 15]
    def RD(ct):
        for sw in range(8):
            a.lds("ds_read_b128 %s, v%d offset:%d" % (vr(16 + ct * 32 + sw * 4, 4), AD[sw // 2], (sw % 2) * 20480 + ct * 1024), "R%d" % ct)
    RD(0)
    a.wait_vm("EP")
    for ct in range(5):
        if ct + 1 < 5: RD(ct + 1)
        a.wait_lg("R%d" % ct)
        b = 16 + ct * 32
        for h in (0, 16):
            for r in range(4):
                a.e("v_add_f32 v%d, v%d, v%d" % (b + h + r, b + h + r, b + h + 4 + r))
                a.e("v_add_f32 v%d, v%d, v%d" % (b + h + 8 + r, b + h + 8 + r, b + h + 12 + r))
            for r in range(4):
                a.e("v_add_f32 v%d, v%d, v%d" % (b + h + r, b + h + r, b + h + 8 + r))
        e = EP + ct * 2
        a.e("v_lshlrev_b32 v%d, 16, v%d" % (b + 4, e))
        a.e("v_and_b32 v%d, 0xffff0000, v%d" % (b + 5, e))
        a.e("v_lshlrev_b32 v%d, 16, v%d" % (b + 6, e + 1))
        a.e("v_and_b32 v%d, 0xffff0000, v%d" % (b + 7, e + 1))
        for r in range(4):
            a.e("v_add_f32 v%d, v%d, v%d" % (b + r, b + r, b + 4 + r))
        for r in range(4):
            a.e("v_mul_f32 v%d, 0x%x, v%d" % (b + 4 + r, LOG2E ^ 0x80000000, b + r))
        for r in range(4):
            a.e("v_exp_f32 v%d, v%d" % (b + 4 + r, b + 4 + r))
        e2 = XR(ct)
        a.e("v_lshlrev_b32 v%d, 16, v%d" % (b + 8, e2))
        a.e("v_and_b32 v%d, 0xffff0000, v%d" % (b + 9, e2))
        a.e("v_lshlrev_b32 v%d, 16, v%d" % (b + 10, e2 + 1))
        a.e("v_and_b32 v%d, 0xffff0000, v%d" % (b + 11, e2 + 1))
        for r in range(4):
            a.e("v_add_f32 v%d, 1.0, v%d" % (b + 4 + r, b + 4 + r))
        for r in range(4):
            a.e("v_rcp_f32 v%d, v%d" % (b + 4 + r, b + 4 + r))
        a.nop(4)
        for r in range(4):
            a.e("v_mul_f32 v%d, v%d, v%d" % (b + r, b + r, b + 4 + r))
        for r in range(4):
            a.e("v_fma_f32 v%d, v%d, v%d, v%d" % (b + r, b + r, b + 16 + r, b + 8 + r))
        a.e("v_cvt_pk_bf16_f32 v%d, v%d, v%d" % (b + 12, b, b + 1))
        a.e("v_cvt_pk_bf16_f32 v%d, v%d, v%d" % (b + 13, b + 2, b + 3))
        a.e("buffer_store_dwordx2 %s, v14, s[56:59], 0 offen offset:%d" % (vr(b + 12, 2), ct * 32))
    stamp(a, 6)
    if STAMPS: a.e("s_waitcnt vmcnt(0)")
    stamp(a, 7)
    stamp_flush(a, 8, 1, 8)
    a.e("s_endpgm")

def attention(a):
    a.e("s_setprio 3")
    O, S = 16, 32
    K0, K1, V = 80, 120, 132
    Q = 212
    T = 228
    srd(a, 28, 24, SZ_QK, WS_Q)
    srd(a, 32, 24, SZ_QK, WS_K)
    srd(a, 96, 24, SZ_V, WS_V)
    srd(a, 40, 24, SZ_O, WS_O)
    decode_gemm(a)
    a.e("s_lshl_b32 s44, s37, 2")
    a.e("s_add_u32 s44, s44, s26")
    a.e("s_sub_u32 s44, s44, 4")
    a.e("s_lshl_b32 s45, s36, 1")
    stamp(a, 0)
    a.e("v_lshlrev_b32 v8, 4, v1")
    a.e("v_and_b32 v12, 31, v1")
    a.e("v_lshrrev_b32 v13, 5, v1")
    a.e("v_mov_b32 v11, 0x%x" % OOB)
    a.e("v_lshlrev_b32 v9, 3, v12")
    a.e("v_add_u32 v9, 1024, v9")
    a.e("v_cmp_gt_u32 vcc, 32, v1")
    a.e("v_mul_u32_u24 v2, %d, v13" % KBLK)
    a.e("v_add_u32 v2, v9, v2")
    a.e("v_cndmask_b32 v3, v11, v9, vcc")
    a.e("v_cndmask_b32 v4, v9, v11, vcc")
    a.e("v_cmp_ge_u32 vcc, 20, v12")
    a.e("s_lshl_b32 s47, s44, 6")
    a.e("s_add_u32 s48, s47, s45")
    a.e("v_cndmask_b32 v10, v11, v8, vcc")
    def ldQ(u):
        a.e("s_add_u32 s49, s48, %d" % u)
        a.e("s_mul_i32 s49, s49, %d" % KBLK)
        a.vmem("buffer_load_dwordx4 %s, v8, s[28:31], s49 offen" % vr(Q + 8 * u, 4), "Q%d" % u)
        a.vmem("buffer_load_dwordx2 %s, v3, s[28:31], s49 offen" % vr(Q + 8 * u + 4, 2), "Q%d" % u)
        a.vmem("buffer_load_dwordx2 %s, v4, s[28:31], s49 offen" % vr(Q + 8 * u + 6, 2), "Q%d" % u)
    def ldK(b):
        a.e("s_add_i32 s49, s45, %d" % (b - 8))
        if b % 2 == 0:
            a.e("s_add_i32 s50, s49, s47")
            a.e("s_mul_i32 s50, s50, %d" % KBLK)
            a.e("v_add_u32 v5, s50, v2")
            a.vmem("buffer_load_dwordx2 %s, v5, s[32:35], 0 offen" % vr(K1 + b, 2), "K%d" % b)
        a.e("s_max_i32 s49, s49, 0")
        a.e("s_add_u32 s49, s49, s47")
        a.e("s_mul_i32 s50, s49, %d" % KBLK)
        a.vmem("buffer_load_dwordx4 %s, v8, s[32:35], s50 offen" % vr(K0 + 4 * b, 4), "K%d" % b)
    def ldV(b):
        a.e("s_add_i32 s49, s45, %d" % (b - 8))
        a.e("s_max_i32 s49, s49, 0")
        a.e("s_add_u32 s49, s49, s47")
        a.e("s_lshl_b32 s50, s49, 11")
        a.vmem("buffer_load_dwordx4 %s, v10, s[96:99], s50 offen" % vr(V + 8 * b, 4), "V%d" % b)
        a.vmem("buffer_load_dwordx4 %s, v10, s[96:99], s50 offen offset:1024" % vr(V + 8 * b + 4, 4), "V%d" % b)
        if b == 9 and os.environ.get("DUMMY"):
            a.vmem("buffer_load_dword v%d, v8, s[96:99], s50 offen" % (T + 22), "V9")
            a.vmem("buffer_load_dword v%d, v8, s[96:99], s50 offen offset:1024" % (T + 23), "V9")
    ldQ(0)
    for b in (0, 1, 2): ldK(b)
    for b in (0, 1, 2): ldV(b)
    for b in (3, 4, 5): ldK(b)
    if os.environ.get("B0", "0") == "1": a.e("s_barrier")
    if os.environ.get("IL", "0") == "0":
        for b in (6, 7, 8, 9): ldK(b)
        ldQ(1)
        for b in range(3, 10): ldV(b)
    SCHED = {} if os.environ.get("IL", "0") == "0" else {(0, 0): [("V", 3), ("V", 4), ("V", 5), ("K", 6), ("K", 7), ("K", 8)],
             (0, 1): [("V", 6), ("V", 7), ("V", 8), ("Q", 1), ("K", 9), ("V", 9)]}
    a.e("v_lshlrev_b32 v14, 2, v13")
    a.e("v_sub_u32 v14, v12, v14")
    for r in range(16):
        c = (r & 3) + 8 * (r >> 2)
        a.e("v_cmp_le_i32 s[%d:%d], %d, v14" % (64 + 2 * r, 65 + 2 * r, c))
    a.e("v_mov_b32 v%d, 0x%x" % (T, NEG))
    a.e("v_mov_b32 v%d, 0" % (T + 1))
    a.e("v_mov_b32 v%d, 0x%x" % (T + 7, f2u(-1e20)))
    a.e("s_mov_b32 s51, 0x%x" % f2u(QS))
    a.e("s_mov_b32 s100, s51")
    a.e("s_mov_b32 s101, s51")
    assert (T + 6) % 2 == 0 and (T + 5) % 2 == 1
    VM, VMO, VT1, VT2, VNM = T + 2, T + 3, T + 4, T + 5, T + 6
    stamp(a, 1)
    for u in range(2):
        q0, qlo, qhi = Q + 8 * u, Q + 8 * u + 4, Q + 8 * u + 6
        for ch in range(3):
            blocks = [u + 3 * ch + i for i in range(3)]
            for i, b in enumerate(blocks):
                sb = S + 16 * i
                rel = b - u
                if rel == 0:
                    for r in range(16):
                        a.e("v_cndmask_b32 v%d, v%d, v%d, s[%d:%d]" % (sb + r, T + 1, T, 64 + 2 * r, 65 + 2 * r))
                if rel == 8:
                    for r in range(16):
                        a.e("v_cndmask_b32 v%d, v%d, v%d, s[%d:%d]" % (sb + r, T, T + 1, 64 + 2 * r, 65 + 2 * r))
            for ps in range(2):
                for i, b in enumerate(blocks):
                    sb = S + 16 * i
                    rel = b - u
                    if ps == 0: a.wait_vm(["K%d" % b, "K%d" % (b - b % 2), "Q%d" % u])
                    if rel < 8:
                        L1 = a.newlabel("AT_INV"); L2 = a.newlabel("AT_NXT")
                        a.e("s_add_i32 s49, s45, %d" % (b - 8))
                        a.e("s_cmp_lt_i32 s49, 0")
                        a.e("s_cbranch_scc1 %s" % (L1 if ps == 0 else L2))
                    c = vr(sb, 16) if rel in (0, 8) else "0"
                    if ps == 0:
                        a.e("v_mfma_f32_32x32x16_bf16 %s, %s, %s, %s" % (vr(sb, 16), vr(K0 + 4 * b, 4), vr(q0, 4), c))
                    else:
                        a.e("v_mfma_f32_32x32x8_bf16 %s, %s, %s, %s" % (vr(sb, 16), vr(K1 + (b - b % 2), 2), vr(qlo if b % 2 == 0 else qhi, 2), vr(sb, 16)))
                    if rel < 8:
                        if ps == 0:
                            a.e("s_branch %s" % L2)
                            a.label(L1)
                            for r in range(16):
                                a.e("v_mov_b32 v%d, v%d" % (sb + r, T))
                        a.label(L2)
                if ps == 0: a.nop(12)
            n = 48
            for kind, b in SCHED.get((u, ch), []):
                {"Q": ldQ, "K": ldK, "V": ldV}[kind](b)
            a.nop(14)
            a.e("v_max3_f32 v%d, v%d, v%d, v%d" % (VM, S, S + 1, S + 2))
            a.e("v_max3_f32 v%d, v%d, v%d, v%d" % (VT1, S + 3, S + 4, S + 5))
            rr = list(range(6, n)); tgl = 0
            while rr:
                d = VM if tgl == 0 else VT1
                a.e("v_max3_f32 v%d, v%d, v%d, v%d" % (d, d, S + rr[0], S + rr[1])); rr = rr[2:]
                tgl ^= 1
            if ch > 0:
                a.e("v_max3_f32 v%d, v%d, v%d, v%d" % (VM, VM, VT1, VMO))
            else:
                a.e("v_max3_f32 v%d, v%d, v%d, v%d" % (VM, VM, VT1, T + 7))
            a.e("v_mov_b32 v%d, v%d" % (VT1, VM))
            a.nop(2)
            a.e("v_permlane32_swap_b32 v%d, v%d" % (VM, VT1))
            a.nop(1)
            a.e("v_max_f32 v%d, v%d, v%d" % (VM, VM, VT1))
            a.e("v_mul_f32 v%d, s51, v%d" % (VNM, VM))
            a.e("v_sub_f32 v%d, 0, v%d" % (VNM, VNM))
            if ch > 0:
                a.e("v_sub_f32 v%d, v%d, v%d" % (VT2, VNM, T + 14))
                a.e("v_exp_f32 v%d, v%d" % (VT2, VT2))
            a.e("v_mov_b32 v%d, v%d" % (VMO, VM))
            a.e("v_mov_b32 v%d, v%d" % (T + 14, VNM))
            pend = None
            for i, b in enumerate(blocks):
                sb = S + 16 * i
                if os.environ.get("PK", "0") == "1":
                  for r in range(0, 16, 2):
                    a.e("v_pk_fma_f32 %s, %s, s[100:101], %s op_sel_hi:[1,1,0]" % (vr(sb + r, 2), vr(sb + r, 2), vr(VNM, 2)))
                else:
                  for r in range(16):
                    a.e("v_fma_f32 v%d, v%d, s51, v%d" % (sb + r, sb + r, VNM))
                if pend:
                    a.e("v_mfma_f32_32x32x16_bf16 %s, %s, %s, %s" % (vr(O, 16), vr(V + 8 * pend[0] + 4, 4), vr(pend[1] + 4, 4), vr(O, 16)))
                for r in range(16):
                    a.e("v_exp_f32 v%d, v%d" % (sb + r, sb + r))
                a.nop(2)
                for r in range(8):
                    a.e("v_cvt_pk_bf16_f32 v%d, v%d, v%d" % (sb + r, sb + 2 * r, sb + 2 * r + 1))
                if ch > 0 and i == 0:
                    for r in range(12):
                        a.e("v_mul_f32 v%d, v%d, v%d" % (O + r, VT2, O + r))
                    a.nop(2)
                a.wait_vm("V%d" % b)
                a.nop(1)
                c = "0" if (ch == 0 and i == 0) else vr(O, 16)
                a.e("v_mfma_f32_32x32x16_bf16 %s, %s, %s, %s" % (vr(O, 16), vr(V + 8 * b, 4), vr(sb, 4), c))
                pend = (b, sb)
            a.nop(14)
            a.e("v_mfma_f32_32x32x16_bf16 %s, %s, %s, %s" % (vr(O, 16), vr(V + 8 * pend[0] + 4, 4), vr(pend[1] + 4, 4), vr(O, 16)))
            pend = None
            a.nop(4)
        a.nop(16)
        a.e("v_mov_b32 v%d, v%d" % (VT1, O + 8))
        a.e("v_mov_b32 v%d, v%d" % (VT2, O + 8))
        a.nop(2)
        a.e("v_permlane32_swap_b32 v%d, v%d" % (VT1, VT2))
        a.nop(1)
        a.e("v_rcp_f32 v%d, v%d" % (VT2, VT2))
        a.nop(6)
        for r in range(12):
            a.e("v_mul_f32 v%d, v%d, v%d" % (O + r, VT2, O + r))
        PK = T + 8
        for i in range(6):
            a.e("v_cvt_pk_bf16_f32 v%d, v%d, v%d" % (PK + i, O + 2 * i, O + 2 * i + 1))
        A0, A1, A2, A3 = T + 16, T + 17, T + 18, T + 19
        a.e("s_add_u32 s49, s45, %d" % u)
        a.e("s_lshl_b32 s49, s49, 1")
        a.e("v_lshrrev_b32 v%d, 4, v12" % A0)
        a.e("v_add_u32 v%d, s49, v%d" % (A0, A0))
        a.e("v_mul_u32_u24 v%d, 20, v%d" % (A0, A0))
        a.e("v_and_b32 v%d, 15, v12" % A1)
        a.e("s_mul_i32 s49, s44, 5")
        for i in range(3):
            a.e("v_add_u32 v%d, s49, v13" % A2)
            if i: a.e("v_add_u32 v%d, %d, v%d" % (A2, 2 * i, A2))
            a.e("v_lshrrev_b32 v%d, 3, v%d" % (A3, A2))
            a.e("v_add_u32 v%d, v%d, v%d" % (A3, A0, A3))
            a.e("v_lshlrev_b32 v%d, 10, v%d" % (A3, A3))
            a.e("v_bfe_u32 v%d, v%d, 1, 2" % (T + 20, A2))
            a.e("v_lshl_add_u32 v%d, v%d, 4, v%d" % (T + 20, T + 20, A1))
            a.e("v_lshl_add_u32 v%d, v%d, 4, v%d" % (A3, T + 20, A3))
            a.e("v_and_b32 v%d, 1, v%d" % (T + 20, A2))
            a.e("v_lshl_add_u32 v%d, v%d, 3, v%d" % (A3, T + 20, A3))
            if i == 2:
                a.e("v_cmp_eq_u32 vcc, 0, v13")
                a.nop(2)
                a.e("v_cndmask_b32 v%d, v11, v%d, vcc" % (A3, A3))
            a.e("buffer_store_dwordx2 %s, v%d, s[40:43], 0 offen sc1" % (vr(PK + 2 * i, 2), A3))
        stamp(a, 2 + u)
    if os.environ.get("DUMPV"):
        srd(a, 28, 24, 0x200000, 0x3000000)
        a.e("s_lshl_b32 s3, s2, 2")
        a.e("s_add_u32 s3, s3, s26")
        a.e("s_sub_u32 s3, s3, 4")
        a.e("s_lshl_b32 s3, s3, 10")
        a.e("buffer_store_dwordx4 %s, v8, s[28:31], s3 offen" % vr(V + 8 * 9 + 4, 4))
        a.e("s_waitcnt vmcnt(0)")
    a.vm = []; a.lg = []
    srd(a, 28, 24, SZ_WOF, WS_WOF)
    srd(a, 32, 24, 4096, WS_FLAG)
    a.e("s_sub_u32 s3, s26, 4")
    a.e("s_mul_i32 s45, s3, 5")
    a.e("s_mul_i32 s46, s45, 40")
    a.e("s_mul_i32 s47, s37, 5")
    a.e("s_add_u32 s46, s46, s47")
    a.e("s_lshl_b32 s46, s46, 10")
    a.e("v_add_u32 v9, 0x1000, v8")
    WB, OB, ACC = 96, 16, 176
    WREG = lambda sg, ct: 96 + (sg * 5 + ct) * 4
    OREG = lambda sg, t: 16 + (sg * 4 + t) * 4
    a.e("s_waitcnt vmcnt(0)")
    a.e("s_lshl_b32 s47, s36, 7")
    a.e("s_lshl_b32 s48, s37, 2")
    a.e("s_add_u32 s48, s48, s3")
    a.e("s_lshl_b32 s48, s48, 2")
    a.e("s_add_u32 s48, s48, s47")
    a.e("v_mov_b32 v2, 1")
    a.e("v_mov_b32 v3, s48")
    a.e("s_mov_b64 exec, 1")
    a.e("buffer_store_dword v2, v3, s[32:35], 0 offen sc1")
    a.e("s_mov_b64 exec, -1")
    for sg in range(5):
        for ct in range(5):
            if ct < 4:
                a.vmem("buffer_load_dwordx4 %s, v8, s[28:31], s46 offen offset:%d" % (vr(WREG(sg, ct), 4), ct * 1024), "W")
            else:
                a.vmem("buffer_load_dwordx4 %s, v9, s[28:31], s46 offen" % (vr(WREG(sg, ct), 4)), "W")
        if sg < 4: a.e("s_add_u32 s46, s46, 40960")
    a.e("v_and_b32 v3, 31, v1")
    a.e("v_lshlrev_b32 v3, 2, v3")
    a.e("v_add_u32 v3, s47, v3")
    stamp(a, 3)
    a.e("s_mov_b32 s49, 0")
    LP = a.newlabel("AT_POLL"); LD_ = a.newlabel("AT_GO")
    a.label(LP)
    a.e("buffer_load_dword v2, v3, s[32:35], 0 offen sc1")
    a.e("s_waitcnt vmcnt(0)")
    a.e("v_cmp_ne_u32 vcc, 1, v2")
    a.e("s_add_u32 s49, s49, 1")
    a.e("s_cmp_eq_u64 vcc, 0")
    a.e("s_cbranch_scc1 %s" % LD_)
    a.e("s_cmp_ge_u32 s49, 0x40000")
    a.e("s_cbranch_scc1 %s" % LD_)
    a.e("s_sleep 1")
    a.e("s_branch %s" % LP)
    a.label(LD_)
    stamp(a, 4)
    a.vm = []
    for t in range(4):
        a.e("s_lshl_b32 s%d, s36, 2" % (64 + t))
        a.e("s_add_u32 s%d, s%d, %d" % (64 + t, 64 + t, t))
        a.e("s_mul_i32 s%d, s%d, 20" % (64 + t, 64 + t))
        a.e("s_add_u32 s%d, s%d, s45" % (64 + t, 64 + t))
        a.e("s_lshl_b32 s%d, s%d, 10" % (64 + t, 64 + t))
    for sg in range(5):
        for t in range(4):
            a.vmem("buffer_load_dwordx4 %s, v8, s[40:43], s%d offen offset:%d sc1" % (vr(OREG(sg, t), 4), 64 + t, (sg % 4) * 1024) if sg < 4 else
                   "buffer_load_dwordx4 %s, v9, s[40:43], s%d offen sc1" % (vr(OREG(sg, t), 4), 64 + t), "O%d" % sg)
    AC = lambda t, ct: (196 + (t * 5 + ct) * 4) if (t * 5 + ct) < 15 else (2 + 0)
    for half in range(2):
        cts = (0, 1, 2) if half == 0 else (3, 4)
        for sg in range(5):
            a.wait_vm("O%d" % sg)
            for ct in cts:
                for t in range(4):
                    acc = 196 + ((ct - cts[0]) * 4 + t) * 4
                    c = "0" if sg == 0 else vr(acc, 4)
                    a.e("v_mfma_f32_16x16x32_bf16 %s, %s, %s, %s" % (vr(acc, 4), vr(WREG(sg, ct), 4), vr(OREG(sg, t), 4), c))
        a.nop(10)
        if half == 0:
            a.e("s_mul_i32 s39, s3, 20480")
            a.e("s_add_u32 s39, s39, 81920")
            a.e("v_add_u32 v11, s39, v8")
        for ct in cts:
            for t in range(4):
                acc = 196 + ((ct - cts[0]) * 4 + t) * 4
                a.e("ds_write_b128 v11, %s offset:%d" % (vr(acc, 4), (t * 5 + ct) * 1024))
        if half == 0:
            a.e("s_waitcnt lgkmcnt(0)")
    stamp(a, 5)
    a.e("s_waitcnt lgkmcnt(0)")
    a.e("s_barrier")
    stamp_flush(a, 6, 1, 8)
    a.e("s_endpgm")

def pre(a, name):
    a.e("s_cmp_ge_u32 s2, 256")
    a.e("s_cbranch_scc1 %s_END" % name)
    load_args(a)
    a.e("v_and_b32 v1, 63, v0")
    a.e("v_lshrrev_b32 v2, 6, v0")
    a.nop(1)
    a.e("v_readfirstlane_b32 s26, v2")
    a.e("s_waitcnt lgkmcnt(0)")

def gen_k2():
    a = Asm()
    pre(a, "K2")
    a.e("s_cmp_ge_u32 s26, 4")
    a.e("s_cbranch_scc1 K2_AT")
    gemm2(a)
    a.label("K2_AT")
    a.vm = []; a.lg = []
    SB[0] = 52
    attention(a)
    SB[0] = 80
    a.label("K2_END")
    a.e("s_endpgm")
    return a.text()

KERNELS = [("k2_kernel", 256, 512, 163840, gen_k2, 256)]
```

```python
import os
from common import *
import struct
def f2u(x): return struct.unpack("<I", struct.pack("<f", x))[0]
NEG = f2u(-1e30)
LOG2E = f2u(1.4426950408889634)
QS = 1.4426950408889634 * (20.0 ** -0.5)
KBLK = 1280

def decode_gemm(a):
    a.e("s_and_b32 s27, s2, 7")
    a.e("s_lshr_b32 s3, s2, 3")
    a.e("s_and_b32 s36, s27, 3")
    a.e("s_lshl_b32 s36, s36, 3")
    a.e("s_lshr_b32 s37, s3, 2")
    a.e("s_add_u32 s36, s36, s37")
    a.e("s_lshr_b32 s37, s27, 2")
    a.e("s_lshl_b32 s37, s37, 2")
    a.e("s_and_b32 s3, s3, 3")
    a.e("s_add_u32 s37, s37, s3")

WS_FLAG = 0x2200000
def gemm2(a):
    NS = 48
    NST = 12
    V_XO = 7
    ACC, RING = 16, 96
    stamp(a, 0)
    decode_gemm(a)
    srd(a, 28, 24, SZ_H, WS_H)
    srd(a, 32, 24, SZ_W2F, WS_W2F)
    srd(a, 48, 4, 2048 * 1280)
    srd(a, 52, 18, 1280)
    srd(a, 56, 20, 2048 * 1280)
    a.e("s_mul_i32 s38, s37, 160")
    a.e("v_lshlrev_b32 v%d, 4, v1" % V_XO)
    a.e("v_add_u32 v8, 0x1000, v%d" % V_XO)
    a.e("s_mul_i32 s39, s26, 20480")
    a.e("s_mul_i32 s45, s26, %d" % NST)
    a.e("s_mul_i32 s40, s45, 40")
    a.e("s_mul_i32 s41, s37, 5")
    a.e("s_add_u32 s40, s40, s41")
    a.e("s_lshl_b32 s40, s40, 10")
    for t in range(4):
        a.e("s_lshl_b32 s%d, s36, 2" % (41 + t))
        a.e("s_add_u32 s%d, s%d, %d" % (41 + t, 41 + t, t))
        a.e("s_mul_i32 s%d, s%d, %d" % (41 + t, 41 + t, NS))
        a.e("s_add_u32 s%d, s%d, s45" % (41 + t, 41 + t))
        a.e("s_lshl_b32 s%d, s%d, 10" % (41 + t, 41 + t))
    def LD(st):
        base = RING + (st % 4) * 36
        if st > 0: a.e("s_add_u32 s40, s40, 40960")
        for ct in range(5):
            if ct < 4:
                a.vmem("buffer_load_dwordx4 %s, v%d, s[32:35], s40 offen offset:%d" % (vr(base + 16 + ct * 4, 4), V_XO, ct * 1024), "W%d_%d" % (st, ct))
            else:
                a.vmem("buffer_load_dwordx4 %s, v8, s[32:35], s40 offen" % (vr(base + 16 + ct * 4, 4)), "W%d_%d" % (st, ct))
            if ct == 0:
                for t in range(4):
                    if st > 0: a.e("s_add_u32 s%d, s%d, 1024" % (41 + t, 41 + t))
                    a.vmem("buffer_load_dwordx4 %s, v%d, s[28:31], s%d offen" % (vr(base + t * 4, 4), V_XO, 41 + t), "X%d" % st)
    stamp(a, 1)
    if os.environ.get("B0", "0") == "1": a.e("s_barrier")
    for st in range(min(4, NST)):
        LD(st)
    EP = 240
    XR = lambda ct: EP + 10 + ct * 2 if ct < 3 else 2 + (ct - 3) * 2
    a.e("v_lshrrev_b32 v9, 4, v1")
    a.e("v_and_b32 v15, 15, v1")
    a.e("s_lshl_b32 s47, s36, 6")
    a.e("s_lshl_b32 s46, s26, 4")
    a.e("s_add_u32 s47, s47, s46")
    a.e("v_add_u32 v14, s47, v15")
    a.e("v_mul_u32_u24 v14, 1280, v14")
    a.e("v_lshl_add_u32 v14, v9, 3, v14")
    a.e("v_add_u32 v14, s38, v14")
    a.e("v_lshlrev_b32 v10, 3, v9")
    a.e("v_add_u32 v10, s38, v10")
    for r in range(ACC, ACC + 80):
        a.e("v_mov_b32 v%d, 0" % r)
    stamp(a, 2)
    stamp(a, 3)
    def EPL():
        for ct in range(5):
            a.vmem("buffer_load_dwordx2 %s, v10, s[52:55], 0 offen offset:%d" % (vr(EP + ct * 2, 2), ct * 32), "EP")
        for ct in range(5):
            a.vmem("buffer_load_dwordx2 %s, v14, s[48:51], 0 offen offset:%d" % (vr(XR(ct), 2), ct * 32), "EP")
    for st in range(NST):
        base = RING + (st % 4) * 36
        for ct in range(5):
            a.wait_vm(["W%d_%d" % (st, ct), "X%d" % st])
            for rt in range(4):
                acc = ACC + (rt * 5 + ct) * 4
                a.e("v_mfma_f32_16x16x32_bf16 %s, %s, %s, %s" % (vr(acc, 4), vr(base + 16 + ct * 4, 4), vr(base + rt * 4, 4), vr(acc, 4)))
        if st + 4 < NST: LD(st + 4)
        if st == NST - 5: EPL()
    stamp(a, 4)
    a.nop(10)
    a.e("v_lshlrev_b32 v10, 4, v1")
    a.e("v_add_u32 v11, s39, v10")
    for t in range(20):
        a.e("ds_write_b128 v11, %s offset:%d" % (vr(ACC + t * 4, 4), t * 1024))
    a.e("s_waitcnt lgkmcnt(0)")
    a.e("s_barrier")
    stamp(a, 5)
    a.lg = []
    a.e("s_mul_i32 s46, s26, 5120")
    a.e("v_add_u32 v11, s46, v10")
    a.e("v_add_u32 v12, 0xa000, v11")
    a.e("v_add_u32 v13, 0x14000, v11")
    a.e("v_add_u32 v15, 0x1e000, v11")
    AD = [11, 12, 13, 15]
    def RD(ct, s0, tag):
        for sw in range(4):
            q = s0 + sw
            a.lds("ds_read_b128 %s, v%d offset:%d" % (vr(96 + ct * 16 + sw * 4, 4), AD[q // 2], (q % 2) * 20480 + ct * 1024), "%s%d" % (tag, ct))
    def RED(b):
        for r in range(4):
            a.e("v_add_f32 v%d, v%d, v%d" % (b + r, b + r, b + 4 + r))
            a.e("v_add_f32 v%d, v%d, v%d" % (b + 8 + r, b + 8 + r, b + 12 + r))
        for r in range(4):
            a.e("v_add_f32 v%d, v%d, v%d" % (b + r, b + r, b + 8 + r))
    for ct in range(5): RD(ct, 0, "G")
    a.wait_vm("EP")
    for ct in range(5):
        a.wait_lg("G%d" % ct)
        b = 96 + ct * 16
        RED(b)
        e = EP + ct * 2
        a.e("v_lshlrev_b32 v%d, 16, v%d" % (b + 4, e))
        a.e("v_and_b32 v%d, 0xffff0000, v%d" % (b + 5, e))
        a.e("v_lshlrev_b32 v%d, 16, v%d" % (b + 6, e + 1))
        a.e("v_and_b32 v%d, 0xffff0000, v%d" % (b + 7, e + 1))
        for r in range(4):
            a.e("v_add_f32 v%d, v%d, v%d" % (b + r, b + r, b + 4 + r))
        for r in range(4):
            a.e("v_mul_f32 v%d, 0x%x, v%d" % (b + 4 + r, LOG2E ^ 0x80000000, b + r))
        for r in range(4):
            a.e("v_exp_f32 v%d, v%d" % (b + 4 + r, b + 4 + r))
        e2 = XR(ct)
        X = 36 + ct * 4
        a.e("v_lshlrev_b32 v%d, 16, v%d" % (X, e2))
        a.e("v_and_b32 v%d, 0xffff0000, v%d" % (X + 1, e2))
        a.e("v_lshlrev_b32 v%d, 16, v%d" % (X + 2, e2 + 1))
        a.e("v_and_b32 v%d, 0xffff0000, v%d" % (X + 3, e2 + 1))
        for r in range(4):
            a.e("v_add_f32 v%d, 1.0, v%d" % (b + 4 + r, b + 4 + r))
        for r in range(4):
            a.e("v_rcp_f32 v%d, v%d" % (b + 4 + r, b + 4 + r))
        a.nop(4)
        for r in range(4):
            a.e("v_mul_f32 v%d, v%d, v%d" % (16 + ct * 4 + r, b + r, b + 4 + r))
    a.e("s_barrier")
    a.lg = []
    for ct in range(5): RD(ct, 4, "S")
    for ct in range(5):
        a.wait_lg("S%d" % ct)
        b = 96 + ct * 16
        RED(b)
        for r in range(4):
            a.e("v_fma_f32 v%d, v%d, v%d, v%d" % (b + r, b + r, 16 + ct * 4 + r, 36 + ct * 4 + r))
        a.e("v_cvt_pk_bf16_f32 v%d, v%d, v%d" % (b + 4, b, b + 1))
        a.e("v_cvt_pk_bf16_f32 v%d, v%d, v%d" % (b + 5, b + 2, b + 3))
        a.e("buffer_store_dwordx2 %s, v14, s[56:59], 0 offen offset:%d" % (vr(b + 4, 2), ct * 32))
    stamp(a, 6)
    if STAMPS: a.e("s_waitcnt vmcnt(0)")
    stamp(a, 7)
    stamp_flush(a, 8, 1, 8)
    a.e("s_endpgm")

def attention(a):
    a.e("s_setprio 3")
    O, S = 16, 32
    K0, K1, V = 80, 120, 132
    Q = 212
    T = 228
    srd(a, 28, 24, SZ_QK, WS_Q)
    srd(a, 32, 24, SZ_QK, WS_K)
    srd(a, 96, 24, SZ_V, WS_V)
    srd(a, 40, 24, SZ_O, WS_O)
    decode_gemm(a)
    a.e("s_lshl_b32 s44, s37, 2")
    a.e("s_add_u32 s44, s44, s26")
    a.e("s_sub_u32 s44, s44, 4")
    a.e("s_lshl_b32 s45, s36, 1")
    stamp(a, 0)
    a.e("v_lshlrev_b32 v8, 4, v1")
    a.e("v_and_b32 v12, 31, v1")
    a.e("v_lshrrev_b32 v13, 5, v1")
    a.e("v_mov_b32 v11, 0x%x" % OOB)
    a.e("v_lshlrev_b32 v9, 3, v12")
    a.e("v_add_u32 v9, 1024, v9")
    a.e("v_cmp_gt_u32 vcc, 32, v1")
    a.e("v_mul_u32_u24 v2, %d, v13" % KBLK)
    a.e("v_add_u32 v2, v9, v2")
    a.e("v_cndmask_b32 v3, v11, v9, vcc")
    a.e("v_cndmask_b32 v4, v9, v11, vcc")
    a.e("v_cmp_ge_u32 vcc, 20, v12")
    a.e("s_lshl_b32 s47, s44, 6")
    a.e("s_add_u32 s48, s47, s45")
    a.e("v_cndmask_b32 v10, v11, v8, vcc")
    def ldQ(u):
        a.e("s_add_u32 s49, s48, %d" % u)
        a.e("s_mul_i32 s49, s49, %d" % KBLK)
        a.vmem("buffer_load_dwordx4 %s, v8, s[28:31], s49 offen" % vr(Q + 8 * u, 4), "Q%d" % u)
        a.vmem("buffer_load_dwordx2 %s, v3, s[28:31], s49 offen" % vr(Q + 8 * u + 4, 2), "Q%d" % u)
        a.vmem("buffer_load_dwordx2 %s, v4, s[28:31], s49 offen" % vr(Q + 8 * u + 6, 2), "Q%d" % u)
    def ldK(b):
        a.e("s_add_i32 s49, s45, %d" % (b - 8))
        if b % 2 == 0:
            a.e("s_add_i32 s50, s49, s47")
            a.e("s_mul_i32 s50, s50, %d" % KBLK)
            a.e("v_add_u32 v5, s50, v2")
            a.vmem("buffer_load_dwordx2 %s, v5, s[32:35], 0 offen" % vr(K1 + b, 2), "K%d" % b)
        a.e("s_max_i32 s49, s49, 0")
        a.e("s_add_u32 s49, s49, s47")
        a.e("s_mul_i32 s50, s49, %d" % KBLK)
        a.vmem("buffer_load_dwordx4 %s, v8, s[32:35], s50 offen" % vr(K0 + 4 * b, 4), "K%d" % b)
    def ldV(b):
        a.e("s_add_i32 s49, s45, %d" % (b - 8))
        a.e("s_max_i32 s49, s49, 0")
        a.e("s_add_u32 s49, s49, s47")
        a.e("s_lshl_b32 s50, s49, 11")
        a.vmem("buffer_load_dwordx4 %s, v10, s[96:99], s50 offen" % vr(V + 8 * b, 4), "V%d" % b)
        a.vmem("buffer_load_dwordx4 %s, v10, s[96:99], s50 offen offset:1024" % vr(V + 8 * b + 4, 4), "V%d" % b)
        if b == 9 and os.environ.get("DUMMY"):
            a.vmem("buffer_load_dword v%d, v8, s[96:99], s50 offen" % (T + 22), "V9")
            a.vmem("buffer_load_dword v%d, v8, s[96:99], s50 offen offset:1024" % (T + 23), "V9")
    ldQ(0)
    for b in (0, 1, 2): ldK(b)
    for b in (0, 1, 2): ldV(b)
    for b in (3, 4, 5): ldK(b)
    if os.environ.get("B0", "0") == "1": a.e("s_barrier")
    if os.environ.get("IL", "0") == "0":
        for b in (6, 7, 8, 9): ldK(b)
        ldQ(1)
        for b in range(3, 10): ldV(b)
    SCHED = {} if os.environ.get("IL", "0") == "0" else {(0, 0): [("V", 3), ("V", 4), ("V", 5), ("K", 6), ("K", 7), ("K", 8)],
             (0, 1): [("V", 6), ("V", 7), ("V", 8), ("Q", 1), ("K", 9), ("V", 9)]}
    a.e("v_lshlrev_b32 v14, 2, v13")
    a.e("v_sub_u32 v14, v12, v14")
    for r in range(16):
        c = (r & 3) + 8 * (r >> 2)
        a.e("v_cmp_le_i32 s[%d:%d], %d, v14" % (64 + 2 * r, 65 + 2 * r, c))
    a.e("v_mov_b32 v%d, 0x%x" % (T, NEG))
    a.e("v_mov_b32 v%d, 0" % (T + 1))
    a.e("v_mov_b32 v%d, 0x%x" % (T + 7, f2u(-1e20)))
    a.e("s_mov_b32 s51, 0x%x" % f2u(QS))
    a.e("s_mov_b32 s100, s51")
    a.e("s_mov_b32 s101, s51")
    assert (T + 6) % 2 == 0 and (T + 5) % 2 == 1
    VM, VMO, VT1, VT2, VNM = T + 2, T + 3, T + 4, T + 5, T + 6
    stamp(a, 1)
    for u in range(2):
        q0, qlo, qhi = Q + 8 * u, Q + 8 * u + 4, Q + 8 * u + 6
        for ch in range(3):
            blocks = [u + 3 * ch + i for i in range(3)]
            for i, b in enumerate(blocks):
                sb = S + 16 * i
                rel = b - u
                if rel == 0:
                    for r in range(16):
                        a.e("v_cndmask_b32 v%d, v%d, v%d, s[%d:%d]" % (sb + r, T + 1, T, 64 + 2 * r, 65 + 2 * r))
                if rel == 8:
                    for r in range(16):
                        a.e("v_cndmask_b32 v%d, v%d, v%d, s[%d:%d]" % (sb + r, T, T + 1, 64 + 2 * r, 65 + 2 * r))
            for ps in range(2):
                for i, b in enumerate(blocks):
                    sb = S + 16 * i
                    rel = b - u
                    if ps == 0: a.wait_vm(["K%d" % b, "K%d" % (b - b % 2), "Q%d" % u])
                    if rel < 8:
                        L1 = a.newlabel("AT_INV"); L2 = a.newlabel("AT_NXT")
                        a.e("s_add_i32 s49, s45, %d" % (b - 8))
                        a.e("s_cmp_lt_i32 s49, 0")
                        a.e("s_cbranch_scc1 %s" % (L1 if ps == 0 else L2))
                    c = vr(sb, 16) if rel in (0, 8) else "0"
                    if ps == 0:
                        a.e("v_mfma_f32_32x32x16_bf16 %s, %s, %s, %s" % (vr(sb, 16), vr(K0 + 4 * b, 4), vr(q0, 4), c))
                    else:
                        a.e("v_mfma_f32_32x32x8_bf16 %s, %s, %s, %s" % (vr(sb, 16), vr(K1 + (b - b % 2), 2), vr(qlo if b % 2 == 0 else qhi, 2), vr(sb, 16)))
                    if rel < 8:
                        if ps == 0:
                            a.e("s_branch %s" % L2)
                            a.label(L1)
                            for r in range(16):
                                a.e("v_mov_b32 v%d, v%d" % (sb + r, T))
                        a.label(L2)
                if ps == 0: a.nop(12)
            n = 48
            for kind, b in SCHED.get((u, ch), []):
                {"Q": ldQ, "K": ldK, "V": ldV}[kind](b)
            a.nop(14)
            a.e("v_max3_f32 v%d, v%d, v%d, v%d" % (VM, S, S + 1, S + 2))
            a.e("v_max3_f32 v%d, v%d, v%d, v%d" % (VT1, S + 3, S + 4, S + 5))
            rr = list(range(6, n)); tgl = 0
            while rr:
                d = VM if tgl == 0 else VT1
                a.e("v_max3_f32 v%d, v%d, v%d, v%d" % (d, d, S + rr[0], S + rr[1])); rr = rr[2:]
                tgl ^= 1
            if ch > 0:
                a.e("v_max3_f32 v%d, v%d, v%d, v%d" % (VM, VM, VT1, VMO))
            else:
                a.e("v_max3_f32 v%d, v%d, v%d, v%d" % (VM, VM, VT1, T + 7))
            a.e("v_mov_b32 v%d, v%d" % (VT1, VM))
            a.nop(2)
            a.e("v_permlane32_swap_b32 v%d, v%d" % (VM, VT1))
            a.nop(1)
            a.e("v_max_f32 v%d, v%d, v%d" % (VM, VM, VT1))
            a.e("v_mul_f32 v%d, s51, v%d" % (VNM, VM))
            a.e("v_sub_f32 v%d, 0, v%d" % (VNM, VNM))
            if ch > 0:
                a.e("v_sub_f32 v%d, v%d, v%d" % (VT2, VNM, T + 14))
                a.e("v_exp_f32 v%d, v%d" % (VT2, VT2))
            a.e("v_mov_b32 v%d, v%d" % (VMO, VM))
            a.e("v_mov_b32 v%d, v%d" % (T + 14, VNM))
            pend = None
            for i, b in enumerate(blocks):
                sb = S + 16 * i
                if os.environ.get("PK", "0") == "1":
                  for r in range(0, 16, 2):
                    a.e("v_pk_fma_f32 %s, %s, s[100:101], %s op_sel_hi:[1,1,0]" % (vr(sb + r, 2), vr(sb + r, 2), vr(VNM, 2)))
                else:
                  for r in range(16):
                    a.e("v_fma_f32 v%d, v%d, s51, v%d" % (sb + r, sb + r, VNM))
                if pend:
                    a.e("v_mfma_f32_32x32x16_bf16 %s, %s, %s, %s" % (vr(O, 16), vr(V + 8 * pend[0] + 4, 4), vr(pend[1] + 4, 4), vr(O, 16)))
                for r in range(16):
                    a.e("v_exp_f32 v%d, v%d" % (sb + r, sb + r))
                a.nop(2)
                for r in range(8):
                    a.e("v_cvt_pk_bf16_f32 v%d, v%d, v%d" % (sb + r, sb + 2 * r, sb + 2 * r + 1))
                if ch > 0 and i == 0:
                    for r in range(12):
                        a.e("v_mul_f32 v%d, v%d, v%d" % (O + r, VT2, O + r))
                    a.nop(2)
                a.wait_vm("V%d" % b)
                a.nop(1)
                c = "0" if (ch == 0 and i == 0) else vr(O, 16)
                a.e("v_mfma_f32_32x32x16_bf16 %s, %s, %s, %s" % (vr(O, 16), vr(V + 8 * b, 4), vr(sb, 4), c))
                pend = (b, sb)
            a.nop(14)
            a.e("v_mfma_f32_32x32x16_bf16 %s, %s, %s, %s" % (vr(O, 16), vr(V + 8 * pend[0] + 4, 4), vr(pend[1] + 4, 4), vr(O, 16)))
            pend = None
            a.nop(4)
        a.nop(16)
        a.e("v_mov_b32 v%d, v%d" % (VT1, O + 8))
        a.e("v_mov_b32 v%d, v%d" % (VT2, O + 8))
        a.nop(2)
        a.e("v_permlane32_swap_b32 v%d, v%d" % (VT1, VT2))
        a.nop(1)
        a.e("v_rcp_f32 v%d, v%d" % (VT2, VT2))
        a.nop(6)
        for r in range(12):
            a.e("v_mul_f32 v%d, v%d, v%d" % (O + r, VT2, O + r))
        PK = T + 8
        for i in range(6):
            a.e("v_cvt_pk_bf16_f32 v%d, v%d, v%d" % (PK + i, O + 2 * i, O + 2 * i + 1))
        A0, A1, A2, A3 = T + 16, T + 17, T + 18, T + 19
        a.e("s_add_u32 s49, s45, %d" % u)
        a.e("s_lshl_b32 s49, s49, 1")
        a.e("v_lshrrev_b32 v%d, 4, v12" % A0)
        a.e("v_add_u32 v%d, s49, v%d" % (A0, A0))
        a.e("v_mul_u32_u24 v%d, 20, v%d" % (A0, A0))
        a.e("v_and_b32 v%d, 15, v12" % A1)
        a.e("s_mul_i32 s49, s44, 5")
        for i in range(3):
            a.e("v_add_u32 v%d, s49, v13" % A2)
            if i: a.e("v_add_u32 v%d, %d, v%d" % (A2, 2 * i, A2))
            a.e("v_lshrrev_b32 v%d, 3, v%d" % (A3, A2))
            a.e("v_add_u32 v%d, v%d, v%d" % (A3, A0, A3))
            a.e("v_lshlrev_b32 v%d, 10, v%d" % (A3, A3))
            a.e("v_bfe_u32 v%d, v%d, 1, 2" % (T + 20, A2))
            a.e("v_lshl_add_u32 v%d, v%d, 4, v%d" % (T + 20, T + 20, A1))
            a.e("v_lshl_add_u32 v%d, v%d, 4, v%d" % (A3, T + 20, A3))
            a.e("v_and_b32 v%d, 1, v%d" % (T + 20, A2))
            a.e("v_lshl_add_u32 v%d, v%d, 3, v%d" % (A3, T + 20, A3))
            if i == 2:
                a.e("v_cmp_eq_u32 vcc, 0, v13")
                a.nop(2)
                a.e("v_cndmask_b32 v%d, v11, v%d, vcc" % (A3, A3))
            a.e("buffer_store_dwordx2 %s, v%d, s[40:43], 0 offen sc1" % (vr(PK + 2 * i, 2), A3))
        stamp(a, 2 + u)
    if os.environ.get("DUMPV"):
        srd(a, 28, 24, 0x200000, 0x3000000)
        a.e("s_lshl_b32 s3, s2, 2")
        a.e("s_add_u32 s3, s3, s26")
        a.e("s_sub_u32 s3, s3, 4")
        a.e("s_lshl_b32 s3, s3, 10")
        a.e("buffer_store_dwordx4 %s, v8, s[28:31], s3 offen" % vr(V + 8 * 9 + 4, 4))
        a.e("s_waitcnt vmcnt(0)")
    a.vm = []; a.lg = []
    srd(a, 28, 24, SZ_WOF, WS_WOF)
    srd(a, 32, 24, 4096, WS_FLAG)
    a.e("s_sub_u32 s3, s26, 4")
    a.e("s_mul_i32 s45, s3, 5")
    a.e("s_mul_i32 s46, s45, 40")
    a.e("s_mul_i32 s47, s37, 5")
    a.e("s_add_u32 s46, s46, s47")
    a.e("s_lshl_b32 s46, s46, 10")
    a.e("v_add_u32 v9, 0x1000, v8")
    WB, OB, ACC = 96, 16, 176
    WREG = lambda sg, ct: 96 + (sg * 5 + ct) * 4
    OREG = lambda sg, t: 16 + (sg * 4 + t) * 4
    a.e("s_waitcnt vmcnt(0)")
    a.e("s_lshl_b32 s47, s36, 7")
    a.e("s_lshl_b32 s48, s37, 2")
    a.e("s_add_u32 s48, s48, s3")
    a.e("s_lshl_b32 s48, s48, 2")
    a.e("s_add_u32 s48, s48, s47")
    a.e("v_mov_b32 v2, 1")
    a.e("v_mov_b32 v3, s48")
    a.e("s_mov_b64 exec, 1")
    a.e("buffer_store_dword v2, v3, s[32:35], 0 offen sc1")
    a.e("s_mov_b64 exec, -1")
    for sg in range(5):
        for ct in range(5):
            if ct < 4:
                a.vmem("buffer_load_dwordx4 %s, v8, s[28:31], s46 offen offset:%d" % (vr(WREG(sg, ct), 4), ct * 1024), "W")
            else:
                a.vmem("buffer_load_dwordx4 %s, v9, s[28:31], s46 offen" % (vr(WREG(sg, ct), 4)), "W")
        if sg < 4: a.e("s_add_u32 s46, s46, 40960")
    a.e("v_and_b32 v3, 31, v1")
    a.e("v_lshlrev_b32 v3, 2, v3")
    a.e("v_add_u32 v3, s47, v3")
    stamp(a, 3)
    a.e("s_barrier")
    a.e("s_mov_b32 s49, 0")
    LP = a.newlabel("AT_POLL"); LD_ = a.newlabel("AT_GO")
    a.label(LP)
    a.e("buffer_load_dword v2, v3, s[32:35], 0 offen sc1")
    a.e("s_waitcnt vmcnt(0)")
    a.e("v_cmp_ne_u32 vcc, 1, v2")
    a.e("s_add_u32 s49, s49, 1")
    a.e("s_cmp_eq_u64 vcc, 0")
    a.e("s_cbranch_scc1 %s" % LD_)
    a.e("s_cmp_ge_u32 s49, 0x40000")
    a.e("s_cbranch_scc1 %s" % LD_)
    a.e("s_sleep 1")
    a.e("s_branch %s" % LP)
    a.label(LD_)
    stamp(a, 4)
    a.vm = []
    for t in range(4):
        a.e("s_lshl_b32 s%d, s36, 2" % (64 + t))
        a.e("s_add_u32 s%d, s%d, %d" % (64 + t, 64 + t, t))
        a.e("s_mul_i32 s%d, s%d, 20" % (64 + t, 64 + t))
        a.e("s_add_u32 s%d, s%d, s45" % (64 + t, 64 + t))
        a.e("s_lshl_b32 s%d, s%d, 10" % (64 + t, 64 + t))
    for sg in range(5):
        for t in range(4):
            a.vmem("buffer_load_dwordx4 %s, v8, s[40:43], s%d offen offset:%d sc1" % (vr(OREG(sg, t), 4), 64 + t, (sg % 4) * 1024) if sg < 4 else
                   "buffer_load_dwordx4 %s, v9, s[40:43], s%d offen sc1" % (vr(OREG(sg, t), 4), 64 + t), "O%d" % sg)
    AC = lambda t, ct: (196 + (t * 5 + ct) * 4) if (t * 5 + ct) < 15 else (2 + 0)
    for half in range(2):
        cts = (0, 1, 2) if half == 0 else (3, 4)
        for sg in range(5):
            a.wait_vm("O%d" % sg)
            for ct in cts:
                for t in range(4):
                    acc = 196 + ((ct - cts[0]) * 4 + t) * 4
                    c = "0" if sg == 0 else vr(acc, 4)
                    a.e("v_mfma_f32_16x16x32_bf16 %s, %s, %s, %s" % (vr(acc, 4), vr(WREG(sg, ct), 4), vr(OREG(sg, t), 4), c))
        a.nop(10)
        if half == 0:
            a.e("s_mul_i32 s39, s3, 20480")
            a.e("s_add_u32 s39, s39, 81920")
            a.e("v_add_u32 v11, s39, v8")
        for ct in cts:
            for t in range(4):
                acc = 196 + ((ct - cts[0]) * 4 + t) * 4
                a.e("ds_write_b128 v11, %s offset:%d" % (vr(acc, 4), (t * 5 + ct) * 1024))
        if half == 0:
            a.e("s_waitcnt lgkmcnt(0)")
    stamp(a, 5)
    a.e("s_waitcnt lgkmcnt(0)")
    a.e("s_barrier")
    stamp_flush(a, 6, 1, 8)
    a.e("s_endpgm")

def pre(a, name):
    a.e("s_cmp_ge_u32 s2, 256")
    a.e("s_cbranch_scc1 %s_END" % name)
    load_args(a)
    a.e("v_and_b32 v1, 63, v0")
    a.e("v_lshrrev_b32 v2, 6, v0")
    a.nop(1)
    a.e("v_readfirstlane_b32 s26, v2")
    a.e("s_waitcnt lgkmcnt(0)")

def gen_k2():
    a = Asm()
    pre(a, "K2")
    a.e("s_cmp_ge_u32 s26, 4")
    a.e("s_cbranch_scc1 K2_AT")
    gemm2(a)
    a.label("K2_AT")
    a.vm = []; a.lg = []
    SB[0] = 52
    attention(a)
    SB[0] = 80
    a.label("K2_END")
    a.e("s_endpgm")
    return a.text()

KERNELS = [("k2_kernel", 256, 512, 163840, gen_k2, 256)]
```

```python
import os
from common import *
import struct
def f2u(x): return struct.unpack("<I", struct.pack("<f", x))[0]
NEG = f2u(-1e30)
LOG2E = f2u(1.4426950408889634)
QS = 1.4426950408889634 * (20.0 ** -0.5)
KBLK = 1280

def decode_gemm(a):
    a.e("s_and_b32 s27, s2, 7")
    a.e("s_lshr_b32 s3, s2, 3")
    a.e("s_and_b32 s36, s27, 3")
    a.e("s_lshl_b32 s36, s36, 3")
    a.e("s_lshr_b32 s37, s3, 2")
    a.e("s_add_u32 s36, s36, s37")
    a.e("s_lshr_b32 s37, s27, 2")
    a.e("s_lshl_b32 s37, s37, 2")
    a.e("s_and_b32 s3, s3, 3")
    a.e("s_add_u32 s37, s37, s3")

WS_FLAG = 0x2200000
def gemm2(a):
    NS = 48
    NST = 12
    V_XO = 7
    ACC, RING = 16, 96
    stamp(a, 0)
    decode_gemm(a)
    srd(a, 28, 24, SZ_H, WS_H)
    srd(a, 32, 24, SZ_W2F, WS_W2F)
    srd(a, 48, 4, 2048 * 1280)
    srd(a, 52, 18, 1280)
    srd(a, 56, 20, 2048 * 1280)
    a.e("s_mul_i32 s38, s37, 160")
    a.e("v_lshlrev_b32 v%d, 4, v1" % V_XO)
    a.e("v_add_u32 v8, 0x1000, v%d" % V_XO)
    a.e("s_mul_i32 s39, s26, 20480")
    a.e("s_mul_i32 s45, s26, %d" % NST)
    a.e("s_mul_i32 s40, s45, 40")
    a.e("s_mul_i32 s41, s37, 5")
    a.e("s_add_u32 s40, s40, s41")
    a.e("s_lshl_b32 s40, s40, 10")
    for t in range(4):
        a.e("s_lshl_b32 s%d, s36, 2" % (41 + t))
        a.e("s_add_u32 s%d, s%d, %d" % (41 + t, 41 + t, t))
        a.e("s_mul_i32 s%d, s%d, %d" % (41 + t, 41 + t, NS))
        a.e("s_add_u32 s%d, s%d, s45" % (41 + t, 41 + t))
        a.e("s_lshl_b32 s%d, s%d, 10" % (41 + t, 41 + t))
    def LD(st):
        base = RING + (st % 4) * 36
        if st > 0: a.e("s_add_u32 s40, s40, 40960")
        for ct in range(5):
            if ct < 4:
                a.vmem("buffer_load_dwordx4 %s, v%d, s[32:35], s40 offen offset:%d" % (vr(base + 16 + ct * 4, 4), V_XO, ct * 1024), "W%d_%d" % (st, ct))
            else:
                a.vmem("buffer_load_dwordx4 %s, v8, s[32:35], s40 offen" % (vr(base + 16 + ct * 4, 4)), "W%d_%d" % (st, ct))
            if ct == 0:
                for t in range(4):
                    if st > 0: a.e("s_add_u32 s%d, s%d, 1024" % (41 + t, 41 + t))
                    a.vmem("buffer_load_dwordx4 %s, v%d, s[28:31], s%d offen" % (vr(base + t * 4, 4), V_XO, 41 + t), "X%d" % st)
    stamp(a, 1)
    if os.environ.get("B0", "0") == "1": a.e("s_barrier")
    for st in range(min(4, NST)):
        LD(st)
    EP = 240
    XR = lambda ct: EP + 10 + ct * 2 if ct < 3 else 2 + (ct - 3) * 2
    a.e("v_lshrrev_b32 v9, 4, v1")
    a.e("v_and_b32 v15, 15, v1")
    a.e("s_lshl_b32 s47, s36, 6")
    a.e("s_lshl_b32 s46, s26, 4")
    a.e("s_add_u32 s47, s47, s46")
    a.e("v_add_u32 v14, s47, v15")
    a.e("v_mul_u32_u24 v14, 1280, v14")
    a.e("v_lshl_add_u32 v14, v9, 3, v14")
    a.e("v_add_u32 v14, s38, v14")
    a.e("v_lshlrev_b32 v10, 3, v9")
    a.e("v_add_u32 v10, s38, v10")
    for r in range(ACC, ACC + 80):
        a.e("v_mov_b32 v%d, 0" % r)
    stamp(a, 2)
    stamp(a, 3)
    def EPL():
        for ct in range(5):
            a.vmem("buffer_load_dwordx2 %s, v10, s[52:55], 0 offen offset:%d" % (vr(EP + ct * 2, 2), ct * 32), "EP")
        for ct in range(5):
            a.vmem("buffer_load_dwordx2 %s, v14, s[48:51], 0 offen offset:%d" % (vr(XR(ct), 2), ct * 32), "EP")
    for st in range(NST):
        base = RING + (st % 4) * 36
        for ct in range(5):
            a.wait_vm(["W%d_%d" % (st, ct), "X%d" % st])
            for rt in range(4):
                acc = ACC + (rt * 5 + ct) * 4
                a.e("v_mfma_f32_16x16x32_bf16 %s, %s, %s, %s" % (vr(acc, 4), vr(base + 16 + ct * 4, 4), vr(base + rt * 4, 4), vr(acc, 4)))
        if st + 4 < NST: LD(st + 4)
        if st == NST - 5: EPL()
    stamp(a, 4)
    a.nop(10)
    a.e("v_lshlrev_b32 v10, 4, v1")
    a.e("v_add_u32 v11, s39, v10")
    for t in range(20):
        a.e("ds_write_b128 v11, %s offset:%d" % (vr(ACC + t * 4, 4), t * 1024))
    a.e("s_waitcnt lgkmcnt(0)")
    a.e("s_barrier")
    stamp(a, 5)
    a.lg = []
    a.e("s_mul_i32 s46, s26, 5120")
    a.e("v_add_u32 v11, s46, v10")
    a.e("v_add_u32 v12, 0xa000, v11")
    a.e("v_add_u32 v13, 0x14000, v11")
    a.e("v_add_u32 v15, 0x1e000, v11")
    AD = [11, 12, 13, 15]
    def RD(ct, s0, tag):
        for sw in range(4):
            q = s0 + sw
            a.lds("ds_read_b128 %s, v%d offset:%d" % (vr(96 + ct * 16 + sw * 4, 4), AD[q // 2], (q % 2) * 20480 + ct * 1024), "%s%d" % (tag, ct))
    def RED(b):
        for r in range(4):
            a.e("v_add_f32 v%d, v%d, v%d" % (b + r, b + r, b + 4 + r))
            a.e("v_add_f32 v%d, v%d, v%d" % (b + 8 + r, b + 8 + r, b + 12 + r))
        for r in range(4):
            a.e("v_add_f32 v%d, v%d, v%d" % (b + r, b + r, b + 8 + r))
    for ct in range(5): RD(ct, 0, "G")
    a.wait_vm("EP")
    for ct in range(5):
        a.wait_lg("G%d" % ct)
        b = 96 + ct * 16
        RED(b)
        e = EP + ct * 2
        a.e("v_lshlrev_b32 v%d, 16, v%d" % (b + 4, e))
        a.e("v_and_b32 v%d, 0xffff0000, v%d" % (b + 5, e))
        a.e("v_lshlrev_b32 v%d, 16, v%d" % (b + 6, e + 1))
        a.e("v_and_b32 v%d, 0xffff0000, v%d" % (b + 7, e + 1))
        for r in range(4):
            a.e("v_add_f32 v%d, v%d, v%d" % (b + r, b + r, b + 4 + r))
        for r in range(4):
            a.e("v_mul_f32 v%d, 0x%x, v%d" % (b + 4 + r, LOG2E ^ 0x80000000, b + r))
        for r in range(4):
            a.e("v_exp_f32 v%d, v%d" % (b + 4 + r, b + 4 + r))
        e2 = XR(ct)
        X = 36 + ct * 4
        a.e("v_lshlrev_b32 v%d, 16, v%d" % (X, e2))
        a.e("v_and_b32 v%d, 0xffff0000, v%d" % (X + 1, e2))
        a.e("v_lshlrev_b32 v%d, 16, v%d" % (X + 2, e2 + 1))
        a.e("v_and_b32 v%d, 0xffff0000, v%d" % (X + 3, e2 + 1))
        for r in range(4):
            a.e("v_add_f32 v%d, 1.0, v%d" % (b + 4 + r, b + 4 + r))
        for r in range(4):
            a.e("v_rcp_f32 v%d, v%d" % (b + 4 + r, b + 4 + r))
        a.nop(4)
        for r in range(4):
            a.e("v_mul_f32 v%d, v%d, v%d" % (16 + ct * 4 + r, b + r, b + 4 + r))
    DRY = os.environ.get("DRY", "1") == "1"
    if DRY:
        a.e("s_mov_b32 s60, 0")
        a.e("s_mov_b64 exec, 0")
        a.label("K2_PB")
    else:
        a.e("s_barrier")
    a.lg = []
    for ct in range(5): RD(ct, 4, "S")
    for ct in range(5):
        a.wait_lg("S%d" % ct)
        b = 96 + ct * 16
        RED(b)
        for r in range(4):
            a.e("v_fma_f32 v%d, v%d, v%d, v%d" % (b + r, b + r, 16 + ct * 4 + r, 36 + ct * 4 + r))
        a.e("v_cvt_pk_bf16_f32 v%d, v%d, v%d" % (b + 4, b, b + 1))
        a.e("v_cvt_pk_bf16_f32 v%d, v%d, v%d" % (b + 5, b + 2, b + 3))
        a.e("buffer_store_dwordx2 %s, v14, s[56:59], 0 offen offset:%d" % (vr(b + 4, 2), ct * 32))
    if DRY:
        a.e("s_cmp_eq_u32 s60, 1")
        a.e("s_cbranch_scc1 K2_PB_DONE")
        a.e("s_mov_b32 s60, 1")
        a.e("s_mov_b64 exec, -1")
        a.e("s_barrier")
        a.e("s_branch K2_PB")
        a.label("K2_PB_DONE")
    stamp(a, 6)
    if STAMPS: a.e("s_waitcnt vmcnt(0)")
    stamp(a, 7)
    stamp_flush(a, 8, 1, 8)
    a.e("s_endpgm")

def attention(a):
    a.e("s_setprio 3")
    O, S = 16, 32
    K0, K1, V = 80, 120, 132
    Q = 212
    T = 228
    srd(a, 28, 24, SZ_QK, WS_Q)
    srd(a, 32, 24, SZ_QK, WS_K)
    srd(a, 96, 24, SZ_V, WS_V)
    srd(a, 40, 24, SZ_O, WS_O)
    decode_gemm(a)
    a.e("s_lshl_b32 s44, s37, 2")
    a.e("s_add_u32 s44, s44, s26")
    a.e("s_sub_u32 s44, s44, 4")
    a.e("s_lshl_b32 s45, s36, 1")
    stamp(a, 0)
    a.e("v_lshlrev_b32 v8, 4, v1")
    a.e("v_and_b32 v12, 31, v1")
    a.e("v_lshrrev_b32 v13, 5, v1")
    a.e("v_mov_b32 v11, 0x%x" % OOB)
    a.e("v_lshlrev_b32 v9, 3, v12")
    a.e("v_add_u32 v9, 1024, v9")
    a.e("v_cmp_gt_u32 vcc, 32, v1")
    a.e("v_mul_u32_u24 v2, %d, v13" % KBLK)
    a.e("v_add_u32 v2, v9, v2")
    a.e("v_cndmask_b32 v3, v11, v9, vcc")
    a.e("v_cndmask_b32 v4, v9, v11, vcc")
    a.e("v_cmp_ge_u32 vcc, 20, v12")
    a.e("s_lshl_b32 s47, s44, 6")
    a.e("s_add_u32 s48, s47, s45")
    a.e("v_cndmask_b32 v10, v11, v8, vcc")
    def ldQ(u):
        a.e("s_add_u32 s49, s48, %d" % u)
        a.e("s_mul_i32 s49, s49, %d" % KBLK)
        a.vmem("buffer_load_dwordx4 %s, v8, s[28:31], s49 offen" % vr(Q + 8 * u, 4), "Q%d" % u)
        a.vmem("buffer_load_dwordx2 %s, v3, s[28:31], s49 offen" % vr(Q + 8 * u + 4, 2), "Q%d" % u)
        a.vmem("buffer_load_dwordx2 %s, v4, s[28:31], s49 offen" % vr(Q + 8 * u + 6, 2), "Q%d" % u)
    def ldK(b):
        a.e("s_add_i32 s49, s45, %d" % (b - 8))
        if b % 2 == 0:
            a.e("s_add_i32 s50, s49, s47")
            a.e("s_mul_i32 s50, s50, %d" % KBLK)
            a.e("v_add_u32 v5, s50, v2")
            a.vmem("buffer_load_dwordx2 %s, v5, s[32:35], 0 offen" % vr(K1 + b, 2), "K%d" % b)
        a.e("s_max_i32 s49, s49, 0")
        a.e("s_add_u32 s49, s49, s47")
        a.e("s_mul_i32 s50, s49, %d" % KBLK)
        a.vmem("buffer_load_dwordx4 %s, v8, s[32:35], s50 offen" % vr(K0 + 4 * b, 4), "K%d" % b)
    def ldV(b):
        a.e("s_add_i32 s49, s45, %d" % (b - 8))
        a.e("s_max_i32 s49, s49, 0")
        a.e("s_add_u32 s49, s49, s47")
        a.e("s_lshl_b32 s50, s49, 11")
        a.vmem("buffer_load_dwordx4 %s, v10, s[96:99], s50 offen" % vr(V + 8 * b, 4), "V%d" % b)
        a.vmem("buffer_load_dwordx4 %s, v10, s[96:99], s50 offen offset:1024" % vr(V + 8 * b + 4, 4), "V%d" % b)
        if b == 9 and os.environ.get("DUMMY"):
            a.vmem("buffer_load_dword v%d, v8, s[96:99], s50 offen" % (T + 22), "V9")
            a.vmem("buffer_load_dword v%d, v8, s[96:99], s50 offen offset:1024" % (T + 23), "V9")
    ldQ(0)
    for b in (0, 1, 2): ldK(b)
    for b in (0, 1, 2): ldV(b)
    for b in (3, 4, 5): ldK(b)
    if os.environ.get("B0", "0") == "1": a.e("s_barrier")
    if os.environ.get("IL", "0") == "0":
        for b in (6, 7, 8, 9): ldK(b)
        ldQ(1)
        for b in range(3, 10): ldV(b)
    SCHED = {} if os.environ.get("IL", "0") == "0" else {(0, 0): [("V", 3), ("V", 4), ("V", 5), ("K", 6), ("K", 7), ("K", 8)],
             (0, 1): [("V", 6), ("V", 7), ("V", 8), ("Q", 1), ("K", 9), ("V", 9)]}
    a.e("v_lshlrev_b32 v14, 2, v13")
    a.e("v_sub_u32 v14, v12, v14")
    for r in range(16):
        c = (r & 3) + 8 * (r >> 2)
        a.e("v_cmp_le_i32 s[%d:%d], %d, v14" % (64 + 2 * r, 65 + 2 * r, c))
    a.e("v_mov_b32 v%d, 0x%x" % (T, NEG))
    a.e("v_mov_b32 v%d, 0" % (T + 1))
    a.e("v_mov_b32 v%d, 0x%x" % (T + 7, f2u(-1e20)))
    a.e("s_mov_b32 s51, 0x%x" % f2u(QS))
    a.e("s_mov_b32 s100, s51")
    a.e("s_mov_b32 s101, s51")
    assert (T + 6) % 2 == 0 and (T + 5) % 2 == 1
    VM, VMO, VT1, VT2, VNM = T + 2, T + 3, T + 4, T + 5, T + 6
    stamp(a, 1)
    for u in range(2):
        q0, qlo, qhi = Q + 8 * u, Q + 8 * u + 4, Q + 8 * u + 6
        for ch in range(3):
            blocks = [u + 3 * ch + i for i in range(3)]
            for i, b in enumerate(blocks):
                sb = S + 16 * i
                rel = b - u
                if rel == 0:
                    for r in range(16):
                        a.e("v_cndmask_b32 v%d, v%d, v%d, s[%d:%d]" % (sb + r, T + 1, T, 64 + 2 * r, 65 + 2 * r))
                if rel == 8:
                    for r in range(16):
                        a.e("v_cndmask_b32 v%d, v%d, v%d, s[%d:%d]" % (sb + r, T, T + 1, 64 + 2 * r, 65 + 2 * r))
            for ps in range(2):
                for i, b in enumerate(blocks):
                    sb = S + 16 * i
                    rel = b - u
                    if ps == 0: a.wait_vm(["K%d" % b, "K%d" % (b - b % 2), "Q%d" % u])
                    if rel < 8:
                        L1 = a.newlabel("AT_INV"); L2 = a.newlabel("AT_NXT")
                        a.e("s_add_i32 s49, s45, %d" % (b - 8))
                        a.e("s_cmp_lt_i32 s49, 0")
                        a.e("s_cbranch_scc1 %s" % (L1 if ps == 0 else L2))
                    c = vr(sb, 16) if rel in (0, 8) else "0"
                    if ps == 0:
                        a.e("v_mfma_f32_32x32x16_bf16 %s, %s, %s, %s" % (vr(sb, 16), vr(K0 + 4 * b, 4), vr(q0, 4), c))
                    else:
                        a.e("v_mfma_f32_32x32x8_bf16 %s, %s, %s, %s" % (vr(sb, 16), vr(K1 + (b - b % 2), 2), vr(qlo if b % 2 == 0 else qhi, 2), vr(sb, 16)))
                    if rel < 8:
                        if ps == 0:
                            a.e("s_branch %s" % L2)
                            a.label(L1)
                            for r in range(16):
                                a.e("v_mov_b32 v%d, v%d" % (sb + r, T))
                        a.label(L2)
                if ps == 0: a.nop(12)
            n = 48
            for kind, b in SCHED.get((u, ch), []):
                {"Q": ldQ, "K": ldK, "V": ldV}[kind](b)
            a.nop(14)
            a.e("v_max3_f32 v%d, v%d, v%d, v%d" % (VM, S, S + 1, S + 2))
            a.e("v_max3_f32 v%d, v%d, v%d, v%d" % (VT1, S + 3, S + 4, S + 5))
            rr = list(range(6, n)); tgl = 0
            while rr:
                d = VM if tgl == 0 else VT1
                a.e("v_max3_f32 v%d, v%d, v%d, v%d" % (d, d, S + rr[0], S + rr[1])); rr = rr[2:]
                tgl ^= 1
            if ch > 0:
                a.e("v_max3_f32 v%d, v%d, v%d, v%d" % (VM, VM, VT1, VMO))
            else:
                a.e("v_max3_f32 v%d, v%d, v%d, v%d" % (VM, VM, VT1, T + 7))
            a.e("v_mov_b32 v%d, v%d" % (VT1, VM))
            a.nop(2)
            a.e("v_permlane32_swap_b32 v%d, v%d" % (VM, VT1))
            a.nop(1)
            a.e("v_max_f32 v%d, v%d, v%d" % (VM, VM, VT1))
            a.e("v_mul_f32 v%d, s51, v%d" % (VNM, VM))
            a.e("v_sub_f32 v%d, 0, v%d" % (VNM, VNM))
            if ch > 0:
                a.e("v_sub_f32 v%d, v%d, v%d" % (VT2, VNM, T + 14))
                a.e("v_exp_f32 v%d, v%d" % (VT2, VT2))
            a.e("v_mov_b32 v%d, v%d" % (VMO, VM))
            a.e("v_mov_b32 v%d, v%d" % (T + 14, VNM))
            pend = None
            for i, b in enumerate(blocks):
                sb = S + 16 * i
                if os.environ.get("PK", "0") == "1":
                  for r in range(0, 16, 2):
                    a.e("v_pk_fma_f32 %s, %s, s[100:101], %s op_sel_hi:[1,1,0]" % (vr(sb + r, 2), vr(sb + r, 2), vr(VNM, 2)))
                else:
                  for r in range(16):
                    a.e("v_fma_f32 v%d, v%d, s51, v%d" % (sb + r, sb + r, VNM))
                if pend:
                    a.e("v_mfma_f32_32x32x16_bf16 %s, %s, %s, %s" % (vr(O, 16), vr(V + 8 * pend[0] + 4, 4), vr(pend[1] + 4, 4), vr(O, 16)))
                for r in range(16):
                    a.e("v_exp_f32 v%d, v%d" % (sb + r, sb + r))
                a.nop(2)
                for r in range(8):
                    a.e("v_cvt_pk_bf16_f32 v%d, v%d, v%d" % (sb + r, sb + 2 * r, sb + 2 * r + 1))
                if ch > 0 and i == 0:
                    for r in range(12):
                        a.e("v_mul_f32 v%d, v%d, v%d" % (O + r, VT2, O + r))
                    a.nop(2)
                a.wait_vm("V%d" % b)
                a.nop(1)
                c = "0" if (ch == 0 and i == 0) else vr(O, 16)
                a.e("v_mfma_f32_32x32x16_bf16 %s, %s, %s, %s" % (vr(O, 16), vr(V + 8 * b, 4), vr(sb, 4), c))
                pend = (b, sb)
            a.nop(14)
            a.e("v_mfma_f32_32x32x16_bf16 %s, %s, %s, %s" % (vr(O, 16), vr(V + 8 * pend[0] + 4, 4), vr(pend[1] + 4, 4), vr(O, 16)))
            pend = None
            a.nop(4)
        a.nop(16)
        a.e("v_mov_b32 v%d, v%d" % (VT1, O + 8))
        a.e("v_mov_b32 v%d, v%d" % (VT2, O + 8))
        a.nop(2)
        a.e("v_permlane32_swap_b32 v%d, v%d" % (VT1, VT2))
        a.nop(1)
        a.e("v_rcp_f32 v%d, v%d" % (VT2, VT2))
        a.nop(6)
        for r in range(12):
            a.e("v_mul_f32 v%d, v%d, v%d" % (O + r, VT2, O + r))
        PK = T + 8
        for i in range(6):
            a.e("v_cvt_pk_bf16_f32 v%d, v%d, v%d" % (PK + i, O + 2 * i, O + 2 * i + 1))
        A0, A1, A2, A3 = T + 16, T + 17, T + 18, T + 19
        a.e("s_add_u32 s49, s45, %d" % u)
        a.e("s_lshl_b32 s49, s49, 1")
        a.e("v_lshrrev_b32 v%d, 4, v12" % A0)
        a.e("v_add_u32 v%d, s49, v%d" % (A0, A0))
        a.e("v_mul_u32_u24 v%d, 20, v%d" % (A0, A0))
        a.e("v_and_b32 v%d, 15, v12" % A1)
        a.e("s_mul_i32 s49, s44, 5")
        for i in range(3):
            a.e("v_add_u32 v%d, s49, v13" % A2)
            if i: a.e("v_add_u32 v%d, %d, v%d" % (A2, 2 * i, A2))
            a.e("v_lshrrev_b32 v%d, 3, v%d" % (A3, A2))
            a.e("v_add_u32 v%d, v%d, v%d" % (A3, A0, A3))
            a.e("v_lshlrev_b32 v%d, 10, v%d" % (A3, A3))
            a.e("v_bfe_u32 v%d, v%d, 1, 2" % (T + 20, A2))
            a.e("v_lshl_add_u32 v%d, v%d, 4, v%d" % (T + 20, T + 20, A1))
            a.e("v_lshl_add_u32 v%d, v%d, 4, v%d" % (A3, T + 20, A3))
            a.e("v_and_b32 v%d, 1, v%d" % (T + 20, A2))
            a.e("v_lshl_add_u32 v%d, v%d, 3, v%d" % (A3, T + 20, A3))
            if i == 2:
                a.e("v_cmp_eq_u32 vcc, 0, v13")
                a.nop(2)
                a.e("v_cndmask_b32 v%d, v11, v%d, vcc" % (A3, A3))
            a.e("buffer_store_dwordx2 %s, v%d, s[40:43], 0 offen sc1" % (vr(PK + 2 * i, 2), A3))
        stamp(a, 2 + u)
    if os.environ.get("DUMPV"):
        srd(a, 28, 24, 0x200000, 0x3000000)
        a.e("s_lshl_b32 s3, s2, 2")
        a.e("s_add_u32 s3, s3, s26")
        a.e("s_sub_u32 s3, s3, 4")
        a.e("s_lshl_b32 s3, s3, 10")
        a.e("buffer_store_dwordx4 %s, v8, s[28:31], s3 offen" % vr(V + 8 * 9 + 4, 4))
        a.e("s_waitcnt vmcnt(0)")
    a.vm = []; a.lg = []
    srd(a, 28, 24, SZ_WOF, WS_WOF)
    srd(a, 32, 24, 4096, WS_FLAG)
    a.e("s_sub_u32 s3, s26, 4")
    a.e("s_mul_i32 s45, s3, 5")
    a.e("s_mul_i32 s46, s45, 40")
    a.e("s_mul_i32 s47, s37, 5")
    a.e("s_add_u32 s46, s46, s47")
    a.e("s_lshl_b32 s46, s46, 10")
    a.e("v_add_u32 v9, 0x1000, v8")
    WB, OB, ACC = 96, 16, 176
    WREG = lambda sg, ct: 96 + (sg * 5 + ct) * 4
    OREG = lambda sg, t: 16 + (sg * 4 + t) * 4
    a.e("s_waitcnt vmcnt(0)")
    a.e("s_lshl_b32 s47, s36, 7")
    a.e("s_lshl_b32 s48, s37, 2")
    a.e("s_add_u32 s48, s48, s3")
    a.e("s_lshl_b32 s48, s48, 2")
    a.e("s_add_u32 s48, s48, s47")
    a.e("v_mov_b32 v2, 1")
    a.e("v_mov_b32 v3, s48")
    a.e("s_mov_b64 exec, 1")
    a.e("buffer_store_dword v2, v3, s[32:35], 0 offen sc1")
    a.e("s_mov_b64 exec, -1")
    for sg in range(5):
        for ct in range(5):
            if ct < 4:
                a.vmem("buffer_load_dwordx4 %s, v8, s[28:31], s46 offen offset:%d" % (vr(WREG(sg, ct), 4), ct * 1024), "W")
            else:
                a.vmem("buffer_load_dwordx4 %s, v9, s[28:31], s46 offen" % (vr(WREG(sg, ct), 4)), "W")
        if sg < 4: a.e("s_add_u32 s46, s46, 40960")
    a.e("v_and_b32 v3, 31, v1")
    a.e("v_lshlrev_b32 v3, 2, v3")
    a.e("v_add_u32 v3, s47, v3")
    stamp(a, 3)
    a.e("s_barrier")
    a.e("s_mov_b32 s49, 0")
    LP = a.newlabel("AT_POLL"); LD_ = a.newlabel("AT_GO")
    a.label(LP)
    a.e("buffer_load_dword v2, v3, s[32:35], 0 offen sc1")
    a.e("s_waitcnt vmcnt(0)")
    a.e("v_cmp_ne_u32 vcc, 1, v2")
    a.e("s_add_u32 s49, s49, 1")
    a.e("s_cmp_eq_u64 vcc, 0")
    a.e("s_cbranch_scc1 %s" % LD_)
    a.e("s_cmp_ge_u32 s49, 0x40000")
    a.e("s_cbranch_scc1 %s" % LD_)
    a.e("s_sleep 1")
    a.e("s_branch %s" % LP)
    a.label(LD_)
    stamp(a, 4)
    a.vm = []
    for t in range(4):
        a.e("s_lshl_b32 s%d, s36, 2" % (64 + t))
        a.e("s_add_u32 s%d, s%d, %d" % (64 + t, 64 + t, t))
        a.e("s_mul_i32 s%d, s%d, 20" % (64 + t, 64 + t))
        a.e("s_add_u32 s%d, s%d, s45" % (64 + t, 64 + t))
        a.e("s_lshl_b32 s%d, s%d, 10" % (64 + t, 64 + t))
    for sg in range(5):
        for t in range(4):
            a.vmem("buffer_load_dwordx4 %s, v8, s[40:43], s%d offen offset:%d sc1" % (vr(OREG(sg, t), 4), 64 + t, (sg % 4) * 1024) if sg < 4 else
                   "buffer_load_dwordx4 %s, v9, s[40:43], s%d offen sc1" % (vr(OREG(sg, t), 4), 64 + t), "O%d" % sg)
    AC = lambda t, ct: (196 + (t * 5 + ct) * 4) if (t * 5 + ct) < 15 else (2 + 0)
    for half in range(2):
        cts = (0, 1, 2) if half == 0 else (3, 4)
        for sg in range(5):
            a.wait_vm("O%d" % sg)
            for ct in cts:
                for t in range(4):
                    acc = 196 + ((ct - cts[0]) * 4 + t) * 4
                    c = "0" if sg == 0 else vr(acc, 4)
                    a.e("v_mfma_f32_16x16x32_bf16 %s, %s, %s, %s" % (vr(acc, 4), vr(WREG(sg, ct), 4), vr(OREG(sg, t), 4), c))
        a.nop(10)
        if half == 0:
            a.e("s_mul_i32 s39, s3, 20480")
            a.e("s_add_u32 s39, s39, 81920")
            a.e("v_add_u32 v11, s39, v8")
        for ct in cts:
            for t in range(4):
                acc = 196 + ((ct - cts[0]) * 4 + t) * 4
                a.e("ds_write_b128 v11, %s offset:%d" % (vr(acc, 4), (t * 5 + ct) * 1024))
        if half == 0:
            a.e("s_waitcnt lgkmcnt(0)")
    stamp(a, 5)
    a.e("s_waitcnt lgkmcnt(0)")
    a.e("s_barrier")
    stamp_flush(a, 6, 1, 8)
    a.e("s_endpgm")

def pre(a, name):
    a.e("s_cmp_ge_u32 s2, 256")
    a.e("s_cbranch_scc1 %s_END" % name)
    load_args(a)
    a.e("v_and_b32 v1, 63, v0")
    a.e("v_lshrrev_b32 v2, 6, v0")
    a.nop(1)
    a.e("v_readfirstlane_b32 s26, v2")
    a.e("s_waitcnt lgkmcnt(0)")

def gen_k2():
    a = Asm()
    pre(a, "K2")
    a.e("s_cmp_ge_u32 s26, 4")
    a.e("s_cbranch_scc1 K2_AT")
    gemm2(a)
    a.label("K2_AT")
    a.vm = []; a.lg = []
    SB[0] = 52
    attention(a)
    SB[0] = 80
    a.label("K2_END")
    a.e("s_endpgm")
    return a.text()

KERNELS = [("k2_kernel", 256, 512, 163840, gen_k2, 256)]
```

```python
import os
from common import *
import struct, os
SCQ = os.environ.get("SCQ", "")
SCH = os.environ.get("SCH", " sc1")
def f2u(x): return struct.unpack("<I", struct.pack("<f", x))[0]

V_DMA = 16
V_XD = 8
V_XA = 24
V_TR = 26
V_CUR, V_NXT = 27, 12
V_XC0, V_XC1, V_XN0 = 13, 14, 15
V_ONE = 28
V_XR = 32
V_WF = 64
V_ST = 92
V_CS = 108
V_ACC = 128
V_B1 = 224
SLOT = 47104
XOFF = 30720
LDS_CS = 3 * SLOT
LDS_ST = LDS_CS + 1024
K1_LDS = LDS_CS + 2048
KBLK = 1280

def k1_setup(a, typ):
    if typ == 'Q':
        CPR, NCH, MUL, RB, RS = 30, 30, 2185, 3840, 480
        srd(a, 32, 6, 640 * 3840)
        a.e("s_mul_i32 s38, s37, 480")
        srd(a, 48, 24, 0xC00000, 0)
    else:
        CPR, NCH, MUL, RB, RS = 26, 24, 2521, 3072, 416
        srd(a, 32, 12, 640 * 3072)
        a.e("s_sub_u32 s39, s37, 8")
        a.e("s_mul_i32 s38, s39, 384")
        srd(a, 48, 24, SZ_H, WS_H)
        srd(a, 52, 14, 1536 * 2)
    a.e("s_lshl_b32 s41, s26, 6")
    a.e("s_mov_b32 s46, %d" % RB)
    for i in range(8):
        d = V_DMA + i
        a.e("v_add_u32 v2, s41, v1")
        if i: a.e("v_add_u32 v2, %d, v2" % (256 * i))
        a.e("v_mul_u32_u24 v3, %d, v2" % MUL)
        a.e("v_lshrrev_b32 v3, 16, v3")
        a.e("v_mul_u32_u24 v4, %d, v3" % CPR)
        a.e("v_sub_u32 v4, v2, v4")
        a.e("v_and_b32 v5, 35, v3")
        a.e("v_bfe_u32 v6, v3, 4, 1")
        a.e("v_lshl_or_b32 v5, v6, 2, v5")
        a.e("v_bfe_u32 v6, v3, 2, 2")
        a.e("v_lshl_or_b32 v5, v6, 3, v5")
        a.e("v_mul_lo_u32 v5, v5, s46")
        a.e("v_min_u32 v4, %d, v4" % (NCH - 1))
        a.e("v_lshl_add_u32 v5, v4, 4, v5")
        a.e("v_add_u32 v%d, s38, v5" % d)
    a.e("v_bfe_u32 v2, v1, 2, 4")
    a.e("v_mul_u32_u24 v2, %d, v2" % RS)
    a.e("v_and_b32 v3, 3, v1")
    a.e("v_lshl_add_u32 v%d, v3, 3, v2" % V_TR)
    a.e("s_and_b32 s3, s26, 1")
    a.e("s_mul_i32 s3, s3, %d" % (256 if typ == 'Q' else 192))
    a.e("v_add_u32 v%d, s3, v%d" % (V_TR, V_TR))
    a.e("s_mul_i32 s47, s46, 64")
    return RB, RS

def nW(typ, w):
    n = 30 if typ == 'Q' else 26
    return [i for i in range(8) if w + 4 * i < n]

def issue_x(a, c_imm=None):
    for j in range(4):
        a.e("s_add_u32 m0, s42, %d" % (j * 1024))
        a.nop(1)
        a.e("buffer_load_dwordx4 v%d, s[28:31], s44 offen lds" % (V_XD + j))

def k1_prologue(a, typ, RB, hook=None):
    stamp(a, 1)
    n = 30 if typ == 'Q' else 26
    a.e("s_lshl_b32 s41, s26, 10")
    for c in range(2):
        if c == 1:
            if hook: hook()
            a.e("s_add_u32 s42, s74, %d" % SLOT)
            a.e("s_movk_i32 s44, 128")
            issue_x(a)
            a.e("s_movk_i32 s44, 256")
        a.e("s_mul_i32 s43, s47, %d" % c)
        for i in range(8):
            lab = None
            if 4 * i >= n: continue
            if 4 * i + 3 >= n:
                lab = a.newlabel("K1_SK")
                a.e("s_cmp_ge_u32 s26, %d" % (n - 4 * i))
                a.e("s_cbranch_scc1 %s" % lab)
            a.e("s_add_u32 m0, s41, %d" % (c * SLOT + i * 4096))
            a.nop(1)
            a.e("buffer_load_dwordx4 v%d, s[32:35], s43 offen lds" % (V_DMA + i))
            if lab: a.label(lab)
    a.e("s_lshr_b32 s60, s2, 3")
    a.e("v_and_b32 v2, 31, v1")
    a.e("v_lshrrev_b32 v3, 5, v1")
    a.e("s_and_b32 s61, s27, 1")
    a.e("s_lshl_b32 s61, s61, 10")
    a.e("s_lshl_b32 s62, s60, 5")
    a.e("s_add_u32 s61, s61, s62")
    a.e("v_add_u32 v4, s61, v2")
    a.e("v_mul_u32_u24 v4, 1280, v4")
    a.e("s_lshl_b32 s62, s26, 1")
    a.e("s_add_u32 s62, s62, 2")
    a.e("v_add_u32 v5, s62, v3")
    a.e("v_lshl_add_u32 v4, v5, 7, v4")
    a.e("v_mov_b32 v126, v4")
    LPR = 15 if typ == 'Q' else 12
    a.e("s_mul_i32 s61, s60, %d" % (2 * LPR))
    a.e("v_min_u32 v2, %d, v2" % (2 * LPR - 1))
    a.e("v_add_u32 v4, s61, v2")
    a.e("v_mul_u32_u24 v6, %d, v4" % (4370 if LPR == 15 else 5462))
    a.e("v_lshrrev_b32 v6, 16, v6")
    a.e("v_mul_u32_u24 v7, %d, v6" % LPR)
    a.e("v_sub_u32 v7, v4, v7")
    a.e("v_lshl_add_u32 v6, v5, 6, v6")
    a.e("v_mul_lo_u32 v6, v6, s46")
    a.e("v_lshl_add_u32 v6, v7, 7, v6")
    a.e("s_lshr_b32 s61, s27, 1")
    a.e("s_and_b32 s61, s61, 1")
    a.e("s_mul_i32 s61, s61, %d" % (LPR * 128))
    a.e("v_add_u32 v6, s61, v6")
    a.e("v_mov_b32 v127, v6")
    LT = a.newlabel("K1_T")
    a.e("s_cmp_lg_u32 s26, 0")
    a.e("s_cbranch_scc1 %s" % LT)
    a.e("buffer_load_dword v124, v126, s[28:31], 0 offen")
    a.e("buffer_load_dword v125, v127, s[32:35], 0 offen")
    a.label(LT)

def k1_common_init(a, typ):
    for r in list(range(V_ST, 124)) + list(range(V_ACC, 256 if typ == 'Q' else 224)):
        a.e("v_mov_b32 v%d, 0" % r)
    for r in range(4):
        a.e("v_mov_b32 v%d, 0x3f803f80" % (V_ONE + r))

def k1_loop(a, typ, TT, isvall, w, RS, lbl):
    wr, wc = w >> 1, w & 1
    T0 = (TT + 1) // 2
    T = T0 if wc == 0 else TT - T0
    isv = isvall[wc * T0: wc * T0 + T]
    NR = 7 if T == 7 else 4
    D = 3
    Wi = nW(typ, w)
    def slotregs(cur_s, nxt_s):
        a.e("v_add_u32 v%d, %s, v%d" % (V_CUR, cur_s, V_TR))
        a.e("v_add_u32 v%d, %s, v%d" % (V_NXT, nxt_s, V_TR))
        a.e("v_add_u32 v%d, %s, v%d" % (V_XC0, cur_s, V_XA))
        a.e("v_add_u32 v%d, %s, v%d" % (V_XC1, cur_s, V_XA + 1))
        a.e("v_add_u32 v%d, %s, v%d" % (V_XN0, nxt_s, V_XA))
    a.e("s_mov_b32 s70, 0"); a.e("s_mov_b32 s71, %d" % SLOT); a.e("s_mov_b32 s72, %d" % (2 * SLOT))
    slotregs("s70", "s71")
    if typ == 'Q':
        a.e("s_waitcnt vmcnt(%d)" % (4 + len(Wi) + (2 if w == 0 else 0)))
    a.e("s_barrier")
    stamp(a, 2)
    a.lg = []
    def rdx(xs, base, tag):
        for rt in range(4):
            a.lds("ds_read_b128 %s, v%d offset:%d" % (vr(xs + rt * 4, 4), base, rt * 2048), tag)
    def rdw(base, ks, pl, h):
        ff = V_WF + ((ks * T + pl) % NR) * 4
        a.lds("ds_read_b64_tr_b16 %s, v%d offset:%d" % (vr(ff + 2 * h, 2), base, (32 * ks) * RS + pl * 32 + h * 16 * RS), "W%d_%d" % (ks, pl))
    rdx(V_XR, V_XC0, "X0")
    for pl in range(D):
        rdw(V_CUR, 0, pl, 0); rdw(V_CUR, 0, pl, 1)
    a.e("s_mov_b32 s45, 0")
    a.label(lbl)
    L = [("W", i) for i in Wi] + [("X", j) for j in range(4)]
    nL = len(L)
    slots = 2 * T - 2
    per = [1] * slots
    for k in range(nL - slots): per[k] += 1
    a.e("s_add_u32 s42, s72, s41")
    a.e("s_add_u32 s73, s72, s74")
    si = 0
    for ks in range(2):
        xs = V_XR + ks * 16
        xn = V_XR + (1 - ks) * 16
        for pl in range(T):
            f = V_WF + ((ks * T + pl) % NR) * 4
            if ks == 1 and pl == T - 2:
                a.e("s_waitcnt vmcnt(%d) lgkmcnt(0)" % nL); a.lg = []
                a.e("s_barrier")
                rdx(xn, V_XN0, "X0")
            else:
                a.wait_lg(["W%d_%d" % (ks, pl), "X%d" % ks])
            dms = []
            if not (ks == 1 and pl >= T - 2):
                for _ in range(per[si]):
                    if L: dms.append(L.pop(0))
                si += 1
            for rt in range(4):
                acc = V_ACC + (pl * 4 + rt) * 4
                x = xs + rt * 4
                if rt >= 2 and dms:
                    kind, i = dms[0]
                    if kind == "W": a.e("s_add_u32 m0, s42, %d" % (i * 4096))
                    else: a.e("s_add_u32 m0, s73, %d" % (i * 1024))
                if isv[pl]:
                    a.e("v_mfma_f32_16x16x32_bf16 %s, %s, %s, %s" % (vr(acc, 4), vr(x, 4), vr(f, 4), vr(acc, 4)))
                else:
                    a.e("v_mfma_f32_16x16x32_bf16 %s, %s, %s, %s" % (vr(acc, 4), vr(f, 4), vr(x, 4), vr(acc, 4)))
                q = pl + D
                if rt < 2:
                    if ks == 1 and q >= T:
                        if pl == T - 2:
                            a.lg_last = None
                            ks2, tt = 0, rt
                            ff = V_WF + (tt % NR) * 4
                            for h in range(2):
                                a.lds("ds_read_b64_tr_b16 %s, v%d offset:%d" % (vr(ff + 2 * h, 2), V_NXT, tt * 32 + h * 16 * RS), "W0_%d" % tt)
                        elif pl == T - 1:
                            ff = V_WF + (2 % NR) * 4
                            a.lds("ds_read_b64_tr_b16 %s, v%d offset:%d" % (vr(ff + 2 * rt, 2), V_NXT, 2 * 32 + rt * 16 * RS), "W0_2")
                    elif q < T:
                        rdw(V_CUR, ks, q, rt)
                    else:
                        rdw(V_CUR, 1, q - T, rt)
                if rt >= 2 and dms:
                    kind, i = dms.pop(0)
                    if kind == "W":
                        a.e("buffer_load_dwordx4 v%d, s[32:35], s43 offen lds" % (V_DMA + i))
                    else:
                        a.e("buffer_load_dwordx4 v%d, s[28:31], s44 offen lds" % (V_XD + i))
                    if not L and not dms and w >= 1:
                        LT = a.newlabel("K1_T")
                        a.e("s_cmp_lg_u32 s45, %d" % (2 * (w - 1)))
                        a.e("s_cbranch_scc1 %s" % LT)
                        a.e("buffer_load_dword v124, v126, s[28:31], 0 offen")
                        a.e("buffer_load_dword v125, v127, s[32:35], 0 offen")
                        a.label(LT)
            if pl % 2 == wr:
                cs = V_CS + (pl // 2) * 4
                a.e("v_mfma_f32_16x16x32_bf16 %s, %s, %s, %s" % (vr(cs, 4), vr(f, 4), vr(V_ONE, 4), vr(cs, 4)))
            RSP = 2 if typ == 'Q' else 4
            if pl < 4:
                x = xs + pl * 4
                st = V_ST + pl * 4
                if wc == 0:
                    if pl < RSP:
                        a.e("v_mfma_f32_16x16x32_bf16 %s, %s, %s, %s" % (vr(st, 4), vr(V_ONE, 4), vr(x, 4), vr(st, 4)))
                else:
                    a.e("v_mfma_f32_16x16x32_bf16 %s, %s, %s, %s" % (vr(st, 4), vr(x, 4), vr(x, 4), vr(st, 4)))
            if wc == 1 and pl >= 4 and pl - 4 + RSP < 4:
                rt = pl - 4 + RSP
                x = xs + rt * 4
                st = 240 + (pl - 4) * 4
                a.e("v_mfma_f32_16x16x32_bf16 %s, %s, %s, %s" % (vr(st, 4), vr(V_ONE, 4), vr(x, 4), vr(st, 4)))
            if ks == 0 and pl == 0:
                rdx(xn, V_XC1, "X1")
    assert not L, L
    a.e("s_add_u32 s43, s43, s47")
    a.e("s_add_u32 s44, s44, 128")
    a.e("s_min_u32 s44, s44, %d" % (9 * 128))
    a.e("s_mov_b32 s75, s70"); a.e("s_mov_b32 s70, s71"); a.e("s_mov_b32 s71, s72"); a.e("s_mov_b32 s72, s75")
    slotregs("s70", "s71")
    a.e("s_add_u32 s45, s45, 1")
    a.e("s_cmp_lt_u32 s45, 10")
    a.e("s_cbranch_scc1 %s" % lbl)
    a.lg = []

def k1_stats(a, TT, w):
    wr, wc = w >> 1, w & 1
    T0 = (TT + 1) // 2
    T = T0 if wc == 0 else TT - T0
    stamp(a, 3)
    a.e("s_waitcnt lgkmcnt(0)")
    a.nop(10)
    a.e("v_and_b32 v2, 15, v1")
    a.e("v_lshrrev_b32 v3, 4, v1")
    a.e("v_lshlrev_b32 v4, 4, v3")
    a.e("v_add_u32 v4, %d, v4" % LDS_CS)
    a.e("v_cmp_eq_u32 vcc, 0, v2")
    a.e("s_and_saveexec_b64 s[56:57], vcc")
    for pl in range(T):
        if pl % 2 == wr:
            a.e("ds_write_b128 v4, %s offset:%d" % (vr(V_CS + (pl // 2) * 4, 4), (wc * T0 + pl) * 64))
    a.e("s_mov_b64 exec, s[56:57]")
    a.e("v_lshlrev_b32 v7, 3, v2")
    a.e("v_add_u32 v7, %d, v7" % (LDS_ST + wr * 512))
    RSP = 2 if TT == 15 else 4
    if wc == 0:
        a.e("v_cmp_eq_u32 vcc, 0, v3")
        a.e("s_and_saveexec_b64 s[56:57], vcc")
        for rt in range(RSP):
            a.e("ds_write_b32 v7, v%d offset:%d" % (V_ST + rt * 4, rt * 128))
    else:
        if RSP < 4:
            a.e("v_cmp_eq_u32 vcc, 0, v3")
            a.e("s_and_saveexec_b64 s[56:57], vcc")
            for rt in range(RSP, 4):
                a.e("ds_write_b32 v7, v%d offset:%d" % (240 + (rt - RSP) * 4, rt * 128))
            a.e("s_mov_b64 exec, s[56:57]")
        a.e("v_and_b32 v5, 3, v2")
        a.e("v_lshrrev_b32 v6, 2, v2")
        for r in range(1, 4):
            a.e("v_cmp_eq_u32 s[%d:%d], %d, v5" % (60 + 2 * r, 61 + 2 * r, r))
        a.e("v_cmp_eq_u32 vcc, v6, v3")
        a.e("s_and_saveexec_b64 s[56:57], vcc")
        for rt in range(4):
            g = V_ST + rt * 4
            a.e("v_mov_b32 v8, v%d" % g)
            for r in range(1, 4):
                a.e("v_cndmask_b32 v8, v8, v%d, s[%d:%d]" % (g + r, 60 + 2 * r, 61 + 2 * r))
            a.e("ds_write_b32 v7, v8 offset:%d" % (rt * 128 + 4))
            a.nop(1)
    a.e("s_mov_b64 exec, s[56:57]")
    a.e("s_waitcnt vmcnt(0) lgkmcnt(0)")
    a.e("s_barrier")

def k1_stats2(a):
    L = a.newlabel("K1_S2")
    a.e("v_and_b32 v2, 15, v1")
    a.e("v_lshrrev_b32 v3, 4, v1")
    a.e("s_cmp_ge_u32 s26, 2")
    a.e("s_cbranch_scc1 %s" % L)
    a.e("s_lshl_b32 s3, s26, 9")
    a.e("s_add_u32 s3, s3, %d" % LDS_ST)
    a.e("v_lshlrev_b32 v7, 3, v1")
    a.e("v_add_u32 v7, s3, v7")
    a.e("ds_read_b64 v[8:9], v7")
    a.e("s_waitcnt lgkmcnt(0)")
    a.e("v_mul_f32 v9, 0x%x, v9" % f2u(1.0 / 640))
    a.e("v_mul_f32 v8, 0x%x, v8" % f2u(1.0 / 640))
    a.e("v_fma_f32 v9, -v8, v8, v9")
    a.e("v_max_f32 v9, 0, v9")
    a.e("v_add_f32 v9, 0x%x, v9" % f2u(1e-5))
    a.e("v_rsq_f32 v10, v9")
    a.nop(6)
    a.e("v_mul_f32 v11, v8, v10")
    a.e("v_sub_f32 v11, 0, v11")
    a.e("ds_write_b64 v7, v[10:11]")
    a.e("s_waitcnt lgkmcnt(0)")
    a.label(L)
    a.e("s_barrier")
    stamp(a, 4)
    a.e("s_lshr_b32 s58, s26, 1")
    a.e("s_lshl_b32 s58, s58, 9")
    a.e("s_add_u32 s58, s58, %d" % LDS_ST)
    a.e("s_and_b32 s57, s26, 1")

def k1_epi_q(a, isvall, wc):
    T0 = 8
    T = 8 if wc == 0 else 7
    isv = isvall[wc * 8: wc * 8 + T]
    hasq = not all(isv); hasv = any(isv)
    SQ, SV = 32, 40
    if hasq:
        a.e("v_lshlrev_b32 v7, 3, v2")
        a.e("v_add_u32 v7, s58, v7")
        for rt in range(4):
            a.e("ds_read_b64 %s, v7 offset:%d" % (vr(SQ + 2 * rt, 2), rt * 128))
    if hasv:
        a.e("v_lshlrev_b32 v7, 5, v3")
        a.e("v_add_u32 v7, s58, v7")
        for rt in range(4):
            a.e("ds_read_b128 %s, v7 offset:%d" % (vr(SV + 8 * rt, 4), rt * 128))
            a.e("ds_read_b128 %s, v7 offset:%d" % (vr(SV + 8 * rt + 4, 4), rt * 128 + 16))
    a.e("v_lshlrev_b32 v4, 4, v3")
    a.e("v_add_u32 v4, %d, v4" % LDS_CS)
    a.e("v_lshlrev_b32 v5, 2, v2")
    a.e("v_add_u32 v5, %d, v5" % LDS_CS)
    CSB = 72
    for pl in range(T):
        p = wc * 8 + pl
        if not isv[pl]: a.e("ds_read_b128 %s, v4 offset:%d" % (vr(CSB + pl * 4, 4), p * 64))
        else: a.e("ds_read_b32 v%d, v5 offset:%d" % (CSB + pl * 4, p * 64))
    a.e("s_lshr_b32 s60, s26, 1")
    a.e("s_mul_i32 s61, s60, 2560")
    a.e("s_lshl_b32 s62, s60, 12")
    AD = 104
    for pl in range(T):
        p = wc * 8 + pl
        d = AD + pl
        if not isv[pl]:
            a.e("v_add_u32 v8, %d, v3" % (4 * p))
            a.e("v_mul_u32_u24 v9, 205, v8")
            a.e("v_lshrrev_b32 v9, 10, v9")
            a.e("v_mul_u32_u24 v10, 5, v9")
            a.e("v_sub_u32 v10, v8, v10")
            a.e("v_lshrrev_b32 v11, 1, v10")
            a.e("v_lshlrev_b32 v11, 9, v11")
            a.e("v_cmp_eq_u32 vcc, 4, v10")
            a.e("v_and_b32 v10, 1, v10")
            a.e("v_lshl_or_b32 v11, v10, 3, v11")
            a.e("v_lshl_add_u32 v11, v2, 4, v11")
            a.e("v_lshlrev_b32 v10, 3, v2")
            a.e("v_add_u32 v10, 0x400, v10")
            a.e("v_cndmask_b32 v11, v11, v10, vcc")
            a.e("v_lshl_add_u32 v11, v9, 13, v11")
            a.e("v_add_u32 v%d, s61, v11" % d)
            if 4 * p <= 4 + 5 * 11 and any((4 * p + g) % 5 == 4 for g in range(4)):
                a.e("v_mov_b32 v10, 0x100")
                a.e("v_mov_b32 v8, 0x80")
                a.e("v_cndmask_b32 v10, v10, v8, vcc")
                a.e("v_add_u32 v%d, v10, v%d" % (AD + 8 + pl, d))
            else:
                a.e("v_add_u32 v%d, 0x100, v%d" % (AD + 8 + pl, d))
        else:
            a.e("v_add_u32 v8, %d, v2" % (16 * p))
            a.e("v_mul_u32_u24 v9, 3277, v8")
            a.e("v_lshrrev_b32 v9, 16, v9")
            a.e("v_mul_u32_u24 v10, 20, v9")
            a.e("v_sub_u32 v10, v8, v10")
            a.e("v_and_b32 v11, 1, v3")
            a.e("v_lshl_add_u32 v11, v11, 5, v10")
            a.e("v_lshlrev_b32 v11, 4, v11")
            a.e("v_lshrrev_b32 v10, 1, v3")
            a.e("v_lshl_add_u32 v11, v10, 3, v11")
            a.e("v_lshl_add_u32 v11, v9, 13, v11")
            a.e("v_add_u32 v%d, s62, v11" % d)
    a.e("s_waitcnt lgkmcnt(0)")
    k = 0
    for pl in range(T):
        tb = CSB + pl * 4
        for rt in range(4):
            acc = V_ACC + (pl * 4 + rt) * 4
            t = 8 + (k % 2) * 8; k += 1
            if not isv[pl]:
                for r in range(4):
                    a.e("v_mul_f32 v%d, v%d, v%d" % (t + r, SQ + 2 * rt + 1, tb + r))
                for r in range(4):
                    a.e("v_fma_f32 v%d, v%d, v%d, v%d" % (t + r, acc + r, SQ + 2 * rt, t + r))
                off = (rt >> 1) * 1280
            else:
                sb = SV + rt * 8
                for r in range(4):
                    a.e("v_mul_f32 v%d, v%d, v%d" % (t + r, sb + 2 * r + 1, tb))
                for r in range(4):
                    a.e("v_fma_f32 v%d, v%d, v%d, v%d" % (t + r, acc + r, sb + 2 * r, t + r))
                off = (rt >> 1) * 2048 + (rt & 1) * 1024
            a.e("v_cvt_pk_bf16_f32 v%d, v%d, v%d" % (t + 4, t, t + 1))
            a.e("v_cvt_pk_bf16_f32 v%d, v%d, v%d" % (t + 5, t + 2, t + 3))
            a.e("ds_write_b64 v%d, %s offset:%d" % (AD + pl + (8 if (not isv[pl] and rt & 1) else 0), vr(t + 4, 2), off))

def k1_copyout(a, isvall):
    hv = [isvall[(20 * j) // 16] if (20 * j) % 16 == 0 else isvall[(20 * j) // 16 + 1] for j in range(12)]
    hv = [isvall[(20 * j + 19) // 16] for j in range(12)]
    if any(hv):
        a.e("v_lshrrev_b32 v6, 1, v1")
        a.e("v_lshlrev_b32 v6, 10, v6")
        a.e("v_and_b32 v7, 1, v1")
        a.e("v_lshl_add_u32 v6, v7, 9, v6")
        a.e("s_lshl_b32 s3, s26, 13")
        a.e("s_add_u32 s3, s3, 320")
        a.e("v_add_u32 v6, s3, v6")
        a.e("v_add_u32 v7, 0x10000, v6")
        for r in range(4):
            a.e("v_mov_b32 v%d, 0x3f803f80" % (8 + r))
        a.e("v_cmp_gt_u32 vcc, 16, v1")
        a.e("s_and_saveexec_b64 s[56:57], vcc")
        for i in range(3):
            if hv[4 * i]:
                a.e("ds_write_b128 v%d, v[8:11] offset:%d" % (6 if i < 2 else 7, (i % 2) * 32768))
        a.e("s_mov_b64 exec, s[56:57]")
    a.e("s_waitcnt lgkmcnt(0)")
    a.e("s_barrier")
    a.e("v_lshlrev_b32 v6, 4, v1")
    a.e("s_lshl_b32 s3, s26, 13")
    a.e("v_add_u32 v7, s3, v6")
    a.e("v_add_u32 v5, 0x1000, v6")
    a.e("v_add_u32 v4, 0x10000, v7")
    a.e("s_mul_i32 s60, s37, 12")
    a.e("s_add_u32 s60, s60, s26")
    for i in range(3):
        isvh = hv[4 * i]
        assert all(hv[4 * i + k] == isvh for k in range(4))
        np_ = 8 if isvh else 5
        a.e("s_add_u32 s61, s60, %d" % (4 * i))
        if isvh:
            a.e("s_sub_u32 s61, s61, 64")
            a.e("s_lshl_b32 s61, s61, 17")
            a.e("s_lshl_b32 s62, s36, 13")
            a.e("s_add_u32 s61, s61, s62")
            a.e("s_add_u32 s61, s61, 0x%x" % WS_V)
        else:
            a.e("s_cmp_ge_u32 s61, 32")
            a.e("s_cselect_b32 s62, 0x%x, 0" % (WS_K - 32 * 64 * KBLK))
            a.e("s_mul_i32 s61, s61, %d" % (64 * KBLK))
            a.e("s_add_u32 s61, s61, s62")
            a.e("s_mul_i32 s62, s36, %d" % (4 * KBLK))
            a.e("s_add_u32 s61, s61, s62")
        rb = 32 + (i % 2) * 32
        if isvh and not (i and hv[4 * (i - 1)]) and not os.environ.get("VFULL"):
            a.e("v_and_b32 v8, 31, v1")
            a.e("v_cmp_gt_u32 vcc, 21, v8")
            a.e("s_mov_b64 exec, vcc")
        for k in range(np_):
            o = i * 32768 + k * 1024
            a.e("ds_read_b128 %s, v%d offset:%d" % (vr(rb + k * 4, 4), 7 if o < 65536 else 4, o % 65536))
        for k in range(np_):
            a.e("s_waitcnt lgkmcnt(%d)" % (np_ - 1 - k))
            a.e("buffer_store_dwordx4 %s, v%d, s[48:51], s61 offen offset:%d%s" % (vr(rb + k * 4, 4), 6 if k < 4 else 5, (k % 4) * 1024, SCH))
    a.e("s_mov_b64 exec, -1")

def k1_epi_h(a):
    a.e("v_lshlrev_b32 v7, 3, v2")
    a.e("v_add_u32 v7, s58, v7")
    for rt in range(4):
        a.e("ds_read_b64 %s, v7 offset:%d" % (vr(32 + 2 * rt, 2), rt * 128))
    a.e("v_lshlrev_b32 v4, 4, v3")
    a.e("s_mul_i32 s61, s57, 384")
    a.e("s_add_u32 s61, s61, %d" % LDS_CS)
    a.e("v_add_u32 v4, s61, v4")
    a.e("s_lshl_b32 s60, s36, 3")
    a.e("s_lshr_b32 s61, s26, 1")
    a.e("s_lshl_b32 s61, s61, 2")
    a.e("s_add_u32 s60, s60, s61")
    a.e("s_mul_i32 s60, s60, 48")
    a.e("s_mul_i32 s61, s39, 6")
    a.e("s_add_u32 s60, s60, s61")
    a.e("s_mul_i32 s61, s57, 3")
    a.e("s_add_u32 s60, s60, s61")
    a.e("s_lshl_b32 s60, s60, 10")
    a.e("v_lshlrev_b32 v6, 4, v1")
    for i in range(3):
        tb = 64 + i * 8
        a.e("ds_read_b128 %s, v4 offset:%d" % (vr(tb, 4), (2 * i) * 64))
        a.e("ds_read_b128 %s, v4 offset:%d" % (vr(tb + 4, 4), (2 * i + 1) * 64))
    a.e("s_waitcnt lgkmcnt(0)")
    k = 0
    for rt in range(4):
        if rt: a.e("s_add_u32 s60, s60, %d" % (48 * 1024))
        for i in range(3):
            tb = 64 + i * 8
            for t in range(2):
                b = V_B1 + (2 * i + t) * 2
                if rt == 0:
                    e = 88 + (2 * i + t) * 4
                    a.e("v_lshlrev_b32 v%d, 16, v%d" % (e, b))
                    a.e("v_and_b32 v%d, 0xffff0000, v%d" % (e + 1, b))
                    a.e("v_lshlrev_b32 v%d, 16, v%d" % (e + 2, b + 1))
                    a.e("v_and_b32 v%d, 0xffff0000, v%d" % (e + 3, b + 1))
            q = 8 + (k % 2) * 12; k += 1
            for t in range(2):
                e = 88 + (2 * i + t) * 4
                acc = V_ACC + ((2 * i + t) * 4 + rt) * 4
                for r in range(4):
                    a.e("v_fma_f32 v%d, v%d, v%d, v%d" % (q + t * 4 + r, 33 + rt * 2, tb + t * 4 + r, e + r))
                for r in range(4):
                    a.e("v_fma_f32 v%d, v%d, v%d, v%d" % (q + t * 4 + r, acc + r, 32 + rt * 2, q + t * 4 + r))
                for r in range(4):
                    a.e("v_max_f32 v%d, 0, v%d" % (q + t * 4 + r, q + t * 4 + r))
                for r in range(4):
                    a.e("v_mul_f32 v%d, v%d, v%d" % (q + t * 4 + r, q + t * 4 + r, q + t * 4 + r))
            for c in range(4):
                a.e("v_cvt_pk_bf16_f32 v%d, v%d, v%d" % (q + 8 + c, q + 2 * c, q + 2 * c + 1))
            a.e("buffer_store_dwordx4 %s, v6, s[48:51], s60 offen offset:%d%s" % (vr(q + 8, 4), i * 1024, SCH))

def repack_issue(a, X):
    L = a.newlabel("K1_RP")
    su = 92
    a.e("s_add_u32 s%d, s66, %d" % (su, 512 * X))
    a.e("s_mov_b32 s%d, -1" % (94 + X))
    a.e("s_cmp_ge_u32 s%d, 680" % su)
    a.e("s_cbranch_scc1 %s" % L)
    a.e("s_cmp_ge_u32 s%d, 480" % su)
    a.e("s_cselect_b32 s84, s8, s16")
    a.e("s_cselect_b32 s85, s9, s17")
    a.e("s_mov_b32 s86, %d" % (1536 * 1280))
    a.e("s_cselect_b32 s86, %d, s86" % (640 * 1280))
    a.e("s_cselect_b32 s93, 480, 0")
    a.e("s_cselect_b32 s%d, 0x%x, 0" % (94 + X, WS_WOF - WS_W2F))
    a.e("s_cselect_b64 vcc, -1, 0")
    a.e("s_mov_b32 s87, 0x00020000")
    a.e("s_sub_u32 s68, s%d, s93" % su)
    a.e("v_lshrrev_b32 v2, 3, v1")
    a.e("s_mul_i32 s69, s68, 6554")
    a.e("s_lshr_b32 s69, s69, 16")
    a.e("s_mul_i32 s76, s69, 10")
    a.e("s_sub_u32 s76, s68, s76")
    a.e("s_mul_i32 s77, s69, 40960")
    a.e("s_lshl_b32 s78, s76, 7")
    a.e("s_add_u32 s77, s77, s78")
    a.e("v_and_b32 v3, 7, v1")
    a.e("s_lshl_b32 s93, s26, 13")
    a.e("s_add_u32 s93, s93, %d" % (2 * SLOT + X * 4096))
    for j in range(4):
        a.e("v_add_u32 v4, %d, v2" % (8 * j))
        a.e("v_and_b32 v5, 3, v4")
        a.e("v_bfe_u32 v6, v4, 4, 1")
        a.e("v_lshl_or_b32 v5, v6, 2, v5")
        a.e("v_bfe_u32 v6, v4, 2, 2")
        a.e("v_lshl_or_b32 v5, v6, 3, v5")
        a.e("v_cndmask_b32 v4, v4, v5, vcc")
        a.e("v_mul_u32_u24 v4, 1280, v4")
        a.e("v_lshl_add_u32 v4, v3, 4, v4")
        a.e("s_add_u32 m0, s93, %d" % (j * 1024))
        a.nop(1)
        a.e("buffer_load_dwordx4 v4, s[84:87], s77 offen lds")
    a.e("s_mul_i32 s77, s69, 40")
    a.e("s_lshl_b32 s78, s76, 2")
    a.e("s_add_u32 s77, s77, s78")
    a.e("s_lshl_b32 s77, s77, 10")
    a.e("s_add_u32 s%d, s%d, s77" % (94 + X, 94 + X))
    a.label(L)

def repack_finish(a):
    srd(a, 88, 24, WS_WOF - WS_W2F + SZ_WOF, WS_W2F)
    a.e("v_bfe_u32 v2, v1, 2, 4")
    a.e("v_lshlrev_b32 v2, 7, v2")
    a.e("v_and_b32 v3, 3, v1")
    a.e("v_lshl_add_u32 v2, v3, 3, v2")
    a.e("s_lshl_b32 s93, s26, 13")
    a.e("s_add_u32 s93, s93, %d" % (2 * SLOT))
    a.e("v_add_u32 v2, s93, v2")
    a.e("v_lshlrev_b32 v3, 4, v1")
    a.e("s_waitcnt vmcnt(10)")
    for X in range(2):
        L = a.newlabel("K1_RF")
        a.e("s_cmp_eq_u32 s%d, -1" % (94 + X))
        a.e("s_cbranch_scc1 %s" % L)
        for ct in range(4):
            a.e("ds_read_b64_tr_b16 %s, v2 offset:%d" % (vr(64 + ct * 4, 2), X * 4096 + ct * 32))
            a.e("ds_read_b64_tr_b16 %s, v2 offset:%d" % (vr(66 + ct * 4, 2), X * 4096 + ct * 32 + 2048))
        a.e("s_waitcnt lgkmcnt(0)")
        for ct in range(4):
            a.e("buffer_store_dwordx4 %s, v3, s[88:91], s%d offen offset:%d%s" % (vr(64 + ct * 4, 4), 94 + X, ct * 1024, SCH))
        a.nop(2)
        a.label(L)

def gen_k1():
    a = Asm()
    a.e("s_cmp_ge_u32 s2, 256")
    a.e("s_cbranch_scc1 K1_END")
    load_args(a)
    a.e("v_and_b32 v1, 63, v0")
    a.e("v_lshrrev_b32 v2, 6, v0")
    a.nop(1)
    a.e("v_readfirstlane_b32 s26, v2")
    if os.environ.get("CPF", "1") == "1":
        a.e("s_getpc_b64 s[90:91]")
        a.label("K1_PC")
        a.e("v_lshlrev_b32 v125, 7, v0")
        for i in range(3):
            a.e("v_min_u32 v126, K2_END-K1_PC, v125")
            a.e("global_load_dword v124, v126, s[90:91]")
            if i < 2: a.e("v_add_u32 v125, 0x8000, v125")
    a.e("s_and_b32 s27, s2, 7")
    a.e("s_lshr_b32 s3, s2, 3")
    a.e("s_and_b32 s36, s27, 1")
    a.e("s_lshl_b32 s36, s36, 3")
    a.e("s_and_b32 s37, s3, 7")
    a.e("s_add_u32 s36, s36, s37")
    a.e("s_lshr_b32 s37, s27, 1")
    a.e("s_lshl_b32 s37, s37, 2")
    a.e("s_lshr_b32 s3, s3, 3")
    a.e("s_add_u32 s37, s37, s3")
    a.e("s_lshl_b32 s59, s36, 2")
    a.e("s_add_u32 s59, s59, s26")
    a.e("v_lshrrev_b32 v2, 3, v1")
    a.e("v_and_b32 v3, 7, v1")
    a.e("s_lshl_b32 s3, s59, 5")
    for j in range(4):
        a.e("v_add_u32 v4, %d, v2" % (8 * j))
        a.e("v_bfe_u32 v5, v4, 1, 3")
        a.e("v_xor_b32 v5, v3, v5")
        a.e("v_add_u32 v4, s3, v4")
        a.e("v_mul_u32_u24 v4, 1280, v4")
        a.e("v_lshl_add_u32 v%d, v5, 4, v4" % (V_XD + j))
    a.e("v_and_b32 v2, 15, v1")
    a.e("v_lshrrev_b32 v3, 4, v1")
    a.e("v_lshrrev_b32 v4, 1, v2")
    a.e("v_xor_b32 v4, v3, v4")
    a.e("v_xor_b32 v5, 4, v4")
    a.e("s_lshl_b32 s3, s26, 12")
    a.e("s_add_u32 s74, s3, %d" % XOFF)
    a.e("v_lshlrev_b32 v2, 7, v2")
    a.e("s_lshr_b32 s3, s26, 1")
    a.e("s_lshl_b32 s3, s3, 13")
    a.e("s_add_u32 s3, s3, %d" % XOFF)
    a.e("v_add_u32 v2, s3, v2")
    a.e("v_lshl_add_u32 v%d, v4, 4, v2" % V_XA)
    a.e("v_lshl_add_u32 v%d, v5, 4, v2" % (V_XA + 1))
    a.e("s_waitcnt lgkmcnt(0)")
    stamp(a, 0)
    srd(a, 28, 4, 2048 * 1280)
    LZ = a.newlabel("K1_NZ")
    a.e("s_cmp_lg_u32 s2, 255")
    a.e("s_cbranch_scc1 %s" % LZ)
    srd(a, 32, 24, 4096, 0x2200000)
    a.e("s_lshl_b32 s3, s26, 10")
    a.e("v_lshlrev_b32 v2, 4, v1")
    a.e("v_add_u32 v2, s3, v2")
    for r in range(4):
        a.e("v_mov_b32 v%d, 0" % (4 + r))
    a.e("buffer_store_dwordx4 v[4:7], v2, s[32:35], 0 offen")
    a.nop(2)
    a.label(LZ)
    a.e("s_mov_b32 s42, s74")
    a.e("s_movk_i32 s44, 0")
    issue_x(a)
    a.e("s_cmp_ge_u32 s37, 8")
    a.e("s_cbranch_scc1 K1_H")
    RB, RS = k1_setup(a, 'Q')
    k1_prologue(a, 'Q', RB)
    k1_common_init(a, 'Q')
    a.e("s_mul_i32 s43, s47, 2")
    variants = {"A": [False] * 15, "B": [False] * 5 + [True] * 10, "C": [True] * 15}
    a.e("s_cmp_eq_u32 s37, 5")
    a.e("s_cbranch_scc1 K1_VB")
    a.e("s_cmp_gt_u32 s37, 5")
    a.e("s_cbranch_scc1 K1_VC")
    for vn in "ABC":
        a.label("K1_V%s" % vn)
        for w in range(1, 4):
            a.e("s_cmp_eq_u32 s26, %d" % w)
            a.e("s_cbranch_scc1 K1_V%s_W%d" % (vn, w))
        for w in range(4):
            a.label("K1_V%s_W%d" % (vn, w))
            k1_loop(a, 'Q', 15, variants[vn], w, RS, "K1_L%s%d" % (vn, w))
            k1_stats(a, 15, w)
            a.e("s_branch K1_E%s" % vn)
        a.label("K1_E%s" % vn)
        k1_stats2(a)
        a.e("s_cmp_eq_u32 s57, 1")
        a.e("s_cbranch_scc1 K1_E%s1" % vn)
        k1_epi_q(a, variants[vn], 0)
        a.e("s_branch K1_F%s" % vn)
        a.label("K1_E%s1" % vn)
        k1_epi_q(a, variants[vn], 1)
        a.label("K1_F%s" % vn)
        k1_copyout(a, variants[vn])
        stamp(a, 5)
        if STAMPS: a.e("s_waitcnt vmcnt(0)")
        stamp(a, 6)
        stamp_flush(a, 7, 0, 4)
        a.e("s_waitcnt vmcnt(0)")
        a.e("s_endpgm")
    a.label("K1_H")
    RB, RS = k1_setup(a, 'H')
    a.e("v_lshrrev_b32 v2, 4, v1")
    a.e("v_lshlrev_b32 v2, 3, v2")
    a.e("v_add_u32 v2, s38, v2")
    a.e("s_and_b32 s3, s26, 1")
    a.e("s_mul_i32 s3, s3, 192")
    a.e("v_add_u32 v2, s3, v2")
    for p in range(6):
        a.e("buffer_load_dwordx2 %s, v2, s[52:55], 0 offen offset:%d" % (vr(V_B1 + 2 * p, 2), p * 32))
    a.e("s_lshl_b32 s66, s36, 3")
    a.e("s_add_u32 s66, s66, s39")
    a.e("s_lshl_b32 s66, s66, 2")
    a.e("s_add_u32 s66, s66, s26")
    def hook():
        repack_issue(a, 0)
        repack_issue(a, 1)
    k1_prologue(a, 'H', RB, hook)
    k1_common_init(a, 'H')
    a.e("s_mul_i32 s43, s47, 2")
    repack_finish(a)
    for w in range(1, 4):
        a.e("s_cmp_eq_u32 s26, %d" % w)
        a.e("s_cbranch_scc1 K1_H_W%d" % w)
    for w in range(4):
        a.label("K1_H_W%d" % w)
        k1_loop(a, 'H', 12, [False] * 12, w, RS, "K1_LH%d" % w)
        k1_stats(a, 12, w)
        a.e("s_branch K1_EH")
    a.label("K1_EH")
    k1_stats2(a)
    k1_epi_h(a)
    stamp(a, 5)
    if STAMPS: a.e("s_waitcnt vmcnt(0)")
    stamp(a, 6)
    stamp_flush(a, 7, 0, 4)
    a.e("s_waitcnt vmcnt(0)")
    a.label("K1_END")
    a.e("s_endpgm")
    return a.text()
```

```python
import os
from common import *
import struct
def f2u(x): return struct.unpack("<I", struct.pack("<f", x))[0]
NEG = f2u(-1e30)
LOG2E = f2u(1.4426950408889634)
QS = 1.4426950408889634 * (20.0 ** -0.5)
KBLK = 1280

def decode_gemm(a):
    a.e("s_and_b32 s27, s2, 7")
    a.e("s_lshr_b32 s3, s2, 3")
    a.e("s_and_b32 s36, s27, 3")
    a.e("s_lshl_b32 s36, s36, 3")
    a.e("s_lshr_b32 s37, s3, 2")
    a.e("s_add_u32 s36, s36, s37")
    a.e("s_lshr_b32 s37, s27, 2")
    a.e("s_lshl_b32 s37, s37, 2")
    a.e("s_and_b32 s3, s3, 3")
    a.e("s_add_u32 s37, s37, s3")

WS_FLAG = 0x2200000
def gemm2(a):
    NS = 48
    NST = 12
    V_XO = 7
    ACC, RING = 16, 96
    stamp(a, 0)
    decode_gemm(a)
    srd(a, 28, 24, SZ_H, WS_H)
    srd(a, 32, 24, SZ_W2F, WS_W2F)
    srd(a, 48, 4, 2048 * 1280)
    srd(a, 52, 18, 1280)
    srd(a, 56, 20, 2048 * 1280)
    a.e("s_mul_i32 s38, s37, 160")
    a.e("v_lshlrev_b32 v%d, 4, v1" % V_XO)
    a.e("v_add_u32 v8, 0x1000, v%d" % V_XO)
    a.e("s_mul_i32 s39, s26, 20480")
    a.e("s_mul_i32 s45, s26, %d" % NST)
    a.e("s_mul_i32 s40, s45, 40")
    a.e("s_mul_i32 s41, s37, 5")
    a.e("s_add_u32 s40, s40, s41")
    a.e("s_lshl_b32 s40, s40, 10")
    for t in range(4):
        a.e("s_lshl_b32 s%d, s36, 2" % (41 + t))
        a.e("s_add_u32 s%d, s%d, %d" % (41 + t, 41 + t, t))
        a.e("s_mul_i32 s%d, s%d, %d" % (41 + t, 41 + t, NS))
        a.e("s_add_u32 s%d, s%d, s45" % (41 + t, 41 + t))
        a.e("s_lshl_b32 s%d, s%d, 10" % (41 + t, 41 + t))
    def LD(st):
        base = RING + (st % 4) * 36
        if st > 0: a.e("s_add_u32 s40, s40, 40960")
        for ct in range(5):
            if ct < 4:
                a.vmem("buffer_load_dwordx4 %s, v%d, s[32:35], s40 offen offset:%d" % (vr(base + 16 + ct * 4, 4), V_XO, ct * 1024), "W%d_%d" % (st, ct))
            else:
                a.vmem("buffer_load_dwordx4 %s, v8, s[32:35], s40 offen" % (vr(base + 16 + ct * 4, 4)), "W%d_%d" % (st, ct))
            if ct == 0:
                for t in range(4):
                    if st > 0: a.e("s_add_u32 s%d, s%d, 1024" % (41 + t, 41 + t))
                    a.vmem("buffer_load_dwordx4 %s, v%d, s[28:31], s%d offen" % (vr(base + t * 4, 4), V_XO, 41 + t), "X%d" % st)
    stamp(a, 1)
    if os.environ.get("B0", "0") == "1": a.e("s_barrier")
    for st in range(min(4, NST)):
        LD(st)
    EP = 240
    XR = lambda ct: EP + 10 + ct * 2 if ct < 3 else 2 + (ct - 3) * 2
    a.e("v_lshrrev_b32 v9, 4, v1")
    a.e("v_and_b32 v15, 15, v1")
    a.e("s_lshl_b32 s47, s36, 6")
    a.e("s_lshl_b32 s46, s26, 4")
    a.e("s_add_u32 s47, s47, s46")
    a.e("v_add_u32 v14, s47, v15")
    a.e("v_mul_u32_u24 v14, 1280, v14")
    a.e("v_lshl_add_u32 v14, v9, 3, v14")
    a.e("v_add_u32 v14, s38, v14")
    a.e("v_lshlrev_b32 v10, 3, v9")
    a.e("v_add_u32 v10, s38, v10")
    for r in range(ACC, ACC + 80):
        a.e("v_mov_b32 v%d, 0" % r)
    stamp(a, 2)
    stamp(a, 3)
    def EPL():
        for ct in range(5):
            a.vmem("buffer_load_dwordx2 %s, v10, s[52:55], 0 offen offset:%d" % (vr(EP + ct * 2, 2), ct * 32), "EP")
        for ct in range(5):
            a.vmem("buffer_load_dwordx2 %s, v14, s[48:51], 0 offen offset:%d" % (vr(XR(ct), 2), ct * 32), "EP")
    for st in range(NST):
        base = RING + (st % 4) * 36
        for ct in range(5):
            a.wait_vm(["W%d_%d" % (st, ct), "X%d" % st])
            for rt in range(4):
                acc = ACC + (rt * 5 + ct) * 4
                a.e("v_mfma_f32_16x16x32_bf16 %s, %s, %s, %s" % (vr(acc, 4), vr(base + 16 + ct * 4, 4), vr(base + rt * 4, 4), vr(acc, 4)))
        if st + 4 < NST: LD(st + 4)
        if st == NST - 5: EPL()
    stamp(a, 4)
    a.nop(10)
    a.e("v_lshlrev_b32 v10, 4, v1")
    a.e("v_add_u32 v11, s39, v10")
    for t in range(20):
        a.e("ds_write_b128 v11, %s offset:%d" % (vr(ACC + t * 4, 4), t * 1024))
    a.e("s_waitcnt lgkmcnt(0)")
    a.e("s_barrier")
    stamp(a, 5)
    a.lg = []
    a.e("s_mul_i32 s46, s26, 5120")
    a.e("v_add_u32 v11, s46, v10")
    a.e("v_add_u32 v12, 0xa000, v11")
    a.e("v_add_u32 v13, 0x14000, v11")
    a.e("v_add_u32 v15, 0x1e000, v11")
    AD = [11, 12, 13, 15]
    def RD(ct, s0, tag):
        for sw in range(4):
            q = s0 + sw
            a.lds("ds_read_b128 %s, v%d offset:%d" % (vr(96 + ct * 16 + sw * 4, 4), AD[q // 2], (q % 2) * 20480 + ct * 1024), "%s%d" % (tag, ct))
    def RED(b):
        for r in range(4):
            a.e("v_add_f32 v%d, v%d, v%d" % (b + r, b + r, b + 4 + r))
            a.e("v_add_f32 v%d, v%d, v%d" % (b + 8 + r, b + 8 + r, b + 12 + r))
        for r in range(4):
            a.e("v_add_f32 v%d, v%d, v%d" % (b + r, b + r, b + 8 + r))
    for ct in range(5): RD(ct, 0, "G")
    a.wait_vm("EP")
    for ct in range(5):
        a.wait_lg("G%d" % ct)
        b = 96 + ct * 16
        RED(b)
        e = EP + ct * 2
        a.e("v_lshlrev_b32 v%d, 16, v%d" % (b + 4, e))
        a.e("v_and_b32 v%d, 0xffff0000, v%d" % (b + 5, e))
        a.e("v_lshlrev_b32 v%d, 16, v%d" % (b + 6, e + 1))
        a.e("v_and_b32 v%d, 0xffff0000, v%d" % (b + 7, e + 1))
        for r in range(4):
            a.e("v_add_f32 v%d, v%d, v%d" % (b + r, b + r, b + 4 + r))
        for r in range(4):
            a.e("v_mul_f32 v%d, 0x%x, v%d" % (b + 4 + r, LOG2E ^ 0x80000000, b + r))
        for r in range(4):
            a.e("v_exp_f32 v%d, v%d" % (b + 4 + r, b + 4 + r))
        e2 = XR(ct)
        X = 36 + ct * 4
        a.e("v_lshlrev_b32 v%d, 16, v%d" % (X, e2))
        a.e("v_and_b32 v%d, 0xffff0000, v%d" % (X + 1, e2))
        a.e("v_lshlrev_b32 v%d, 16, v%d" % (X + 2, e2 + 1))
        a.e("v_and_b32 v%d, 0xffff0000, v%d" % (X + 3, e2 + 1))
        for r in range(4):
            a.e("v_add_f32 v%d, 1.0, v%d" % (b + 4 + r, b + 4 + r))
        for r in range(4):
            a.e("v_rcp_f32 v%d, v%d" % (b + 4 + r, b + 4 + r))
        a.nop(4)
        for r in range(4):
            a.e("v_mul_f32 v%d, v%d, v%d" % (16 + ct * 4 + r, b + r, b + 4 + r))
    DRY = os.environ.get("DRY", "1") == "1"
    if DRY:
        a.e("s_mov_b32 s60, 0")
        a.e("s_mov_b64 exec, 0")
        a.label("K2_PB")
    else:
        a.e("s_barrier")
    a.lg = []
    for ct in range(5): RD(ct, 4, "S")
    for ct in range(5):
        a.wait_lg("S%d" % ct)
        b = 96 + ct * 16
        RED(b)
        for r in range(4):
            a.e("v_fma_f32 v%d, v%d, v%d, v%d" % (b + r, b + r, 16 + ct * 4 + r, 36 + ct * 4 + r))
        a.e("v_cvt_pk_bf16_f32 v%d, v%d, v%d" % (b + 4, b, b + 1))
        a.e("v_cvt_pk_bf16_f32 v%d, v%d, v%d" % (b + 5, b + 2, b + 3))
        a.e("buffer_store_dwordx2 %s, v14, s[56:59], 0 offen offset:%d" % (vr(b + 4, 2), ct * 32))
    if DRY:
        a.e("s_cmp_eq_u32 s60, 1")
        a.e("s_cbranch_scc1 K2_PB_DONE")
        a.e("s_mov_b32 s60, 1")
        a.e("s_mov_b64 exec, -1")
        a.e("s_barrier")
        a.e("s_branch K2_PB")
        a.label("K2_PB_DONE")
    stamp(a, 6)
    if STAMPS: a.e("s_waitcnt vmcnt(0)")
    stamp(a, 7)
    stamp_flush(a, 8, 1, 8)
    a.e("s_endpgm")

def attention(a):
    a.e("s_setprio 3")
    O, S = 16, 32
    K0, K1, V = 80, 120, 132
    Q = 212
    T = 228
    srd(a, 28, 24, SZ_QK, WS_Q)
    srd(a, 32, 24, SZ_QK, WS_K)
    srd(a, 96, 24, SZ_V, WS_V)
    srd(a, 40, 24, SZ_O, WS_O)
    decode_gemm(a)
    a.e("s_lshl_b32 s44, s37, 2")
    a.e("s_add_u32 s44, s44, s26")
    a.e("s_sub_u32 s44, s44, 4")
    a.e("s_lshl_b32 s45, s36, 1")
    stamp(a, 0)
    a.e("v_lshlrev_b32 v8, 4, v1")
    a.e("v_and_b32 v12, 31, v1")
    a.e("v_lshrrev_b32 v13, 5, v1")
    a.e("v_mov_b32 v11, 0x%x" % OOB)
    a.e("v_lshlrev_b32 v9, 3, v12")
    a.e("v_add_u32 v9, 1024, v9")
    a.e("v_cmp_gt_u32 vcc, 32, v1")
    a.e("v_mul_u32_u24 v2, %d, v13" % KBLK)
    a.e("v_add_u32 v2, v9, v2")
    a.e("v_cndmask_b32 v3, v11, v9, vcc")
    a.e("v_cndmask_b32 v4, v9, v11, vcc")
    a.e("v_cmp_ge_u32 vcc, 20, v12")
    a.e("s_lshl_b32 s47, s44, 6")
    a.e("s_add_u32 s48, s47, s45")
    a.e("v_cndmask_b32 v10, v11, v8, vcc")
    def ldQ(u):
        a.e("s_add_u32 s49, s48, %d" % u)
        a.e("s_mul_i32 s49, s49, %d" % KBLK)
        a.vmem("buffer_load_dwordx4 %s, v8, s[28:31], s49 offen" % vr(Q + 8 * u, 4), "Q%d" % u)
        a.vmem("buffer_load_dwordx2 %s, v3, s[28:31], s49 offen" % vr(Q + 8 * u + 4, 2), "Q%d" % u)
        a.vmem("buffer_load_dwordx2 %s, v4, s[28:31], s49 offen" % vr(Q + 8 * u + 6, 2), "Q%d" % u)
    def ldK(b):
        a.e("s_add_i32 s49, s45, %d" % (b - 8))
        if b % 2 == 0:
            a.e("s_add_i32 s50, s49, s47")
            a.e("s_mul_i32 s50, s50, %d" % KBLK)
            a.e("v_add_u32 v5, s50, v2")
            a.vmem("buffer_load_dwordx2 %s, v5, s[32:35], 0 offen" % vr(K1 + b, 2), "K%d" % b)
        a.e("s_max_i32 s49, s49, 0")
        a.e("s_add_u32 s49, s49, s47")
        a.e("s_mul_i32 s50, s49, %d" % KBLK)
        a.vmem("buffer_load_dwordx4 %s, v8, s[32:35], s50 offen" % vr(K0 + 4 * b, 4), "K%d" % b)
    def ldV(b):
        a.e("s_add_i32 s49, s45, %d" % (b - 8))
        a.e("s_max_i32 s49, s49, 0")
        a.e("s_add_u32 s49, s49, s47")
        a.e("s_lshl_b32 s50, s49, 11")
        a.vmem("buffer_load_dwordx4 %s, v10, s[96:99], s50 offen" % vr(V + 8 * b, 4), "V%d" % b)
        a.vmem("buffer_load_dwordx4 %s, v10, s[96:99], s50 offen offset:1024" % vr(V + 8 * b + 4, 4), "V%d" % b)
        if b == 9 and os.environ.get("DUMMY"):
            a.vmem("buffer_load_dword v%d, v8, s[96:99], s50 offen" % (T + 22), "V9")
            a.vmem("buffer_load_dword v%d, v8, s[96:99], s50 offen offset:1024" % (T + 23), "V9")
    ldQ(0)
    for b in (0, 1, 2): ldK(b)
    for b in (0, 1, 2): ldV(b)
    for b in (3, 4, 5): ldK(b)
    if os.environ.get("B0", "0") == "1": a.e("s_barrier")
    if os.environ.get("IL", "0") == "0":
        for b in (6, 7, 8, 9): ldK(b)
        ldQ(1)
        for b in range(3, 10): ldV(b)
    SCHED = {} if os.environ.get("IL", "0") == "0" else {(0, 0): [("V", 3), ("V", 4), ("V", 5), ("K", 6), ("K", 7), ("K", 8)],
             (0, 1): [("V", 6), ("V", 7), ("V", 8), ("Q", 1), ("K", 9), ("V", 9)]}
    a.e("v_lshlrev_b32 v14, 2, v13")
    a.e("v_sub_u32 v14, v12, v14")
    for r in range(16):
        c = (r & 3) + 8 * (r >> 2)
        a.e("v_cmp_le_i32 s[%d:%d], %d, v14" % (64 + 2 * r, 65 + 2 * r, c))
    a.e("v_mov_b32 v%d, 0x%x" % (T, NEG))
    a.e("v_mov_b32 v%d, 0" % (T + 1))
    a.e("v_mov_b32 v%d, 0x%x" % (T + 7, f2u(-1e20)))
    a.e("s_mov_b32 s51, 0x%x" % f2u(QS))
    a.e("s_mov_b32 s100, s51")
    a.e("s_mov_b32 s101, s51")
    assert (T + 6) % 2 == 0 and (T + 5) % 2 == 1
    VM, VMO, VT1, VT2, VNM = T + 2, T + 3, T + 4, T + 5, T + 6
    stamp(a, 1)
    for u in range(2):
        q0, qlo, qhi = Q + 8 * u, Q + 8 * u + 4, Q + 8 * u + 6
        for ch in range(3):
            blocks = [u + 3 * ch + i for i in range(3)]
            for i, b in enumerate(blocks):
                sb = S + 16 * i
                rel = b - u
                if rel == 0:
                    for r in range(16):
                        a.e("v_cndmask_b32 v%d, v%d, v%d, s[%d:%d]" % (sb + r, T + 1, T, 64 + 2 * r, 65 + 2 * r))
                if rel == 8:
                    for r in range(16):
                        a.e("v_cndmask_b32 v%d, v%d, v%d, s[%d:%d]" % (sb + r, T, T + 1, 64 + 2 * r, 65 + 2 * r))
            for ps in range(2):
                for i, b in enumerate(blocks):
                    sb = S + 16 * i
                    rel = b - u
                    if ps == 0: a.wait_vm(["K%d" % b, "K%d" % (b - b % 2), "Q%d" % u])
                    if rel < 8:
                        L1 = a.newlabel("AT_INV"); L2 = a.newlabel("AT_NXT")
                        a.e("s_add_i32 s49, s45, %d" % (b - 8))
                        a.e("s_cmp_lt_i32 s49, 0")
                        a.e("s_cbranch_scc1 %s" % (L1 if ps == 0 else L2))
                    c = vr(sb, 16) if rel in (0, 8) else "0"
                    if ps == 0:
                        a.e("v_mfma_f32_32x32x16_bf16 %s, %s, %s, %s" % (vr(sb, 16), vr(K0 + 4 * b, 4), vr(q0, 4), c))
                    else:
                        a.e("v_mfma_f32_32x32x8_bf16 %s, %s, %s, %s" % (vr(sb, 16), vr(K1 + (b - b % 2), 2), vr(qlo if b % 2 == 0 else qhi, 2), vr(sb, 16)))
                    if rel < 8:
                        if ps == 0:
                            a.e("s_branch %s" % L2)
                            a.label(L1)
                            for r in range(16):
                                a.e("v_mov_b32 v%d, v%d" % (sb + r, T))
                        a.label(L2)
                if ps == 0: a.nop(12)
            n = 48
            for kind, b in SCHED.get((u, ch), []):
                {"Q": ldQ, "K": ldK, "V": ldV}[kind](b)
            a.nop(14)
            a.e("v_max3_f32 v%d, v%d, v%d, v%d" % (VM, S, S + 1, S + 2))
            a.e("v_max3_f32 v%d, v%d, v%d, v%d" % (VT1, S + 3, S + 4, S + 5))
            rr = list(range(6, n)); tgl = 0
            while rr:
                d = VM if tgl == 0 else VT1
                a.e("v_max3_f32 v%d, v%d, v%d, v%d" % (d, d, S + rr[0], S + rr[1])); rr = rr[2:]
                tgl ^= 1
            if ch > 0:
                a.e("v_max3_f32 v%d, v%d, v%d, v%d" % (VM, VM, VT1, VMO))
            else:
                a.e("v_max3_f32 v%d, v%d, v%d, v%d" % (VM, VM, VT1, T + 7))
            a.e("v_mov_b32 v%d, v%d" % (VT1, VM))
            a.nop(2)
            a.e("v_permlane32_swap_b32 v%d, v%d" % (VM, VT1))
            a.nop(1)
            a.e("v_max_f32 v%d, v%d, v%d" % (VM, VM, VT1))
            a.e("v_mul_f32 v%d, s51, v%d" % (VNM, VM))
            a.e("v_sub_f32 v%d, 0, v%d" % (VNM, VNM))
            if ch > 0:
                a.e("v_sub_f32 v%d, v%d, v%d" % (VT2, VNM, T + 14))
                a.e("v_exp_f32 v%d, v%d" % (VT2, VT2))
            a.e("v_mov_b32 v%d, v%d" % (VMO, VM))
            a.e("v_mov_b32 v%d, v%d" % (T + 14, VNM))
            pend = None
            for i, b in enumerate(blocks):
                sb = S + 16 * i
                if os.environ.get("PK", "0") == "1":
                  for r in range(0, 16, 2):
                    a.e("v_pk_fma_f32 %s, %s, s[100:101], %s op_sel_hi:[1,1,0]" % (vr(sb + r, 2), vr(sb + r, 2), vr(VNM, 2)))
                else:
                  for r in range(16):
                    a.e("v_fma_f32 v%d, v%d, s51, v%d" % (sb + r, sb + r, VNM))
                if pend:
                    a.e("v_mfma_f32_32x32x16_bf16 %s, %s, %s, %s" % (vr(O, 16), vr(V + 8 * pend[0] + 4, 4), vr(pend[1] + 4, 4), vr(O, 16)))
                for r in range(16):
                    a.e("v_exp_f32 v%d, v%d" % (sb + r, sb + r))
                a.nop(2)
                for r in range(8):
                    a.e("v_cvt_pk_bf16_f32 v%d, v%d, v%d" % (sb + r, sb + 2 * r, sb + 2 * r + 1))
                if ch > 0 and i == 0:
                    for r in range(12):
                        a.e("v_mul_f32 v%d, v%d, v%d" % (O + r, VT2, O + r))
                    a.nop(2)
                a.wait_vm("V%d" % b)
                a.nop(1)
                c = "0" if (ch == 0 and i == 0) else vr(O, 16)
                a.e("v_mfma_f32_32x32x16_bf16 %s, %s, %s, %s" % (vr(O, 16), vr(V + 8 * b, 4), vr(sb, 4), c))
                pend = (b, sb)
            a.nop(14)
            a.e("v_mfma_f32_32x32x16_bf16 %s, %s, %s, %s" % (vr(O, 16), vr(V + 8 * pend[0] + 4, 4), vr(pend[1] + 4, 4), vr(O, 16)))
            pend = None
            a.nop(4)
        a.nop(16)
        a.e("v_mov_b32 v%d, v%d" % (VT1, O + 8))
        a.e("v_mov_b32 v%d, v%d" % (VT2, O + 8))
        a.nop(2)
        a.e("v_permlane32_swap_b32 v%d, v%d" % (VT1, VT2))
        a.nop(1)
        a.e("v_rcp_f32 v%d, v%d" % (VT2, VT2))
        a.nop(6)
        for r in range(12):
            a.e("v_mul_f32 v%d, v%d, v%d" % (O + r, VT2, O + r))
        PK = T + 8
        for i in range(6):
            a.e("v_cvt_pk_bf16_f32 v%d, v%d, v%d" % (PK + i, O + 2 * i, O + 2 * i + 1))
        A0, A1, A2, A3 = T + 16, T + 17, T + 18, T + 19
        a.e("s_add_u32 s49, s45, %d" % u)
        a.e("s_lshl_b32 s49, s49, 1")
        a.e("v_lshrrev_b32 v%d, 4, v12" % A0)
        a.e("v_add_u32 v%d, s49, v%d" % (A0, A0))
        a.e("v_mul_u32_u24 v%d, 20, v%d" % (A0, A0))
        a.e("v_and_b32 v%d, 15, v12" % A1)
        a.e("s_mul_i32 s49, s44, 5")
        for i in range(3):
            a.e("v_add_u32 v%d, s49, v13" % A2)
            if i: a.e("v_add_u32 v%d, %d, v%d" % (A2, 2 * i, A2))
            a.e("v_lshrrev_b32 v%d, 3, v%d" % (A3, A2))
            a.e("v_add_u32 v%d, v%d, v%d" % (A3, A0, A3))
            a.e("v_lshlrev_b32 v%d, 10, v%d" % (A3, A3))
            a.e("v_bfe_u32 v%d, v%d, 1, 2" % (T + 20, A2))
            a.e("v_lshl_add_u32 v%d, v%d, 4, v%d" % (T + 20, T + 20, A1))
            a.e("v_lshl_add_u32 v%d, v%d, 4, v%d" % (A3, T + 20, A3))
            a.e("v_and_b32 v%d, 1, v%d" % (T + 20, A2))
            a.e("v_lshl_add_u32 v%d, v%d, 3, v%d" % (A3, T + 20, A3))
            if i == 2:
                a.e("v_cmp_eq_u32 vcc, 0, v13")
                a.nop(2)
                a.e("v_cndmask_b32 v%d, v11, v%d, vcc" % (A3, A3))
            a.e("buffer_store_dwordx2 %s, v%d, s[40:43], 0 offen sc1" % (vr(PK + 2 * i, 2), A3))
        stamp(a, 2 + u)
    if os.environ.get("DUMPV"):
        srd(a, 28, 24, 0x200000, 0x3000000)
        a.e("s_lshl_b32 s3, s2, 2")
        a.e("s_add_u32 s3, s3, s26")
        a.e("s_sub_u32 s3, s3, 4")
        a.e("s_lshl_b32 s3, s3, 10")
        a.e("buffer_store_dwordx4 %s, v8, s[28:31], s3 offen" % vr(V + 8 * 9 + 4, 4))
        a.e("s_waitcnt vmcnt(0)")
    a.vm = []; a.lg = []
    srd(a, 28, 24, SZ_WOF, WS_WOF)
    srd(a, 32, 24, 4096, WS_FLAG)
    a.e("s_sub_u32 s3, s26, 4")
    a.e("s_mul_i32 s45, s3, 5")
    a.e("s_mul_i32 s46, s45, 40")
    a.e("s_mul_i32 s47, s37, 5")
    a.e("s_add_u32 s46, s46, s47")
    a.e("s_lshl_b32 s46, s46, 10")
    a.e("v_add_u32 v9, 0x1000, v8")
    WB, OB, ACC = 96, 16, 176
    WREG = lambda sg, ct: 96 + (sg * 5 + ct) * 4
    OREG = lambda sg, t: 16 + (sg * 4 + t) * 4
    if os.environ.get("BP", "0") == "2": a.e("s_barrier")
    a.e("s_waitcnt vmcnt(0)")
    a.e("s_lshl_b32 s47, s36, 7")
    a.e("s_lshl_b32 s48, s37, 2")
    a.e("s_add_u32 s48, s48, s3")
    a.e("s_lshl_b32 s48, s48, 2")
    a.e("s_add_u32 s48, s48, s47")
    a.e("v_mov_b32 v2, 1")
    a.e("v_mov_b32 v3, s48")
    a.e("s_mov_b64 exec, 1")
    a.e("buffer_store_dword v2, v3, s[32:35], 0 offen sc1")
    a.e("s_mov_b64 exec, -1")
    for sg in range(5):
        for ct in range(5):
            if ct < 4:
                a.vmem("buffer_load_dwordx4 %s, v8, s[28:31], s46 offen offset:%d" % (vr(WREG(sg, ct), 4), ct * 1024), "W")
            else:
                a.vmem("buffer_load_dwordx4 %s, v9, s[28:31], s46 offen" % (vr(WREG(sg, ct), 4)), "W")
        if sg < 4: a.e("s_add_u32 s46, s46, 40960")
    a.e("v_and_b32 v3, 31, v1")
    a.e("v_lshlrev_b32 v3, 2, v3")
    a.e("v_add_u32 v3, s47, v3")
    stamp(a, 3)
    BP = os.environ.get("BP", "0")
    if BP == "0": a.e("s_barrier")
    a.e("s_mov_b32 s49, 0")
    LP = a.newlabel("AT_POLL"); LD_ = a.newlabel("AT_GO")
    a.label(LP)
    a.e("buffer_load_dword v2, v3, s[32:35], 0 offen sc1")
    a.e("s_waitcnt vmcnt(0)")
    a.e("v_cmp_ne_u32 vcc, 1, v2")
    a.e("s_add_u32 s49, s49, 1")
    a.e("s_cmp_eq_u64 vcc, 0")
    a.e("s_cbranch_scc1 %s" % LD_)
    a.e("s_cmp_ge_u32 s49, 0x40000")
    a.e("s_cbranch_scc1 %s" % LD_)
    a.e("s_sleep 1")
    a.e("s_branch %s" % LP)
    a.label(LD_)
    stamp(a, 4)
    a.vm = []
    for t in range(4):
        a.e("s_lshl_b32 s%d, s36, 2" % (64 + t))
        a.e("s_add_u32 s%d, s%d, %d" % (64 + t, 64 + t, t))
        a.e("s_mul_i32 s%d, s%d, 20" % (64 + t, 64 + t))
        a.e("s_add_u32 s%d, s%d, s45" % (64 + t, 64 + t))
        a.e("s_lshl_b32 s%d, s%d, 10" % (64 + t, 64 + t))
    for sg in range(5):
        for t in range(4):
            a.vmem("buffer_load_dwordx4 %s, v8, s[40:43], s%d offen offset:%d sc1" % (vr(OREG(sg, t), 4), 64 + t, (sg % 4) * 1024) if sg < 4 else
                   "buffer_load_dwordx4 %s, v9, s[40:43], s%d offen sc1" % (vr(OREG(sg, t), 4), 64 + t), "O%d" % sg)
    if BP == "1": a.e("s_barrier")
    AC = lambda t, ct: (196 + (t * 5 + ct) * 4) if (t * 5 + ct) < 15 else (2 + 0)
    for half in range(2):
        cts = (0, 1, 2) if half == 0 else (3, 4)
        for sg in range(5):
            a.wait_vm("O%d" % sg)
            for ct in cts:
                for t in range(4):
                    acc = 196 + ((ct - cts[0]) * 4 + t) * 4
                    c = "0" if sg == 0 else vr(acc, 4)
                    a.e("v_mfma_f32_16x16x32_bf16 %s, %s, %s, %s" % (vr(acc, 4), vr(WREG(sg, ct), 4), vr(OREG(sg, t), 4), c))
        a.nop(10)
        if half == 0:
            a.e("s_mul_i32 s39, s3, 20480")
            a.e("s_add_u32 s39, s39, 81920")
            a.e("v_add_u32 v11, s39, v8")
        for ct in cts:
            for t in range(4):
                acc = 196 + ((ct - cts[0]) * 4 + t) * 4
                a.e("ds_write_b128 v11, %s offset:%d" % (vr(acc, 4), (t * 5 + ct) * 1024))
        if half == 0:
            a.e("s_waitcnt lgkmcnt(0)")
    stamp(a, 5)
    a.e("s_waitcnt lgkmcnt(0)")
    a.e("s_barrier")
    stamp_flush(a, 6, 1, 8)
    a.e("s_endpgm")

def pre(a, name):
    a.e("s_cmp_ge_u32 s2, 256")
    a.e("s_cbranch_scc1 %s_END" % name)
    load_args(a)
    a.e("v_and_b32 v1, 63, v0")
    a.e("v_lshrrev_b32 v2, 6, v0")
    a.nop(1)
    a.e("v_readfirstlane_b32 s26, v2")
    a.e("s_waitcnt lgkmcnt(0)")

def gen_k2():
    a = Asm()
    pre(a, "K2")
    a.e("s_cmp_ge_u32 s26, 4")
    a.e("s_cbranch_scc1 K2_AT")
    gemm2(a)
    a.label("K2_AT")
    a.vm = []; a.lg = []
    SB[0] = 52
    attention(a)
    SB[0] = 80
    a.label("K2_END")
    a.e("s_endpgm")
    return a.text()

KERNELS = [("k2_kernel", 256, 512, 163840, gen_k2, 256)]
```

```python
import os
from common import *
import struct
def f2u(x): return struct.unpack("<I", struct.pack("<f", x))[0]
NEG = f2u(-1e30)
LOG2E = f2u(1.4426950408889634)
QS = 1.4426950408889634 * (20.0 ** -0.5)
KBLK = 1280

def decode_gemm(a):
    a.e("s_and_b32 s27, s2, 7")
    a.e("s_lshr_b32 s3, s2, 3")
    a.e("s_and_b32 s36, s27, 3")
    a.e("s_lshl_b32 s36, s36, 3")
    a.e("s_lshr_b32 s37, s3, 2")
    a.e("s_add_u32 s36, s36, s37")
    a.e("s_lshr_b32 s37, s27, 2")
    a.e("s_lshl_b32 s37, s37, 2")
    a.e("s_and_b32 s3, s3, 3")
    a.e("s_add_u32 s37, s37, s3")

WS_FLAG = 0x2200000
def gemm2(a):
    NS = 48
    NST = 12
    V_XO = 7
    ACC, RING = 16, 96
    stamp(a, 0)
    decode_gemm(a)
    srd(a, 28, 24, SZ_H, WS_H)
    srd(a, 32, 24, SZ_W2F, WS_W2F)
    srd(a, 48, 4, 2048 * 1280)
    srd(a, 52, 18, 1280)
    srd(a, 56, 20, 2048 * 1280)
    a.e("s_mul_i32 s38, s37, 160")
    a.e("v_lshlrev_b32 v%d, 4, v1" % V_XO)
    a.e("v_add_u32 v8, 0x1000, v%d" % V_XO)
    a.e("s_mul_i32 s39, s26, 20480")
    a.e("s_mul_i32 s45, s26, %d" % NST)
    a.e("s_mul_i32 s40, s45, 40")
    a.e("s_mul_i32 s41, s37, 5")
    a.e("s_add_u32 s40, s40, s41")
    a.e("s_lshl_b32 s40, s40, 10")
    for t in range(4):
        a.e("s_lshl_b32 s%d, s36, 2" % (41 + t))
        a.e("s_add_u32 s%d, s%d, %d" % (41 + t, 41 + t, t))
        a.e("s_mul_i32 s%d, s%d, %d" % (41 + t, 41 + t, NS))
        a.e("s_add_u32 s%d, s%d, s45" % (41 + t, 41 + t))
        a.e("s_lshl_b32 s%d, s%d, 10" % (41 + t, 41 + t))
    def LD(st):
        base = RING + (st % 4) * 36
        if st > 0: a.e("s_add_u32 s40, s40, 40960")
        for ct in range(5):
            if ct < 4:
                a.vmem("buffer_load_dwordx4 %s, v%d, s[32:35], s40 offen offset:%d" % (vr(base + 16 + ct * 4, 4), V_XO, ct * 1024), "W%d_%d" % (st, ct))
            else:
                a.vmem("buffer_load_dwordx4 %s, v8, s[32:35], s40 offen" % (vr(base + 16 + ct * 4, 4)), "W%d_%d" % (st, ct))
            if ct == 0:
                for t in range(4):
                    if st > 0: a.e("s_add_u32 s%d, s%d, 1024" % (41 + t, 41 + t))
                    a.vmem("buffer_load_dwordx4 %s, v%d, s[28:31], s%d offen" % (vr(base + t * 4, 4), V_XO, 41 + t), "X%d" % st)
    stamp(a, 1)
    if os.environ.get("B0", "0") == "1": a.e("s_barrier")
    for st in range(min(4, NST)):
        LD(st)
    EP = 240
    XR = lambda ct: EP + 10 + ct * 2 if ct < 3 else 2 + (ct - 3) * 2
    a.e("v_lshrrev_b32 v9, 4, v1")
    a.e("v_and_b32 v15, 15, v1")
    a.e("s_lshl_b32 s47, s36, 6")
    a.e("s_lshl_b32 s46, s26, 4")
    a.e("s_add_u32 s47, s47, s46")
    a.e("v_add_u32 v14, s47, v15")
    a.e("v_mul_u32_u24 v14, 1280, v14")
    a.e("v_lshl_add_u32 v14, v9, 3, v14")
    a.e("v_add_u32 v14, s38, v14")
    a.e("v_lshlrev_b32 v10, 3, v9")
    a.e("v_add_u32 v10, s38, v10")
    for r in range(ACC, ACC + 80):
        a.e("v_mov_b32 v%d, 0" % r)
    stamp(a, 2)
    stamp(a, 3)
    def EPL():
        for ct in range(5):
            a.vmem("buffer_load_dwordx2 %s, v10, s[52:55], 0 offen offset:%d" % (vr(EP + ct * 2, 2), ct * 32), "EP")
        for ct in range(5):
            a.vmem("buffer_load_dwordx2 %s, v14, s[48:51], 0 offen offset:%d" % (vr(XR(ct), 2), ct * 32), "EP")
    for st in range(NST):
        base = RING + (st % 4) * 36
        for ct in range(5):
            a.wait_vm(["W%d_%d" % (st, ct), "X%d" % st])
            for rt in range(4):
                acc = ACC + (rt * 5 + ct) * 4
                a.e("v_mfma_f32_16x16x32_bf16 %s, %s, %s, %s" % (vr(acc, 4), vr(base + 16 + ct * 4, 4), vr(base + rt * 4, 4), vr(acc, 4)))
        if st + 4 < NST: LD(st + 4)
        if st == NST - 5: EPL()
    stamp(a, 4)
    a.nop(10)
    a.e("v_lshlrev_b32 v10, 4, v1")
    a.e("v_add_u32 v11, s39, v10")
    for t in range(20):
        a.e("ds_write_b128 v11, %s offset:%d" % (vr(ACC + t * 4, 4), t * 1024))
    a.e("s_waitcnt lgkmcnt(0)")
    a.e("s_barrier")
    stamp(a, 5)
    a.lg = []
    a.e("s_mul_i32 s46, s26, 5120")
    a.e("v_add_u32 v11, s46, v10")
    a.e("v_add_u32 v12, 0xa000, v11")
    a.e("v_add_u32 v13, 0x14000, v11")
    a.e("v_add_u32 v15, 0x1e000, v11")
    AD = [11, 12, 13, 15]
    def RD(ct, s0, tag):
        for sw in range(4):
            q = s0 + sw
            a.lds("ds_read_b128 %s, v%d offset:%d" % (vr(96 + ct * 16 + sw * 4, 4), AD[q // 2], (q % 2) * 20480 + ct * 1024), "%s%d" % (tag, ct))
    def RED(b):
        for r in range(4):
            a.e("v_add_f32 v%d, v%d, v%d" % (b + r, b + r, b + 4 + r))
            a.e("v_add_f32 v%d, v%d, v%d" % (b + 8 + r, b + 8 + r, b + 12 + r))
        for r in range(4):
            a.e("v_add_f32 v%d, v%d, v%d" % (b + r, b + r, b + 8 + r))
    for ct in range(5): RD(ct, 0, "G")
    a.wait_vm("EP")
    for ct in range(5):
        a.wait_lg("G%d" % ct)
        b = 96 + ct * 16
        RED(b)
        e = EP + ct * 2
        a.e("v_lshlrev_b32 v%d, 16, v%d" % (b + 4, e))
        a.e("v_and_b32 v%d, 0xffff0000, v%d" % (b + 5, e))
        a.e("v_lshlrev_b32 v%d, 16, v%d" % (b + 6, e + 1))
        a.e("v_and_b32 v%d, 0xffff0000, v%d" % (b + 7, e + 1))
        for r in range(4):
            a.e("v_add_f32 v%d, v%d, v%d" % (b + r, b + r, b + 4 + r))
        for r in range(4):
            a.e("v_mul_f32 v%d, 0x%x, v%d" % (b + 4 + r, LOG2E ^ 0x80000000, b + r))
        for r in range(4):
            a.e("v_exp_f32 v%d, v%d" % (b + 4 + r, b + 4 + r))
        e2 = XR(ct)
        X = 36 + ct * 4
        a.e("v_lshlrev_b32 v%d, 16, v%d" % (X, e2))
        a.e("v_and_b32 v%d, 0xffff0000, v%d" % (X + 1, e2))
        a.e("v_lshlrev_b32 v%d, 16, v%d" % (X + 2, e2 + 1))
        a.e("v_and_b32 v%d, 0xffff0000, v%d" % (X + 3, e2 + 1))
        for r in range(4):
            a.e("v_add_f32 v%d, 1.0, v%d" % (b + 4 + r, b + 4 + r))
        for r in range(4):
            a.e("v_rcp_f32 v%d, v%d" % (b + 4 + r, b + 4 + r))
        a.nop(4)
        for r in range(4):
            a.e("v_mul_f32 v%d, v%d, v%d" % (16 + ct * 4 + r, b + r, b + 4 + r))
    DRY = os.environ.get("DRY", "1") == "1"
    if DRY:
        a.e("s_mov_b32 s60, 0")
        a.e("s_mov_b64 exec, 0")
        a.label("K2_PB")
    else:
        a.e("s_barrier")
    a.lg = []
    for ct in range(5): RD(ct, 4, "S")
    for ct in range(5):
        a.wait_lg("S%d" % ct)
        b = 96 + ct * 16
        RED(b)
        for r in range(4):
            a.e("v_fma_f32 v%d, v%d, v%d, v%d" % (b + r, b + r, 16 + ct * 4 + r, 36 + ct * 4 + r))
        a.e("v_cvt_pk_bf16_f32 v%d, v%d, v%d" % (b + 4, b, b + 1))
        a.e("v_cvt_pk_bf16_f32 v%d, v%d, v%d" % (b + 5, b + 2, b + 3))
        a.e("buffer_store_dwordx2 %s, v14, s[56:59], 0 offen offset:%d" % (vr(b + 4, 2), ct * 32))
    if DRY:
        a.e("s_cmp_eq_u32 s60, 1")
        a.e("s_cbranch_scc1 K2_PB_DONE")
        a.e("s_mov_b32 s60, 1")
        a.e("s_mov_b64 exec, -1")
        a.e("s_barrier")
        a.e("s_branch K2_PB")
        a.label("K2_PB_DONE")
    stamp(a, 6)
    if STAMPS: a.e("s_waitcnt vmcnt(0)")
    stamp(a, 7)
    stamp_flush(a, 8, 1, 8)
    a.e("s_endpgm")

def attention(a):
    a.e("s_setprio 3")
    O, S = 16, 32
    K0, K1, V = 80, 120, 132
    Q = 212
    T = 228
    srd(a, 28, 24, SZ_QK, WS_Q)
    srd(a, 32, 24, SZ_QK, WS_K)
    srd(a, 96, 24, SZ_V, WS_V)
    srd(a, 40, 24, SZ_O, WS_O)
    decode_gemm(a)
    a.e("s_lshl_b32 s44, s37, 2")
    a.e("s_add_u32 s44, s44, s26")
    a.e("s_sub_u32 s44, s44, 4")
    a.e("s_lshl_b32 s45, s36, 1")
    stamp(a, 0)
    a.e("v_lshlrev_b32 v8, 4, v1")
    a.e("v_and_b32 v12, 31, v1")
    a.e("v_lshrrev_b32 v13, 5, v1")
    a.e("v_mov_b32 v11, 0x%x" % OOB)
    a.e("v_lshlrev_b32 v9, 3, v12")
    a.e("v_add_u32 v9, 1024, v9")
    a.e("v_cmp_gt_u32 vcc, 32, v1")
    a.e("v_mul_u32_u24 v2, %d, v13" % KBLK)
    a.e("v_add_u32 v2, v9, v2")
    a.e("v_cndmask_b32 v3, v11, v9, vcc")
    a.e("v_cndmask_b32 v4, v9, v11, vcc")
    a.e("v_cmp_ge_u32 vcc, 20, v12")
    a.e("s_lshl_b32 s47, s44, 6")
    a.e("s_add_u32 s48, s47, s45")
    a.e("v_cndmask_b32 v10, v11, v8, vcc")
    def ldQ(u):
        a.e("s_add_u32 s49, s48, %d" % u)
        a.e("s_mul_i32 s49, s49, %d" % KBLK)
        a.vmem("buffer_load_dwordx4 %s, v8, s[28:31], s49 offen" % vr(Q + 8 * u, 4), "Q%d" % u)
        a.vmem("buffer_load_dwordx2 %s, v3, s[28:31], s49 offen" % vr(Q + 8 * u + 4, 2), "Q%d" % u)
        a.vmem("buffer_load_dwordx2 %s, v4, s[28:31], s49 offen" % vr(Q + 8 * u + 6, 2), "Q%d" % u)
    def ldK(b):
        a.e("s_add_i32 s49, s45, %d" % (b - 8))
        if b % 2 == 0:
            a.e("s_add_i32 s50, s49, s47")
            a.e("s_mul_i32 s50, s50, %d" % KBLK)
            a.e("v_add_u32 v5, s50, v2")
            a.vmem("buffer_load_dwordx2 %s, v5, s[32:35], 0 offen" % vr(K1 + b, 2), "K%d" % b)
        a.e("s_max_i32 s49, s49, 0")
        a.e("s_add_u32 s49, s49, s47")
        a.e("s_mul_i32 s50, s49, %d" % KBLK)
        a.vmem("buffer_load_dwordx4 %s, v8, s[32:35], s50 offen" % vr(K0 + 4 * b, 4), "K%d" % b)
    def ldV(b):
        a.e("s_add_i32 s49, s45, %d" % (b - 8))
        a.e("s_max_i32 s49, s49, 0")
        a.e("s_add_u32 s49, s49, s47")
        a.e("s_lshl_b32 s50, s49, 11")
        a.vmem("buffer_load_dwordx4 %s, v10, s[96:99], s50 offen" % vr(V + 8 * b, 4), "V%d" % b)
        a.vmem("buffer_load_dwordx4 %s, v10, s[96:99], s50 offen offset:1024" % vr(V + 8 * b + 4, 4), "V%d" % b)
        if b == 9 and os.environ.get("DUMMY"):
            a.vmem("buffer_load_dword v%d, v8, s[96:99], s50 offen" % (T + 22), "V9")
            a.vmem("buffer_load_dword v%d, v8, s[96:99], s50 offen offset:1024" % (T + 23), "V9")
    ldQ(0)
    for b in (0, 1, 2): ldK(b)
    for b in (0, 1, 2): ldV(b)
    for b in (3, 4, 5): ldK(b)
    if os.environ.get("B0", "0") == "1": a.e("s_barrier")
    if os.environ.get("IL", "0") == "0":
        for b in (6, 7, 8, 9): ldK(b)
        ldQ(1)
        for b in range(3, 10): ldV(b)
    SCHED = {} if os.environ.get("IL", "0") == "0" else {(0, 0): [("V", 3), ("V", 4), ("V", 5), ("K", 6), ("K", 7), ("K", 8)],
             (0, 1): [("V", 6), ("V", 7), ("V", 8), ("Q", 1), ("K", 9), ("V", 9)]}
    a.e("v_lshlrev_b32 v14, 2, v13")
    a.e("v_sub_u32 v14, v12, v14")
    for r in range(16):
        c = (r & 3) + 8 * (r >> 2)
        a.e("v_cmp_le_i32 s[%d:%d], %d, v14" % (64 + 2 * r, 65 + 2 * r, c))
    a.e("v_mov_b32 v%d, 0x%x" % (T, NEG))
    a.e("v_mov_b32 v%d, 0" % (T + 1))
    a.e("v_mov_b32 v%d, 0x%x" % (T + 7, f2u(-1e20)))
    a.e("s_mov_b32 s51, 0x%x" % f2u(QS))
    a.e("s_mov_b32 s100, s51")
    a.e("s_mov_b32 s101, s51")
    assert (T + 6) % 2 == 0 and (T + 5) % 2 == 1
    VM, VMO, VT1, VT2, VNM = T + 2, T + 3, T + 4, T + 5, T + 6
    stamp(a, 1)
    for u in range(2):
        q0, qlo, qhi = Q + 8 * u, Q + 8 * u + 4, Q + 8 * u + 6
        for ch in range(3):
            blocks = [u + 3 * ch + i for i in range(3)]
            for i, b in enumerate(blocks):
                sb = S + 16 * i
                rel = b - u
                if rel == 0:
                    for r in range(16):
                        a.e("v_cndmask_b32 v%d, v%d, v%d, s[%d:%d]" % (sb + r, T + 1, T, 64 + 2 * r, 65 + 2 * r))
                if rel == 8:
                    for r in range(16):
                        a.e("v_cndmask_b32 v%d, v%d, v%d, s[%d:%d]" % (sb + r, T, T + 1, 64 + 2 * r, 65 + 2 * r))
            for ps in range(2):
                for i, b in enumerate(blocks):
                    sb = S + 16 * i
                    rel = b - u
                    if ps == 0: a.wait_vm(["K%d" % b, "K%d" % (b - b % 2), "Q%d" % u])
                    if rel < 8:
                        L1 = a.newlabel("AT_INV"); L2 = a.newlabel("AT_NXT")
                        a.e("s_add_i32 s49, s45, %d" % (b - 8))
                        a.e("s_cmp_lt_i32 s49, 0")
                        a.e("s_cbranch_scc1 %s" % (L1 if ps == 0 else L2))
                    c = vr(sb, 16) if rel in (0, 8) else "0"
                    if ps == 0:
                        a.e("v_mfma_f32_32x32x16_bf16 %s, %s, %s, %s" % (vr(sb, 16), vr(K0 + 4 * b, 4), vr(q0, 4), c))
                    else:
                        a.e("v_mfma_f32_32x32x8_bf16 %s, %s, %s, %s" % (vr(sb, 16), vr(K1 + (b - b % 2), 2), vr(qlo if b % 2 == 0 else qhi, 2), vr(sb, 16)))
                    if rel < 8:
                        if ps == 0:
                            a.e("s_branch %s" % L2)
                            a.label(L1)
                            for r in range(16):
                                a.e("v_mov_b32 v%d, v%d" % (sb + r, T))
                        a.label(L2)
                if ps == 0: a.nop(12)
            n = 48
            for kind, b in SCHED.get((u, ch), []):
                {"Q": ldQ, "K": ldK, "V": ldV}[kind](b)
            a.nop(14)
            a.e("v_max3_f32 v%d, v%d, v%d, v%d" % (VM, S, S + 1, S + 2))
            a.e("v_max3_f32 v%d, v%d, v%d, v%d" % (VT1, S + 3, S + 4, S + 5))
            rr = list(range(6, n)); tgl = 0
            while rr:
                d = VM if tgl == 0 else VT1
                a.e("v_max3_f32 v%d, v%d, v%d, v%d" % (d, d, S + rr[0], S + rr[1])); rr = rr[2:]
                tgl ^= 1
            if ch > 0:
                a.e("v_max3_f32 v%d, v%d, v%d, v%d" % (VM, VM, VT1, VMO))
            else:
                a.e("v_max3_f32 v%d, v%d, v%d, v%d" % (VM, VM, VT1, T + 7))
            a.e("v_mov_b32 v%d, v%d" % (VT1, VM))
            a.nop(2)
            a.e("v_permlane32_swap_b32 v%d, v%d" % (VM, VT1))
            a.nop(1)
            a.e("v_max_f32 v%d, v%d, v%d" % (VM, VM, VT1))
            a.e("v_mul_f32 v%d, s51, v%d" % (VNM, VM))
            a.e("v_sub_f32 v%d, 0, v%d" % (VNM, VNM))
            if ch > 0:
                a.e("v_sub_f32 v%d, v%d, v%d" % (VT2, VNM, T + 14))
                a.e("v_exp_f32 v%d, v%d" % (VT2, VT2))
            a.e("v_mov_b32 v%d, v%d" % (VMO, VM))
            a.e("v_mov_b32 v%d, v%d" % (T + 14, VNM))
            pend = None
            for i, b in enumerate(blocks):
                sb = S + 16 * i
                if os.environ.get("PK", "0") == "1":
                  for r in range(0, 16, 2):
                    a.e("v_pk_fma_f32 %s, %s, s[100:101], %s op_sel_hi:[1,1,0]" % (vr(sb + r, 2), vr(sb + r, 2), vr(VNM, 2)))
                else:
                  for r in range(16):
                    a.e("v_fma_f32 v%d, v%d, s51, v%d" % (sb + r, sb + r, VNM))
                if pend:
                    a.e("v_mfma_f32_32x32x16_bf16 %s, %s, %s, %s" % (vr(O, 16), vr(V + 8 * pend[0] + 4, 4), vr(pend[1] + 4, 4), vr(O, 16)))
                for r in range(16):
                    a.e("v_exp_f32 v%d, v%d" % (sb + r, sb + r))
                a.nop(2)
                for r in range(8):
                    a.e("v_cvt_pk_bf16_f32 v%d, v%d, v%d" % (sb + r, sb + 2 * r, sb + 2 * r + 1))
                if ch > 0 and i == 0:
                    for r in range(12):
                        a.e("v_mul_f32 v%d, v%d, v%d" % (O + r, VT2, O + r))
                    a.nop(2)
                a.wait_vm("V%d" % b)
                a.nop(1)
                c = "0" if (ch == 0 and i == 0) else vr(O, 16)
                a.e("v_mfma_f32_32x32x16_bf16 %s, %s, %s, %s" % (vr(O, 16), vr(V + 8 * b, 4), vr(sb, 4), c))
                pend = (b, sb)
            a.nop(14)
            a.e("v_mfma_f32_32x32x16_bf16 %s, %s, %s, %s" % (vr(O, 16), vr(V + 8 * pend[0] + 4, 4), vr(pend[1] + 4, 4), vr(O, 16)))
            pend = None
            a.nop(4)
        a.nop(16)
        a.e("v_mov_b32 v%d, v%d" % (VT1, O + 8))
        a.e("v_mov_b32 v%d, v%d" % (VT2, O + 8))
        a.nop(2)
        a.e("v_permlane32_swap_b32 v%d, v%d" % (VT1, VT2))
        a.nop(1)
        a.e("v_rcp_f32 v%d, v%d" % (VT2, VT2))
        a.nop(6)
        for r in range(12):
            a.e("v_mul_f32 v%d, v%d, v%d" % (O + r, VT2, O + r))
        PK = T + 8
        for i in range(6):
            a.e("v_cvt_pk_bf16_f32 v%d, v%d, v%d" % (PK + i, O + 2 * i, O + 2 * i + 1))
        A0, A1, A2, A3 = T + 16, T + 17, T + 18, T + 19
        a.e("s_add_u32 s49, s45, %d" % u)
        a.e("s_lshl_b32 s49, s49, 1")
        a.e("v_lshrrev_b32 v%d, 4, v12" % A0)
        a.e("v_add_u32 v%d, s49, v%d" % (A0, A0))
        a.e("v_mul_u32_u24 v%d, 20, v%d" % (A0, A0))
        a.e("v_and_b32 v%d, 15, v12" % A1)
        a.e("s_mul_i32 s49, s44, 5")
        for i in range(3):
            a.e("v_add_u32 v%d, s49, v13" % A2)
            if i: a.e("v_add_u32 v%d, %d, v%d" % (A2, 2 * i, A2))
            a.e("v_lshrrev_b32 v%d, 3, v%d" % (A3, A2))
            a.e("v_add_u32 v%d, v%d, v%d" % (A3, A0, A3))
            a.e("v_lshlrev_b32 v%d, 10, v%d" % (A3, A3))
            a.e("v_bfe_u32 v%d, v%d, 1, 2" % (T + 20, A2))
            a.e("v_lshl_add_u32 v%d, v%d, 4, v%d" % (T + 20, T + 20, A1))
            a.e("v_lshl_add_u32 v%d, v%d, 4, v%d" % (A3, T + 20, A3))
            a.e("v_and_b32 v%d, 1, v%d" % (T + 20, A2))
            a.e("v_lshl_add_u32 v%d, v%d, 3, v%d" % (A3, T + 20, A3))
            if i == 2:
                a.e("v_cmp_eq_u32 vcc, 0, v13")
                a.nop(2)
                a.e("v_cndmask_b32 v%d, v11, v%d, vcc" % (A3, A3))
            a.e("buffer_store_dwordx2 %s, v%d, s[40:43], 0 offen sc1" % (vr(PK + 2 * i, 2), A3))
        stamp(a, 2 + u)
    if os.environ.get("DUMPV"):
        srd(a, 28, 24, 0x200000, 0x3000000)
        a.e("s_lshl_b32 s3, s2, 2")
        a.e("s_add_u32 s3, s3, s26")
        a.e("s_sub_u32 s3, s3, 4")
        a.e("s_lshl_b32 s3, s3, 10")
        a.e("buffer_store_dwordx4 %s, v8, s[28:31], s3 offen" % vr(V + 8 * 9 + 4, 4))
        a.e("s_waitcnt vmcnt(0)")
    a.vm = []; a.lg = []
    srd(a, 28, 24, SZ_WOF, WS_WOF)
    srd(a, 32, 24, 4096, WS_FLAG)
    a.e("s_sub_u32 s3, s26, 4")
    a.e("s_mul_i32 s45, s3, 5")
    a.e("s_mul_i32 s46, s45, 40")
    a.e("s_mul_i32 s47, s37, 5")
    a.e("s_add_u32 s46, s46, s47")
    a.e("s_lshl_b32 s46, s46, 10")
    a.e("v_add_u32 v9, 0x1000, v8")
    WB, OB, ACC = 96, 16, 176
    WREG = lambda sg, ct: 96 + (sg * 5 + ct) * 4
    OREG = lambda sg, t: 16 + (sg * 4 + t) * 4
    if os.environ.get("BP", "0") == "2": a.e("s_barrier")
    a.e("s_waitcnt vmcnt(0)")
    a.e("s_lshl_b32 s47, s36, 7")
    a.e("s_lshl_b32 s48, s37, 2")
    a.e("s_add_u32 s48, s48, s3")
    a.e("s_lshl_b32 s48, s48, 2")
    a.e("s_add_u32 s48, s48, s47")
    a.e("v_mov_b32 v2, 1")
    a.e("v_mov_b32 v3, s48")
    a.e("s_mov_b64 exec, 1")
    a.e("buffer_store_dword v2, v3, s[32:35], 0 offen sc1")
    a.e("s_mov_b64 exec, -1")
    for sg in range(5):
        for ct in range(5):
            if ct < 4:
                a.vmem("buffer_load_dwordx4 %s, v8, s[28:31], s46 offen offset:%d" % (vr(WREG(sg, ct), 4), ct * 1024), "W")
            else:
                a.vmem("buffer_load_dwordx4 %s, v9, s[28:31], s46 offen" % (vr(WREG(sg, ct), 4)), "W")
        if sg < 4: a.e("s_add_u32 s46, s46, 40960")
    a.e("v_and_b32 v3, 31, v1")
    a.e("v_lshlrev_b32 v3, 2, v3")
    a.e("v_add_u32 v3, s47, v3")
    stamp(a, 3)
    BP = os.environ.get("BP", "0")
    if BP == "0": a.e("s_barrier")
    a.e("s_mov_b32 s49, 0")
    LP = a.newlabel("AT_POLL"); LD_ = a.newlabel("AT_GO")
    a.label(LP)
    a.e("buffer_load_dword v2, v3, s[32:35], 0 offen sc1")
    a.e("s_waitcnt vmcnt(0)")
    a.e("v_cmp_ne_u32 vcc, 1, v2")
    a.e("s_add_u32 s49, s49, 1")
    a.e("s_cmp_eq_u64 vcc, 0")
    a.e("s_cbranch_scc1 %s" % LD_)
    a.e("s_cmp_ge_u32 s49, 0x40000")
    a.e("s_cbranch_scc1 %s" % LD_)
    a.e("s_sleep 1")
    a.e("s_branch %s" % LP)
    a.label(LD_)
    stamp(a, 4)
    a.vm = []
    for t in range(4):
        a.e("s_lshl_b32 s%d, s36, 2" % (64 + t))
        a.e("s_add_u32 s%d, s%d, %d" % (64 + t, 64 + t, t))
        a.e("s_mul_i32 s%d, s%d, 20" % (64 + t, 64 + t))
        a.e("s_add_u32 s%d, s%d, s45" % (64 + t, 64 + t))
        a.e("s_lshl_b32 s%d, s%d, 10" % (64 + t, 64 + t))
    for sg in range(5):
        for t in range(4):
            a.vmem("buffer_load_dwordx4 %s, v8, s[40:43], s%d offen offset:%d sc1" % (vr(OREG(sg, t), 4), 64 + t, (sg % 4) * 1024) if sg < 4 else
                   "buffer_load_dwordx4 %s, v9, s[40:43], s%d offen sc1" % (vr(OREG(sg, t), 4), 64 + t), "O%d" % sg)
    if BP == "1": a.e("s_barrier")
    AC = lambda t, ct: (196 + (t * 5 + ct) * 4) if (t * 5 + ct) < 15 else (2 + 0)
    for half in range(2):
        cts = (0, 1, 2) if half == 0 else (3, 4)
        for sg in range(5):
            a.wait_vm("O%d" % sg)
            for ct in cts:
                for t in range(4):
                    acc = 196 + ((ct - cts[0]) * 4 + t) * 4
                    c = "0" if sg == 0 else vr(acc, 4)
                    a.e("v_mfma_f32_16x16x32_bf16 %s, %s, %s, %s" % (vr(acc, 4), vr(WREG(sg, ct), 4), vr(OREG(sg, t), 4), c))
        a.nop(10)
        if half == 0:
            a.e("s_mul_i32 s39, s3, 20480")
            a.e("s_add_u32 s39, s39, 81920")
            a.e("v_add_u32 v11, s39, v8")
        for ct in cts:
            for t in range(4):
                acc = 196 + ((ct - cts[0]) * 4 + t) * 4
                a.e("ds_write_b128 v11, %s offset:%d" % (vr(acc, 4), (t * 5 + ct) * 1024))
        if half == 0:
            a.e("s_waitcnt lgkmcnt(0)")
    stamp(a, 5)
    a.e("s_waitcnt lgkmcnt(0)")
    a.e("s_barrier")
    stamp_flush(a, 6, 1, 8)
    a.e("s_endpgm")

def pre(a, name):
    a.e("s_cmp_ge_u32 s2, 256")
    a.e("s_cbranch_scc1 %s_END" % name)
    load_args(a)
    a.e("v_and_b32 v1, 63, v0")
    a.e("v_lshrrev_b32 v2, 6, v0")
    a.nop(1)
    a.e("v_readfirstlane_b32 s26, v2")
    if os.environ.get("CPF2", "0") == "1":
        a.e("s_getpc_b64 s[90:91]")
        a.label("K2_PC")
        a.e("v_lshlrev_b32 v3, 7, v0")
        a.e("v_min_u32 v3, K2_END-K2_PC, v3")
        a.e("global_load_dword v96, v3, s[90:91]")
    a.e("s_waitcnt lgkmcnt(0)")

def gen_k2():
    a = Asm()
    pre(a, "K2")
    a.e("s_cmp_ge_u32 s26, 4")
    a.e("s_cbranch_scc1 K2_AT")
    gemm2(a)
    a.label("K2_AT")
    a.vm = []; a.lg = []
    SB[0] = 52
    attention(a)
    SB[0] = 80
    a.label("K2_END")
    a.e("s_endpgm")
    return a.text()

KERNELS = [("k2_kernel", 256, 512, 163840, gen_k2, 256)]
```
